```python
import torch

def _softmax(x, axis=-1):
    return torch.softmax(x, dim=axis)
def _gelu(x):
    return torch.nn.functional.gelu(x, approximate="tanh")
def _silu(x):
    return torch.nn.functional.silu(x)
def _sigmoid(x):
    return torch.sigmoid(x)
def _layernorm(x, axis=-1, eps=1e-5):
    m = x.mean(dim=axis, keepdim=True)
    v = x.var(dim=axis, keepdim=True, unbiased=False)
    return (x - m) / torch.sqrt(v + eps)
def _scatter_add(tgt, idx, src, axis=0):
    return tgt.clone().index_add_(axis, idx, src)
def _segment_sum(src, seg, n):
    out = torch.zeros((n,) + src.shape[1:], dtype=src.dtype)
    return out.index_add_(0, seg, src)
def _pad(x, pw):
    flat = tuple(v for pair in reversed(pw) for v in pair)
    return torch.nn.functional.pad(x, flat)

kernel_name = 'recurrent_scan__ssm_conv_s5__glu_gated_glu__prompt'

def setup_inputs():

    _w = (lambda a: (lambda t: t.to(torch.bfloat16) if t.is_floating_point() else t)(torch.as_tensor(a)))
    def _A_setup():
        B, S, D = 1, 2048, 640
        P = D
        Lambda_re = -0.5 * (lambda _x: torch.exp(torch.as_tensor(_x)))((lambda *s: torch.randn(*s, dtype=torch.bfloat16) * 0.2)(P))
        Lambda_im = (lambda *s: torch.randn(*s, dtype=torch.bfloat16) * 0.8)(P) * 1.0
        B_re = (lambda *s: torch.randn(*s, dtype=torch.bfloat16) * 0.2)(P, D) * (D ** -0.5)
        B_im = (lambda *s: torch.randn(*s, dtype=torch.bfloat16) * 0.2)(P, D) * (D ** -0.5)
        C_re = (lambda *s: torch.randn(*s, dtype=torch.bfloat16) * 0.2)(D, P) * (P ** -0.5)
        C_im = (lambda *s: torch.randn(*s, dtype=torch.bfloat16) * 0.2)(D, P) * (P ** -0.5)
        log_dt = (lambda *s: torch.randn(*s, dtype=torch.bfloat16) * 0.2)(P) * 0.3 - 2.0
        Dskip = (lambda *s: torch.randn(*s, dtype=torch.bfloat16) * 0.05)(D)
        return {
            "x": _w((lambda *s: torch.randn(*s, dtype=torch.bfloat16) * 0.05)(B, S, D)),
            "Lambda_re": _w(Lambda_re),
            "Lambda_im": _w(Lambda_im),
            "B_re": _w(B_re),
            "B_im": _w(B_im),
            "C_re": _w(C_re),
            "C_im": _w(C_im),
            "log_dt": _w(log_dt),
            "Dskip": _w(Dskip),
        }
    _A_in = _A_setup()

    def _B_setup():
        B, S, D, F = 1, 2048, 640, 1536
        return {
            "x": _w((lambda *s: torch.randn(*s, dtype=torch.bfloat16) * 0.05)(B, S, D)),
            "w_gate": _w((lambda *s: torch.randn(*s, dtype=torch.bfloat16) * 0.05)(D, F)),
            "w_up": _w((lambda *s: torch.randn(*s, dtype=torch.bfloat16) * 0.05)(D, F)),
            "w_down": _w((lambda *s: torch.randn(*s, dtype=torch.bfloat16) * 0.05)(F, D)),
        }
    _B_in = _B_setup()

    return {
        "A_x": _A_in["x"],
        "A_Lambda_re": _A_in["Lambda_re"],
        "A_Lambda_im": _A_in["Lambda_im"],
        "A_B_re": _A_in["B_re"],
        "A_B_im": _A_in["B_im"],
        "A_C_re": _A_in["C_re"],
        "A_C_im": _A_in["C_im"],
        "A_log_dt": _A_in["log_dt"],
        "A_Dskip": _A_in["Dskip"],
        "B_x": _B_in["x"],
        "B_w_gate": _B_in["w_gate"],
        "B_w_up": _B_in["w_up"],
        "B_w_down": _B_in["w_down"],
    }

def reference(A_x, A_Lambda_re, A_Lambda_im, A_B_re, A_B_im, A_C_re, A_C_im, A_log_dt, A_Dskip, B_x, B_w_gate, B_w_up, B_w_down):
    def _A_ref(x, Lambda_re, Lambda_im, B_re, B_im, C_re, C_im, log_dt, Dskip):
        Bsz, L, H = x.shape
        Lam = Lambda_re + 1j * Lambda_im
        Bmat = B_re + 1j * B_im
        Cmat = C_re + 1j * C_im
        dt = torch.exp(log_dt)
        Lam_bar = torch.exp(dt * Lam)
        B_bar = ((Lam_bar - 1.0) / Lam)[:, None] * Bmat
        Bu = torch.einsum("bld,pd->blp", x + 0j, B_bar)
        h = torch.zeros_like(Bu[:, 0, :])
        hs = []
        for t in range(L):
            h = Lam_bar[None, :] * h + Bu[:, t, :]
            hs.append(h)
        hseq = torch.stack(hs, 1)
        y = 2.0 * torch.einsum("blp,dp->bld", hseq, Cmat).real + x * Dskip[None, None, :]
        return y

    def _B_ref(x, w_gate, w_up, w_down):
        g = torch.einsum("bsd,df->bsf", x, w_gate)
        u = torch.einsum("bsd,df->bsf", x, w_up)
        h = _sigmoid(g) * u
        return torch.einsum("bsf,fd->bsd", h, w_down)

    x = A_x
    xn = _layernorm(x, axis=-1)
    s = _A_ref(xn, A_Lambda_re, A_Lambda_im, A_B_re, A_B_im, A_C_re, A_C_im, A_log_dt, A_Dskip)
    g = _silu(_B_ref(xn, B_w_gate, B_w_up, B_w_down))
    return x + s * g
```

```python
import re

REG = re.compile(r'(?<![\w.])([vas])(?:(\d+)|\[(\d+):(\d+)\])(?![\w])')
TRANS = ('v_exp_f32', 'v_log_f32', 'v_rcp_f32', 'v_rsq_f32', 'v_sqrt_f32', 'v_sin_f32', 'v_cos_f32')

def regs_of(op):
    out = []
    for m in REG.finditer(op):
        k = m.group(1)
        if m.group(2) is not None: out.append((k, int(m.group(2))))
        else: out += [(k, i) for i in range(int(m.group(3)), int(m.group(4)) + 1)]
    if re.search(r'\bvcc\b', op): out += [('s', 'vcc')]
    if re.search(r'\bm0\b', op): out += [('s', 'm0')]
    if re.search(r'\bexec(_lo|_hi)?\b', op): out += [('s', 'exec')]
    return out

def split_ops(s):
    ops, depth, cur = [], 0, ''
    for ch in s:
        if ch == '[': depth += 1
        if ch == ']': depth -= 1
        if ch == ',' and depth == 0: ops.append(cur.strip()); cur = ''
        else: cur += ch
    if cur.strip(): ops.append(cur.strip())
    return ops

class I:
    __slots__ = ('text', 'mn', 'kind', 'rd', 'wr', 'tag', 'opt', 'srcc', 'ab', 'data', 'passes')
    def __init__(self, text, tag=None, opt=False):
        self.text = text; self.tag = tag; self.opt = opt
        self.srcc = set(); self.ab = set(); self.data = set(); self.passes = 0
        t = text.split(';')[0].strip()
        if t.endswith(':') or t.startswith('.') or not t:
            self.mn = ''; self.kind = 'label'; self.rd = set(); self.wr = set(); return
        p = t.split(None, 1); mn = p[0]; self.mn = mn
        ops = split_ops(p[1]) if len(p) > 1 else []
        R = [regs_of(o) for o in ops]
        flat = lambda l: set(x for r in l for x in r)
        rd, wr = set(), set()
        if mn.startswith('v_mfma'):
            k = 'mfma'; wr = set(R[0]); rd = flat(R[1:]); self.srcc = set(R[3]); self.ab = flat(R[1:3])
            self.passes = 8 if '32x32' in mn else 4
        elif mn.startswith('v_'):
            k = 'trans' if mn.replace('_e32', '').replace('_e64', '') in TRANS else 'valu'
            if mn.startswith(('v_swap', 'v_permlane')): wr = flat(R[:2]); rd = flat(R[:2])
            elif mn.startswith(('v_add_co', 'v_addc_co', 'v_sub_co')): wr = flat(R[:2]); rd = flat(R[2:])
            elif mn == 'v_nop': pass
            else:
                wr = set(R[0]); rd = flat(R[1:])
                if mn.startswith(('v_fmac', 'v_writelane')) or '_dpp' in mn: rd |= set(R[0])
        elif mn.startswith('ds_'):
            k = 'ds'
            if mn.startswith(('ds_read', 'ds_bpermute', 'ds_permute', 'ds_swizzle')): wr = set(R[0]); rd = flat(R[1:])
            else: rd = flat(R)
        elif mn.startswith(('buffer_', 'global_')):
            k = 'vmem'
            islds = bool(re.search(r'\blds\b', t)) or '_lds_' in mn
            if '_load' in mn and not islds: wr = set(R[0]); rd = flat(R[1:])
            else: rd = flat(R)
            if '_d16' in mn: rd |= set(R[0])
            if islds: rd |= {('s', 'm0')}
            if '_store' in mn and ('x4' in mn or 'x3' in mn):
                self.data = set(R[0]) if mn.startswith('buffer_') else set(R[1])
        elif mn.startswith(('s_load', 's_memtime', 's_memrealtime')):
            k = 'smem'; wr = set(R[0]); rd = flat(R[1:])
        elif mn in ('s_waitcnt', 's_barrier', 's_nop', 's_endpgm', 's_setprio', 's_sleep') or mn.startswith(('s_cbranch', 's_branch')):
            k = 'ctl'
            if 'vcc' in mn: rd = {('s', 'vcc')}
        elif mn.startswith('s_cmp') or mn.startswith('s_bitcmp'):
            k = 'salu'; rd = flat(R)
        elif mn.startswith('s_'):
            k = 'salu'; wr = set(R[0]); rd = flat(R[1:])
            if 'saveexec' in mn: wr |= {('s', 'exec')}
        elif mn == 'WAIT':
            k = 'wait'
        else:
            raise ValueError(text)
        self.kind = k; self.rd = rd; self.wr = wr

class Prog:
    def __init__(self): self.L = []
    def __call__(self, text, tag=None, opt=False):
        for ln in text.strip().split('\n'):
            ln = ln.strip()
            if ln: self.L.append(I(ln, tag, opt))
    def add(self, items):
        for x in items:
            if isinstance(x, I): self.L.append(x)
            elif isinstance(x, (list, tuple)): self.add(x)
            else: self(x)
    def wait(self, *tags): self.L.append(W(*tags))

def W(*tags):
    i = I('WAIT'); i.tag = tags; return i

def resolve_waits(L):
    out = []; vm = []; lg = []
    def need(q, pred):
        for j in range(len(q) - 1, -1, -1):
            if pred(q[j]): return j
        return None
    def emit_wait(jv, jl):
        parts = []
        nonlocal vm, lg
        if jv is not None:
            n = min(63, sum(1 for x in vm[jv + 1:] if not x.opt)); parts.append(f'vmcnt({n})')
            vm = vm[jv + 1:]
        if jl is not None:
            if any(x.kind == 'smem' for x in lg): n = 0; lg = []
            else:
                n = min(15, sum(1 for x in lg[jl + 1:] if not x.opt)); lg = lg[jl + 1:]
            parts.append(f'lgkmcnt({n})')
        if parts: out.append(I('s_waitcnt ' + ' '.join(parts)))
    for ins in L:
        if ins.kind == 'wait':
            tags = set(ins.tag)
            if 'ALLVM' in tags: jv = len(vm) - 1 if vm else None
            else: jv = need(vm, lambda x: x.tag in tags)
            if 'ALLLG' in tags: jl = len(lg) - 1 if lg else None
            else: jl = need(lg, lambda x: x.tag in tags)
            emit_wait(jv, jl); continue
        touch = ins.rd | ins.wr
        if touch:
            jv = need(vm, lambda x: x.wr & (ins.rd if ins.kind == 'vmem' else touch))
            jl = need(lg, lambda x: x.wr & (ins.rd if (ins.kind == 'ds' and x.kind == 'ds') else touch))
            emit_wait(jv, jl)
        if ins.mn == 's_waitcnt':
            m = re.search(r'vmcnt\((\d+)\)', ins.text)
            if m and int(m.group(1)) == 0 and not ins.opt: vm = []
            m = re.search(r'lgkmcnt\((\d+)\)', ins.text)
            if m and int(m.group(1)) == 0 and not ins.opt: lg = []
        out.append(ins)
        if ins.kind == 'vmem': vm.append(ins)
        if ins.kind in ('ds', 'smem'): lg.append(ins)
    return out

def states(i):
    if i.kind == 'label': return 0
    if i.mn == 's_nop': return int(i.text.split()[1]) + 1
    return 1

def vonly(s): return set(x for x in s if x[0] in 'va')
def sonly(s): return set(x for x in s if x[0] == 's')

def required(p, c):
    r = 0
    pv = p.kind in ('valu', 'trans'); cv = c.kind in ('valu', 'trans')
    if pv:
        w = vonly(p.wr)
        if c.kind == 'mfma' and w & c.rd: r = max(r, 2)
        if cv and w & c.rd:
            if c.mn.startswith('v_permlane') or '_dpp' in c.mn: r = max(r, 2)
            if c.mn.startswith(('v_readfirstlane', 'v_readlane')): r = max(r, 1)
            if p.kind == 'trans' and c.kind == 'valu': r = max(r, 1)
        if p.kind == 'trans' and c.kind in ('vmem', 'ds') and w & c.rd: r = max(r, 1)
        ws = sonly(p.wr)
        if ws & c.rd:
            if cv: r = max(r, 4 if c.mn.startswith(('v_readlane', 'v_writelane')) else 2)
            elif c.kind == 'vmem': r = max(r, 5)
            else: r = max(r, 2)
    if p.kind == 'mfma':
        big = {4: 8, 8: 12}[p.passes]
        if c.kind == 'mfma':
            if p.wr & c.ab: r = max(r, big)
            elif p.wr & c.srcc and not (p.wr == c.srcc and p.passes == c.passes): r = max(r, big - 2)
            elif p.wr & c.wr and not (p.wr == c.srcc): r = max(r, big - 2)
        elif c.kind in ('valu', 'trans', 'vmem', 'ds'):
            if p.wr & (c.rd | c.wr): r = max(r, big)
            if cv and p.srcc & c.wr: r = max(r, {4: 3, 8: 7}[p.passes])
    if p.kind == 'salu' and ('s', 'm0') in p.wr and c.kind == 'vmem' and ('s', 'm0') in c.rd: r = max(r, 1)
    if p.data and p.data & c.wr: r = max(r, 2 if cv else 1)
    return r

def insert_nops(L):
    out = []
    for c in L:
        if c.kind not in ('label',):
            dist = 0; pad = 0
            for p in reversed(out):
                if dist >= 12: break
                if p.kind != 'label':
                    r = required(p, c)
                    if r - dist > pad: pad = r - dist
                    if not p.opt: dist += states(p)
            if pad > 0: out.append(I(f's_nop {pad - 1}'))
        out.append(c)
    return out

def finalize(prog):
    L = insert_nops(resolve_waits(prog.L))
    return L

def text_of(L):
    return '\n'.join((i.text if i.kind == 'label' else '    ' + i.text) for i in L) + '\n'

def interleave(main, fills):
    out = []
    for i, m in enumerate(main):
        out.append(m)
        out += fills.get(i, [])
    return out
```

```python
import sys, os
sys.path.insert(0, os.path.dirname(os.path.abspath(__file__)))
from fw import *

NAME = "recurrent_scan__ssm_conv_s5__glu_gated_glu__prompt"
KERN = NAME + "_kernel"

CFG = dict(
    rot=1,
    poll_stage=5,
    stamps=0,
    rot2=1,
)

STATG = 0
CSUM = STATG + 2304 * 16
STATS = CSUM + 2048 * 16
CARRY = STATS + 18 * 1152 + 128 - ((18 * 1152) % 128)
CARRY = (CARRY + 255) // 256 * 256
FLAGG = CARRY + 320 * 256
FLAGS = FLAGG + 16 * 48 * 64
WD = (FLAGS + 16 * 20 * 64 + 4095) // 4096 * 4096
HS = 140 * 1024
H = WD + 8 * 52 * 5 * 1024
WS_END = H + 88 * HS
STAMP = WS_END
WS_SIZE = WS_END + 1024 * 256
OOB = 0x7ff00000

STG = 51200; XIMG = 18432
SPARE = 3 * STG
L_WDST = SPARE
L_DUMMY = SPARE + 8192
L_STAT = SPARE

pX, pLre, pLim, pBre, pBim, pCre, pCim, pLdt = 4, 6, 8, 10, 12, 14, 16, 18
pDsk, pBx, pWg, pWu, pWd, pOut, pDbg, pWs = 20, 22, 24, 26, 28, 30, 32, 34
sX, sW0, sW1, sWS, sT, sU = 36, 40, 44, 48, 52, 56
sWave, sCg, sRg, sRt, sCt = 60, 61, 62, 63, 64
sOffX, sOffW, sChunk, sM0X, sM0W = 65, 66, 67, 68, 69
sM0H = 70
sA, sB, sC, sD = 73, 74, 75, 76
sK2, sO2, sCo, sSpin = 77, 78, 79, 80
sCslot = 81
sCsp = 82
sMask = 84
sQ1, sQ2, sQ3 = 86, 88, 90
sSt = 92
sHo = 94
sFlag = 95
sRot2 = 96
sRotC = 97

def S4(r): return f"s[{r}:{r+3}]"
def S2(r): return f"s[{r}:{r+1}]"
def V4(r): return f"v[{r}:{r+3}]"
def V2(r): return f"v[{r}:{r+1}]"
def A4(r): return f"a[{r}:{r+3}]"

def acc(b, t): return 16 * b + 4 * t
XR = 144; NXR = 6
def xr(B): return XR + 4 * (B % NXR)
def wb(par, t): return 168 + 16 * par + 4 * t
vXD = 200; vWDm = 205
vXR0, vXR1, vWR0, vWR1 = 209, 210, 211, 212
vL16, vL16b, vLane = 213, 214, 215
LAM, COEF, L18, L36, F36, CS = 216, 220, 224, 228, 232, 248
GST = 216
vPoll, vCD0, vCD1, vTmp = 252, 253, 254, 255

LOG2E = 0x3fb8aa3b
NLOG2E = 0xbfb8aa3b
INV2PI = 0x3e22f983
INV640 = 0x3acccccd
EPS = 0x3727c5ac

class Gen:
    def __init__(self, cfg):
        self.c = cfg
        self.nlab = 0
        self.nstamp = 0

    def lab(self, s):
        self.nlab += 1
        return f"L_{s}_{self.nlab}"

    def stamp(self, p, idx):
        if not self.c['stamps']: return
        p(f"s_memrealtime {S2(sSt)}")
        p("s_waitcnt lgkmcnt(0)")
        p(f"v_writelane_b32 v251, s{sSt}, {idx}")

    def stamp_flush(self, p):
        if not self.c['stamps']: return
        p(f"s_lshl_b32 s{sA}, s2, 2\ns_add_u32 s{sA}, s{sA}, s{sWave}\ns_lshl_b32 s{sA}, s{sA}, 8\ns_add_u32 s{sA}, s{sA}, {STAMP}")
        p(f"v_lshlrev_b32 v250, 2, v{vLane}")
        p(f"buffer_store_dword v251, v250, {S4(sWS)}, s{sA} offen")

    def cmul(self, d, a, b):
        return [f"v_pk_mul_f32 {V2(d)}, {V2(a)}, {V2(b)}",
                f"v_pk_mul_f32 {V2(d+2)}, {V2(a)}, {V2(b+2)}",
                f"v_pk_fma_f32 {V2(d)}, {V2(a+2)}, {V2(b+2)}, {V2(d)} neg_lo:[1,0,0] neg_hi:[1,0,0]",
                f"v_pk_fma_f32 {V2(d+2)}, {V2(a+2)}, {V2(b)}, {V2(d+2)}"]
    def cfma(self, d, a, b, c):
        return [f"v_pk_fma_f32 {V2(d)}, {V2(a)}, {V2(b)}, {V2(c)}",
                f"v_pk_fma_f32 {V2(d+2)}, {V2(a)}, {V2(b+2)}, {V2(c+2)}",
                f"v_pk_fma_f32 {V2(d)}, {V2(a+2)}, {V2(b+2)}, {V2(d)} neg_lo:[1,0,0] neg_hi:[1,0,0]",
                f"v_pk_fma_f32 {V2(d+2)}, {V2(a+2)}, {V2(b)}, {V2(d+2)}"]
    def csel(self, d, f, t, mask):
        return [f"v_cndmask_b32 v{d+i}, v{f+i}, v{t+i}, {S2(mask)}" for i in range(4)]
    def cone(self, d):
        return [f"v_mov_b32 v{d}, 1.0", f"v_mov_b32 v{d+1}, 1.0", f"v_mov_b32 v{d+2}, 0", f"v_mov_b32 v{d+3}, 0"]
    def bfr(self, d, a):
        return [f"v_cvt_pk_bf16_f32 v{d}, v{a}, v{a}", f"v_lshlrev_b32 v{d}, 16, v{d}"]

    def entry(self, p, code_bytes):
        p(f"s_cmp_ge_u32 s2, 256\ns_cbranch_scc1 L_end")
        p(f"s_load_dwordx16 s[4:19], s[0:1], 0\ns_load_dwordx16 s[20:35], s[0:1], 64")
        per = (code_bytes + 32 * 128 - 1) // (32 * 128)
        assert per <= 64
        p(f"s_getpc_b64 {S2(sMask)}")
        p(f"s_lshr_b32 s{sA}, s2, 3\ns_mul_i32 s{sA}, s{sA}, {per*128}")
        p(f"v_min_u32 v1, {per-1}, v0\nv_lshlrev_b32 v1, 7, v1\nv_add_u32 v1, s{sA}, v1")
        p(f"v_min_u32 v1, {max(0, code_bytes - 256)}, v1")
        p(f"v_lshrrev_b32 v2, 6, v0\nv_and_b32 v{vLane}, 63, v0")
        p(f"global_load_dword v{vTmp}, v1, {S2(sMask)}")
        p(f"v_readfirstlane_b32 s{sWave}, v2")
        if self.c['stamps']: p("v_mov_b32 v251, 0")
        p(f"s_and_b32 s{sA}, s2, 7\ns_lshr_b32 s{sB}, s2, 3\ns_and_b32 s{sCt}, s{sB}, 7\ns_lshr_b32 s{sC}, s{sB}, 3\ns_lshl_b32 s{sRt}, s{sA}, 2\ns_add_u32 s{sRt}, s{sRt}, s{sC}")
        p(f"s_lshl_b32 s{sA}, s{sA}, 5\ns_add_u32 s{sA}, s{sA}, s{sB}")
        p(f"s_sub_u32 s{sB}, s{sA}, 136\ns_mul_i32 s{sC}, s{sB}, 147\ns_lshr_b32 s{sC}, s{sC}, 10")
        p(f"s_mul_i32 s{sD}, s{sC}, 7\ns_sub_u32 s{sB}, s{sB}, s{sD}\ns_add_u32 s{sB}, s{sB}, 8\ns_sub_u32 s{sC}, 16, s{sC}")
        p(f"s_lshr_b32 s{sCg}, s{sA}, 3\ns_and_b32 s{sRg}, s{sA}, 7")
        p(f"s_cmp_ge_u32 s{sA}, 136\ns_cselect_b32 s{sCg}, s{sC}, s{sCg}\ns_cselect_b32 s{sRg}, s{sB}, s{sRg}")
        p(f"s_cmp_eq_u32 s{sA}, 255\ns_cselect_b32 s{sCg}, 0, s{sCg}\ns_cselect_b32 s{sRg}, 15, s{sRg}")
        if self.c['rot']:
            p(f"s_mul_i32 s{sChunk}, s{sCg}, 3\ns_add_u32 s{sChunk}, s{sChunk}, s{sRg}")
            p(f"s_mul_i32 s{sA}, s{sChunk}, 205\ns_lshr_b32 s{sA}, s{sA}, 11\ns_mul_i32 s{sA}, s{sA}, 10\ns_sub_u32 s{sChunk}, s{sChunk}, s{sA}")
        else:
            p(f"s_mov_b32 s{sChunk}, 0")
        p(f"v_lshlrev_b32 v{vL16}, 4, v{vLane}\nv_add_u32 v{vL16b}, 0x1000, v{vL16}")
        p(f"s_and_b32 s{sA}, s{sCg}, 3\ns_lshr_b32 s{sB}, s{sCg}, 2\ns_cmp_eq_u32 s{sCg}, 16\ns_cselect_b32 s{sA}, 3, s{sA}")
        p(f"s_sub_u32 s{sC}, s{sCg}, s{sB}\ns_cmp_eq_u32 s{sA}, 3\ns_cselect_b32 s{sCg}, s{sB}, s{sC}")
        p("s_cbranch_scc1 L_ssm")

    def prologue(self, p, ssm):
        L = vLane
        t0, t1, t2, t3, t4, t5 = 0, 1, 2, 3, 4, 5
        p(f"s_mul_i32 s{sA}, s{sWave}, 36\ns_mul_i32 s{sB}, s{sRg}, {144 if ssm else 140}\ns_mov_b32 s{sD}, 1280")
        p(f"v_lshrrev_b32 v{t0}, 3, v{L}\nv_and_b32 v{t1}, 7, v{L}\nv_add_u32 v{t0}, s{sA}, v{t0}")
        for n in range(5):
            if n: p(f"v_add_u32 v{t0}, 8, v{t0}")
            p(f"v_bfe_u32 v{t2}, v{t0}, 1, 3\nv_xor_b32 v{t2}, v{t2}, v{t1}")
            if ssm:
                p(f"v_bfe_u32 v{t3}, v{t0}, 2, 2\nv_mul_u32_u24 v{t3}, 36, v{t3}")
                p(f"v_and_b32 v{t4}, 1, v{t0}\nv_mad_u32_u24 v{t3}, v{t4}, 18, v{t3}")
                p(f"v_lshrrev_b32 v{t4}, 4, v{t0}\nv_lshl_add_u32 v{t3}, v{t4}, 1, v{t3}")
                p(f"v_bfe_u32 v{t4}, v{t0}, 1, 1\nv_add3_u32 v{t3}, v{t3}, v{t4}, s{sB}")
            else:
                p(f"v_add_u32 v{t3}, s{sB}, v{t0}")
            p(f"v_lshlrev_b32 v{t2}, 4, v{t2}\nv_mad_u32_u24 v{vXD+n}, v{t3}, s{sD}, v{t2}")
            if 0 < n < 4: p(f"v_subrev_u32 v{vXD+n}, {1024*n}, v{vXD+n}")
        if ssm:
            p(f"s_lshl_b32 s{sA}, s{sCg}, 2\ns_add_u32 s{sA}, s{sA}, s{sWave}\ns_lshl_b32 s{sA}, s{sA}, 5")
            p(f"v_lshrrev_b32 v{t0}, 5, v{L}\nv_lshlrev_b32 v{t0}, 3, v{t0}\nv_bfe_u32 v{t2}, v{L}, 3, 2\nv_add3_u32 v{t0}, v{t0}, v{t2}, s{sA}")
            p(f"v_lshrrev_b32 v{t2}, 4, v{L}\nv_xor_b32 v{t2}, v{t2}, v{t1}\nv_lshlrev_b32 v{t2}, 4, v{t2}")
            p(f"v_mad_u32_u24 v{vWDm}, v{t0}, s{sD}, v{t2}")
            p(f"v_xor_b32 v{t2}, 64, v{vWDm}\nv_add_u32 v{vWDm+1}, {16*1280-1024}, v{t2}")
            p(f"v_add_u32 v{vWDm+2}, {4*1280-2048}, v{vWDm}\nv_add_u32 v{vWDm+3}, {4*1280-2048}, v{vWDm+1}")
            p(f"s_mul_i32 s{sM0W}, s{sWave}, 8192")
        else:
            p(f"s_mul_i32 s{sA}, s{sWave}, {16*3072}\ns_lshl_b32 s{sB}, s{sCg}, 8\ns_add_u32 s{sA}, s{sA}, s{sB}\ns_mov_b32 s{sC}, 3072")
            p(f"v_lshrrev_b32 v{t0}, 4, v{L}\nv_and_b32 v{t2}, 15, v{L}\nv_lshlrev_b32 v{t3}, 1, v{t0}\nv_xor_b32 v{t2}, v{t2}, v{t3}\nv_lshlrev_b32 v{t2}, 4, v{t2}")
            p(f"v_mad_u32_u24 v{t2}, v{t0}, s{sC}, v{t2}\nv_add_u32 v{vWDm}, s{sA}, v{t2}")
            p(f"v_add_u32 v{vWDm+1}, {4*3072-1024}, v{vWDm}")
            p(f"v_xor_b32 v{t2}, 128, v{vWDm}\nv_add_u32 v{vWDm+2}, {8*3072-2048}, v{t2}\nv_add_u32 v{vWDm+3}, {12*3072-3072}, v{t2}")
            p(f"s_mul_i32 s{sM0W}, s{sWave}, 4096")
        p(f"s_add_u32 s{sM0W}, s{sM0W}, {XIMG}\ns_mul_i32 s{sM0X}, s{sWave}, {36*128}")
        for i in range(3):
            p(f"s_add_u32 s{sM0H+i}, s{sM0X}, {i*STG + 4096}")
        if not ssm:
            p(f"s_cmp_eq_u32 s{sWave}, 3")
            for i in range(3): p(f"s_cselect_b32 s{sM0H+i}, {L_DUMMY}, s{sM0H+i}")
        p(f"s_lshl_b32 s{sOffX}, s{sChunk}, 7")
        p(f"s_mul_i32 s{sOffW}, s{sChunk}, {128 if ssm else 196608}")
        p(f"s_lshl_b32 s{sA}, s2, 3\ns_lshl_b32 s{sB}, s{sWave}, 2\ns_add_u32 s{sA}, s{sA}, s{sB}\ns_lshl_b32 s{sB}, s2, 2")
        p(f"s_cmp_ge_u32 s{sWave}, 2\ns_cselect_b32 s{sA}, s{sB}, s{sA}")
        p(f"v_lshrrev_b32 v7, 4, v{L}\nv_add_u32 v7, s{sA}, v7\nv_and_b32 v{t0}, 15, v{L}\nv_lshlrev_b32 v{t0}, 4, v{t0}\nv_mad_u32_u24 v6, v7, s{sD}, v{t0}")
        p(f"s_mul_i32 s{sK2}, s2, 205\ns_lshr_b32 s{sK2}, s{sK2}, 10\ns_mul_i32 s{sB}, s{sK2}, 5\ns_sub_u32 s{sO2}, s2, s{sB}")
        p(f"s_mul_i32 s{sA}, s{sK2}, {32*1280}\ns_lshl_b32 s{sB}, s{sO2}, 8\ns_add_u32 s{sA}, s{sA}, s{sB}\ns_lshl_b32 s{sB}, s{sWave}, 6\ns_add_u32 s{sA}, s{sA}, s{sB}")
        p(f"v_lshrrev_b32 v{t0}, 2, v{L}\nv_and_b32 v{t2}, 3, v{L}\nv_lshlrev_b32 v{t2}, 4, v{t2}\nv_mad_u32_u24 v8, v{t0}, s{sD}, v{t2}\nv_add_u32 v8, s{sA}, v8")
        p(f"v_add_u32 v9, {16*1280-1024}, v8")
        if ssm:
            p(f"s_lshl_b32 s{sA}, s{sCg}, 2\ns_add_u32 s{sA}, s{sA}, s{sWave}\ns_lshl_b32 s{sA}, s{sA}, 5")
            p(f"v_bfe_u32 v{t0}, v{L}, 2, 2\nv_and_b32 v{t2}, 3, v{L}\nv_lshl_add_u32 v{t0}, v{t0}, 3, v{t2}\nv_add_u32 v{CS}, s{sA}, v{t0}\nv_lshlrev_b32 v10, 1, v{CS}")
        p("s_waitcnt lgkmcnt(0)")
        def srd(r, ptr, n): p(f"s_mov_b32 s{r}, s{ptr}\ns_mov_b32 s{r+1}, s{ptr+1}\ns_mov_b32 s{r+2}, {n}\ns_mov_b32 s{r+3}, 0x20000")
        p(f"s_cmp_eq_u32 s{sWave}, 2\ns_cselect_b64 {S2(sT)}, {S2(pBre)}, {S2(pBim)}\ns_cmp_lt_u32 s{sWave}, 2\ns_cselect_b64 {S2(sT)}, {S2(pX)}, {S2(sT)}")
        p(f"s_cselect_b32 s{sT+2}, {2621440-819200}, 0\ns_add_u32 s{sT+2}, s{sT+2}, 819200\ns_mov_b32 s{sT+3}, 0x20000")
        for j in range(5):
            p(f"buffer_load_dwordx4 {V4(16+4*j)}, v6, {S4(sT)}, 0 offen offset:{256*j}")
        srd(sU, pWd, 1966080)
        p(f"s_lshl_b32 s{sA}, s{sWave}, 11\ns_add_u32 m0, s{sA}, {L_WDST}")
        p(f"buffer_load_dwordx4 v8, {S4(sU)}, 0 offen lds", tag='wdst')
        p(f"buffer_load_dwordx4 v9, {S4(sU)}, 0 offen offset:1024 lds", tag='wdst')
        if ssm:
            for i, ptr in enumerate((pLre, pLim, pLdt)):
                p(f"global_load_ushort v{100+2*i}, v10, {S2(ptr)}\nglobal_load_ushort v{101+2*i}, v10, {S2(ptr)} offset:8")
        srd(sX, pX, 2621440)
        if ssm: srd(sW0, pBre, 819200); srd(sW1, pBim, 819200)
        else: srd(sW0, pWg, 1966080); srd(sW1, pWu, 1966080)
        srd(sWS, pWs, WS_SIZE)
        self.stamp(p, 0)
        for s in (0, 1):
            for grp in self.dma_stage(s, ssm): p.add(grp)
        p(f"v_and_b32 v{t0}, 15, v{L}\nv_lshrrev_b32 v{t1}, 4, v{L}\nv_lshrrev_b32 v{t2}, 1, v{t0}\nv_xor_b32 v{t2}, v{t2}, v{t1}\nv_lshlrev_b32 v{t2}, 4, v{t2}")
        p(f"v_lshl_add_u32 v{vXR0}, v{t0}, 7, v{t2}\nv_xor_b32 v{vXR1}, 64, v{vXR0}")
        if ssm:
            p(f"v_add_u32 v{vWR0}, s{sM0W}, v{vXR0}\nv_add_u32 v{vWR1}, s{sM0W}, v{vXR1}")
        else:
            p(f"v_bfe_u32 v{t0}, v{L}, 2, 3\ns_lshl_b32 s{sA}, s{sWave}, 1\nv_xor_b32 v{t0}, s{sA}, v{t0}\nv_lshlrev_b32 v{t0}, 5, v{t0}")
            p(f"v_and_b32 v{t2}, 3, v{L}\nv_lshl_add_u32 v{t0}, v{t2}, 3, v{t0}")
            p(f"v_bfe_u32 v{t2}, v{L}, 2, 2\nv_lshl_add_u32 v{t2}, v{t1}, 3, v{t2}\nv_lshl_add_u32 v{t0}, v{t2}, 8, v{t0}")
            p(f"v_add_u32 v{vWR0}, {XIMG}, v{t0}\nv_xor_b32 v{vWR1}, 32, v{vWR0}")
            p(f"v_mov_b32 v12, 0x3f803f80\nv_mov_b32 v13, 0x3f803f80\nv_lshlrev_b32 v{t0}, 3, v{L}\nv_add_u32 v{t2}, {STG}, v{t0}")
            p(f"ds_write_b64 v{t0}, v[12:13] offset:{140*128}", tag='ones')
            p(f"ds_write_b64 v{t2}, v[12:13] offset:{140*128}", tag='ones')
            p(f"v_add_u32 v{t3}, {2*STG}, v{t0}")
            p(f"ds_write_b64 v{t3}, v[12:13] offset:{140*128}", tag='ones')
        p(f"s_mul_i32 s{sA}, s{sCt}, {80*1280}\ns_mov_b32 s{sD}, 1280")
        p(f"v_lshrrev_b32 v{t0}, 3, v{L}\nv_and_b32 v{t2}, 7, v{L}\nv_lshrrev_b32 v{t3}, 4, v{L}\nv_xor_b32 v{t2}, v{t2}, v{t3}\nv_lshlrev_b32 v{t2}, 4, v{t2}")
        p(f"v_mad_u32_u24 v{t0}, v{t0}, s{sD}, v{t2}\nv_add_u32 v{vCD0}, s{sA}, v{t0}\nv_xor_b32 v{t0}, 64, v{vCD0}\nv_add_u32 v{vCD1}, {8*1280-1024}, v{t0}")
        p(f"s_mul_i32 s{sCslot}, s{sWave}, 10240\ns_mul_i32 s{sCsp}, s{sWave}, {STG}\ns_add_u32 s{sCsp}, s{sCsp}, 40960\ns_cmp_eq_u32 s{sWave}, 3\ns_cselect_b32 s{sCsp}, {SPARE}, s{sCsp}")
        if self.c['rot2']:
            p(f"s_mul_i32 s{sRot2}, s{sCt}, 3\ns_lshr_b32 s{sRot2}, s{sRot2}, 1")
            p(f"s_mul_i32 s{sRotC}, s{sCt}, 5\ns_lshr_b32 s{sRotC}, s{sRotC}, 3")
        else:
            p(f"s_mov_b32 s{sRot2}, 0\ns_mov_b32 s{sRotC}, 0")
        p(f"s_lshl_b32 s{sA}, s{sCg}, 2\ns_add_u32 s{sA}, s{sA}, s{sWave}")
        p(f"s_mul_i32 s{sB}, s{sRg}, {20 if ssm else 48}\ns_add_u32 s{sB}, s{sB}, s{sA}\ns_lshl_b32 s{sB}, s{sB}, 6\ns_add_u32 s{sFlag}, s{sB}, {FLAGS if ssm else FLAGG}")
        p(f"v_mov_b32 v12, 0")
        p(f"buffer_store_dword v12, v12, {S4(sWS)}, s{sFlag} offen sc1", tag='side')
        if ssm:
            p(f"s_lshl_b32 s{sB}, s{sA}, 4\ns_add_u32 s{sB}, s{sB}, s{sRg}\ns_lshl_b32 s{sB}, s{sB}, 8\ns_add_u32 s{sCo}, s{sB}, {CARRY}")
            p(f"v_mov_b32 v13, -1\nv_lshlrev_b32 v14, 2, v{L}")
            p(f"buffer_store_dword v13, v14, {S4(sWS)}, s{sCo} offen sc1", tag='side')
            p(f"s_add_u32 s{sA}, s{sA}, 48")
        p(f"s_mul_i32 s{sHo}, s{sA}, {HS}\ns_add_u32 s{sHo}, s{sHo}, {H}")
        self.side_stats(p)
        self.side_wd(p)
        if ssm: self.ssm_consts(p)
        p(f"s_cmp_lt_u32 s{sWave}, 2\ns_cselect_b64 {S2(sT)}, {S2(pCre)}, {S2(pCim)}\ns_mov_b32 s{sT+2}, 819200")
        srd(sU, pOut, 5242880)

    def side_stats(self, p):
        L = vLane
        X = 40
        for j in range(20):
            p(f"v_lshlrev_b32 v{X+2*j}, 16, v{16+j}\nv_and_b32 v{X+2*j+1}, 0xffff0000, v{16+j}")
        p(f"v_pk_add_f32 v[80:81], {V2(X)}, {V2(X+2)}\nv_pk_add_f32 v[82:83], {V2(X+4)}, {V2(X+6)}")
        for j in range(4, 20):
            a = 80 + 2 * (j & 1)
            p(f"v_pk_add_f32 {V2(a)}, {V2(a)}, {V2(X+2*j)}")
        p("v_pk_add_f32 v[80:81], v[80:81], v[82:83]\nv_add_f32 v87, v80, v81")
        for r in (8, 4, 2, 1):
            p(f"v_add_f32_dpp v87, v87, v87 row_ror:{r} row_mask:0xf bank_mask:0xf")
        p(f"v_mul_f32 v88, {INV640}, v87")
        for j in range(20):
            p(f"v_pk_add_f32 {V2(X+2*j)}, {V2(X+2*j)}, v[88:89] op_sel_hi:[1,0] neg_lo:[0,1] neg_hi:[0,1]")
        p(f"v_pk_mul_f32 v[80:81], {V2(X)}, {V2(X)}\nv_pk_mul_f32 v[82:83], {V2(X+2)}, {V2(X+2)}")
        for j in range(2, 20):
            a = 80 + 2 * (j & 1)
            p(f"v_pk_fma_f32 {V2(a)}, {V2(X+2*j)}, {V2(X+2*j)}, {V2(a)}")
        p("v_pk_add_f32 v[80:81], v[80:81], v[82:83]\nv_add_f32 v80, v80, v81")
        for r in (8, 4, 2, 1):
            p(f"v_add_f32_dpp v80, v80, v80 row_ror:{r} row_mask:0xf bank_mask:0xf")
        p(f"v_mul_f32 v80, {INV640}, v80")
        p.add(self.bfr(80, 80)); p(f"v_add_f32 v80, {EPS}, v80"); p.add(self.bfr(80, 80))
        p("v_sqrt_f32 v80, v80"); p.add(self.bfr(85, 80)); p("v_rcp_f32 v86, v85"); p.add(self.bfr(84, 88))
        p("v_mul_f32 v81, v84, v86")
        p(f"s_lshl_b32 s{sA}, s{sWave}, 14\ns_add_u32 s{sA}, s{sA}, {CSUM - 2*16384}\ns_cmp_lt_u32 s{sWave}, 2\ns_cselect_b32 s{sA}, {STATG}, s{sA}")
        p(f"s_cselect_b32 s{sB}, 0, 1408\ns_cselect_b32 s{sC}, 0, 2048")
        p(f"v_lshlrev_b32 v0, 4, v7\nv_add_u32 v7, s{sB}, v7")
        p(f"s_mov_b32 s{sD}, 1821\nv_mul_u32_u24 v1, s{sD}, v7\nv_lshrrev_b32 v1, 18, v1")
        p(f"v_mul_u32_u24 v2, 144, v1\nv_sub_u32 v2, v7, v2\nv_mul_u32_u24 v3, 57, v2\nv_lshrrev_b32 v3, 10, v3")
        p(f"v_mul_u32_u24 v4, 18, v3\nv_sub_u32 v4, v2, v4")
        p(f"v_lshrrev_b32 v5, 1, v3\nv_lshl_add_u32 v1, v1, 2, v5\nv_mul_u32_u24 v1, 72, v1")
        p(f"v_and_b32 v3, 1, v3\nv_lshl_add_u32 v3, v4, 1, v3\nv_add_lshl_u32 v1, v1, v3, 2")
        p(f"v_mov_b32 v2, {OOB}\nv_cmp_gt_u32 vcc, s{sC}, v7\nv_cndmask_b32 v1, v1, v2, vcc")
        p(f"s_mov_b32 s{sB}, {STATS}\ns_mov_b32 exec_lo, 0x00010001\ns_mov_b32 exec_hi, 0x00010001")
        p(f"buffer_store_dwordx4 v[84:87], v0, {S4(sWS)}, s{sA} offen sc1", tag='side')
        p(f"buffer_store_dword v86, v1, {S4(sWS)}, s{sB} offen sc1", tag='side')
        p(f"buffer_store_dword v81, v1, {S4(sWS)}, s{sB} offen offset:144 sc1", tag='side')
        p("s_mov_b64 exec, -1")

    def side_wd(self, p):
        L = vLane
        p(f"s_lshl_b32 s{sA}, s{sWave}, 11\ns_add_u32 s{sA}, s{sA}, {L_WDST}")
        p(f"v_lshrrev_b32 v0, 2, v{L}\nv_and_b32 v1, 3, v{L}\nv_lshlrev_b32 v1, 3, v1\nv_lshl_add_u32 v0, v0, 6, v1\nv_add_u32 v0, s{sA}, v0")
        p.wait('wdst')
        for nbl in range(2):
            for t in range(2):
                p(f"ds_read_b64_tr_b16 {V2(16+4*nbl+2*t)}, v0 offset:{t*1024 + nbl*32}")
        for nbl in range(2):
            p(f"s_lshl_b32 s{sA}, s{sO2}, 3\ns_lshl_b32 s{sB}, s{sWave}, 1\ns_add_u32 s{sA}, s{sA}, s{sB}\ns_add_u32 s{sA}, s{sA}, {nbl}")
            p(f"s_mul_i32 s{sB}, s{sA}, 205\ns_lshr_b32 s{sB}, s{sB}, 10\ns_mul_i32 s{sB}, s{sB}, 255\ns_add_u32 s{sA}, s{sA}, s{sB}")
            p(f"s_mul_i32 s{sB}, s{sK2}, 5\ns_add_u32 s{sA}, s{sA}, s{sB}\ns_lshl_b32 s{sA}, s{sA}, 10\ns_add_u32 s{sA}, s{sA}, {WD}")
            p(f"buffer_store_dwordx4 {V4(16+4*nbl)}, v{vL16}, {S4(sWS)}, s{sA} offen sc1", tag='side')

    def ssm_consts(self, p):
        for i in range(100, 106): p(f"v_lshlrev_b32 v{i}, 16, v{i}")
        for i in (0, 1):
            p(f"v_mul_f32 v{104+i}, {LOG2E}, v{104+i}\nv_exp_f32 v{104+i}, v{104+i}")
        for i in (0, 1): p.add(self.bfr(104+i, 104+i))
        p("v_pk_mul_f32 v[106:107], v[104:105], v[100:101]\nv_pk_mul_f32 v[108:109], v[104:105], v[102:103]")
        for i in (0, 1):
            p(f"v_mul_f32 v{106+i}, {LOG2E}, v{106+i}\nv_exp_f32 v{106+i}, v{106+i}")
            p(f"v_mul_f32 v{108+i}, {INV2PI}, v{108+i}\nv_rndne_f32 v110, v{108+i}\nv_sub_f32 v{108+i}, v{108+i}, v110")
            p(f"v_cos_f32 v{112+i}, v{108+i}\nv_sin_f32 v{114+i}, v{108+i}")
        p(f"v_pk_mul_f32 {V2(LAM)}, v[106:107], v[112:113]\nv_pk_mul_f32 {V2(LAM+2)}, v[106:107], v[114:115]")
        p(f"v_pk_mul_f32 v[106:107], v[100:101], v[100:101]\nv_pk_fma_f32 v[106:107], v[102:103], v[102:103], v[106:107]")
        p("v_rcp_f32 v106, v106\nv_rcp_f32 v107, v107")
        p(f"v_add_f32 v112, -1.0, v{LAM}\nv_add_f32 v113, -1.0, v{LAM+1}\nv_mov_b32 v114, v{LAM+2}\nv_mov_b32 v115, v{LAM+3}")
        p("v_add_f32 v106, v106, v106\nv_add_f32 v107, v107, v107")
        p("v_pk_mul_f32 v[100:101], v[100:101], v[106:107]\nv_pk_mul_f32 v[102:103], v[102:103], v[106:107] neg_lo:[1,0] neg_hi:[1,0]")
        p.add(self.cmul(COEF, 112, 100))
        p.add(self.cmul(100, LAM, LAM))
        p.add(self.cmul(104, 100, 100))
        p.add(self.cmul(108, 104, 104))
        p.add(self.cmul(104, 108, 108))
        p.add(self.cmul(L18, 104, 100))
        p.add(self.cmul(L36, L18, L18))
        p.add(self.cmul(100, L36, L36))
        p.add(self.cmul(104, 100, L36))
        p(f"v_cmp_le_u32 {S2(sQ1)}, 16, v{vLane}\nv_cmp_le_u32 {S2(sQ2)}, 32, v{vLane}\nv_cmp_le_u32 {S2(sQ3)}, 48, v{vLane}")
        p.add(self.cone(108))
        p.add(self.csel(F36, 104, 100, sQ1)); p.add(self.csel(F36, F36, L36, sQ2)); p.add(self.csel(F36, F36, 108, sQ3))

    def dma_stage(self, s, ssm):
        buf = (s % 3) * STG; tag = f'st{s}'
        g = []
        for n in range(4):
            pre = [f"s_add_u32 m0, s{sM0X}, {buf}"] if n == 0 else []
            g.append(pre + [I(f"buffer_load_dwordx4 v{vXD+n}, {S4(sX)}, s{sOffX} offen offset:{1024*n} lds", tag)])
        g.append([f"s_mov_b32 m0, s{sM0H + s % 3}", "s_mov_b32 exec_hi, 0",
                  I(f"buffer_load_dwordx4 v{vXD+4}, {S4(sX)}, s{sOffX} offen lds", tag), "s_mov_b32 exec_hi, -1"])
        for m in range(2):
            for n in range(4):
                pre = [f"s_add_u32 m0, s{sM0W}, {buf + m * (4096 if ssm else 16384)}"] if n == 0 else []
                g.append(pre + [I(f"buffer_load_dwordx4 v{vWDm+n}, {S4(sW1 if m else sW0)}, s{sOffW} offen offset:{1024*n} lds", tag)])
        g[-1] = g[-1] + [f"s_add_u32 s{sChunk}, s{sChunk}, 1", f"s_cmp_eq_u32 s{sChunk}, 10", f"s_cselect_b32 s{sChunk}, 0, s{sChunk}",
                         f"s_lshl_b32 s{sOffX}, s{sChunk}, 7", f"s_mul_i32 s{sOffW}, s{sChunk}, {128 if ssm else 196608}"]
        return g

    def xread(self, B):
        h = (B // 9) & 1; b = B % 9
        return f"ds_read_b128 {V4(xr(B))}, v{vXR1 if h else vXR0} offset:{b*2048}"
    def wreads(self, K, ssm):
        h = K & 1; out = []
        for t in range(4):
            d = wb(K & 1, t)
            if ssm:
                out.append(f"ds_read_b128 {V4(d)}, v{vWR1 if h else vWR0} offset:{(t & 1)*4096 + (t >> 1)*2048}")
            else:
                for tt in range(2):
                    out.append(f"ds_read_b64_tr_b16 {V2(d+2*tt)}, v{vWR1 if (t >> 1) else vWR0} offset:{(t & 1)*16384 + (32*h + 4*tt)*256}")
        return out

    def wd_ops(self):
        ops = []
        for i in range(12):
            if i == 0:
                pre = [f"s_mov_b32 s{sK2}, s{sRot2}", f"s_mul_i32 s{sD}, s{sCt}, 52", f"s_mul_i32 s{sC}, s{sWave}, 12", f"s_add_u32 s{sD}, s{sD}, s{sC}",
                       f"s_mul_i32 s{sD}, s{sD}, 5120", f"s_add_u32 s{sD}, s{sD}, {WD}"]
            else:
                pre = [f"s_add_u32 s{sK2}, s{sK2}, 1", f"s_cmp_eq_u32 s{sK2}, 12", f"s_cselect_b32 s{sK2}, 0, s{sK2}"]
            pre += [f"s_mul_i32 s{sO2}, s{sK2}, 5120", f"s_add_u32 s{sO2}, s{sO2}, s{sD}"]
            for nb in range(5):
                a = 20 * i + 4 * nb
                ld = (f"buffer_load_dwordx4 {A4(a)}, v{vL16}, {S4(sWS)}, s{sO2} offen offset:{1024*nb} sc1" if nb < 4 else
                      f"buffer_load_dwordx4 {A4(a)}, v{vL16b}, {S4(sWS)}, s{sO2} offen sc1")
                ops.append((pre if nb == 0 else []) + [ld])
        return ops
    def cslot(self, i):
        i = i % 4
        return (sCsp, 0) if i == 3 else (sCslot, ((i + 1) % 3) * STG)
    def c_ops(self, i):
        ops = []; sg, k = self.cslot(i)
        for j in range(10):
            pre = []
            if j == 0:
                pre = [f"s_add_u32 s{sA}, s{sRotC}, {i}", f"s_cmp_ge_u32 s{sA}, 5", f"s_cselect_b32 s{sB}, 5, 0", f"s_sub_u32 s{sA}, s{sA}, s{sB}",
                       f"s_and_b32 s{sB}, s{sWave}, 1", f"s_mul_i32 s{sB}, s{sB}, 5", f"s_add_u32 s{sA}, s{sA}, s{sB}", f"s_lshl_b32 s98, s{sA}, 7"]
            elif j % 2 == 0:
                pre = [f"s_add_u32 s98, s98, {16*1280}"]
            pre += [f"s_add_u32 m0, s{sg}, {k + (j & ~1) * 1024}"]
            ops.append(pre + [I(f"buffer_load_dwordx4 v{vCD1 if j & 1 else vCD0}, {S4(sT)}, s98 offen offset:{1024*(j & 1)} lds", f'c{i}')])
        return ops

    def poll_check(self, load, cmpc, reg):
        ok = self.lab('ok'); lp = self.lab('spin')
        out = [f"v_cmp_ne_u32 vcc, {cmpc}, v{reg}", f"s_cbranch_vccz {ok}"]
        slow = [f"s_mov_b32 s{sSpin}, 0x10000", f"{lp}:", "s_sleep 2", load, "s_waitcnt vmcnt(0)",
                f"v_cmp_ne_u32 vcc, {cmpc}, v{reg}", f"s_sub_u32 s{sSpin}, s{sSpin}, 1", f"s_cmp_eq_u32 s{sSpin}, 0",
                f"s_cbranch_scc1 {ok}", f"s_cbranch_vccnz {lp}"]
        out += [self.optI(x) for x in slow] + [f"{ok}:"]
        return out
    def optI(self, x):
        i = I(x, opt=True)
        if i.kind == 'vmem': i.kind = 'ctl'; i.wr = set(); i.rd = set()
        return i

    def mainloop(self, p, ssm):
        c = self.c
        mf = []
        for K in range(20):
            for b in range(9):
                B = K * 9 + b
                for t in range(4):
                    a = acc(b, t); w = wb(K & 1, t); x = xr(B)
                    cc = '0' if K == 0 else V4(a)
                    if ssm: mf.append(f"v_mfma_f32_16x16x32_bf16 {V4(a)}, {V4(x)}, {V4(w)}, {cc}")
                    else: mf.append(f"v_mfma_f32_16x16x32_bf16 {V4(a)}, {V4(w)}, {V4(x)}, {cc}")
        F = {}
        def put(B, g, items): F.setdefault(B * 4 + g, []).extend(items if isinstance(items, list) else [items])
        p.wait('st0', 'ones'); p("s_barrier")
        self.stamp(p, 1)
        wr = self.wreads(0, ssm); k = len(wr) // 4
        p.add(wr[:k]); p(self.xread(0)); p.add(wr[k:])
        for B in range(1, 5): p(self.xread(B))
        BB = 5
        pf = self.wd_ops() + self.c_ops(0) + self.c_ops(1)
        self.pf_rest = None
        for s in range(10):
            B0 = s * 18
            for B in range(B0 + 5, B0 + 18): put(B - 5, 0, self.xread(B))
            w1 = self.wreads(2 * s + 1, ssm)
            for i, r in enumerate(w1): put(B0 + 1 + (i * 6) // len(w1), 1 if i % 2 == 0 or ssm else 3, r)
            Bb = B0 + 9 + BB
            tags = [f'st{s+1}', 'ALLLG'] + (['side'] if s == 0 else []) + (['sstat'] if s >= 7 else [])
            bar = [W(*tags), "s_barrier"]
            if s < 9:
                d = STG if (s + 1) % 3 else -2 * STG
                op = "v_add_u32" if d > 0 else "v_subrev_u32"
                upd = [f"{op} v{r}, {abs(d)}, v{r}" for r in (vWR0, vXR0, vWR1, vXR1)]
                put(Bb - 2, 1, upd[:2]); put(Bb - 2, 2, upd[2:])
            put(Bb - 1, 3, bar)
            if s < 9:
                w0 = self.wreads(2 * s + 2, ssm); k = len(w0) // 4
                seq = w0[:k] + [self.xread(B0 + 18)] + w0[k:2*k] + [self.xread(B0 + 19)] + w0[2*k:]
                for i, r in enumerate(seq): put(Bb + i // 4, i % 4, r)
                put(Bb + 2, 3, self.xread(B0 + 20)); put(Bb + 3, 0, self.xread(B0 + 21)); put(Bb + 3, 2, self.xread(B0 + 22))
            if s == 0:
                arr = self.lab('arr')
                put(Bb, 1, [f"s_cmp_lg_u32 s{sWave}, 0", f"s_cbranch_scc1 {arr}"] +
                    [I(x, opt=True) for x in [f"v_mov_b32 v{vTmp}, s2", f"v_mov_b32 v{vPoll}, 1", "s_mov_b64 exec, 1",
                                              f"global_store_byte v{vTmp}, v{vPoll}, {S2(pDbg)} sc1", "s_mov_b64 exec, -1"]] + [f"{arr}:"])
            if s + 2 < 10:
                for i, g in enumerate(self.dma_stage(s + 2, ssm)):
                    if len(g) > 1 and not isinstance(g[0], I) and 'exec' not in ' '.join(x for x in g if not isinstance(x, I)):
                        put(B0 + i, 1, [g[0]]); g = g[1:]
                    if i == 12:
                        put(B0 + i, 2, g[:1]); put(B0 + i, 3, g[1:4]); put(B0 + i + 1, 0, g[4:])
                    else:
                        put(B0 + i, 2, g)
            ps = c['poll_stage']
            ld = f"global_load_dword v{vPoll}, v{vTmp}, {S2(pDbg)} sc1"
            if s == ps:
                put(B0, 3, [f"v_lshlrev_b32 v{vTmp}, 2, v{vLane}"]); put(B0 + 1, 3, [ld])
                put(B0 + 17, 1, self.poll_check(ld, 0x01010101, vPoll))
            if s == ps + 1:
                st = self.stat_loads(ssm)
                for i, g in enumerate(st): put(B0 + i, 3, g)
            n = {ps + 1: 3, ps + 2: 5}.get(s, 0) if s < 8 else 17
            if s > ps:
                lim = 60 if s < 8 else (70 if s == 8 else 80)
                done = 80 - len(pf)
                n = min(n, lim - done)
                for i in range(n):
                    g = pf.pop(0)
                    B = B0 + (13 + i if s < 8 else i)
                    if len(g) > 1: put(B, 1, g[:-1])
                    put(B, 2, g[-1:])
        p.add(interleave(mf, F))
        self.pf_rest = pf

    def stat_loads(self, ssm):
        L = vLane
        if ssm:
            g = [[f"s_lshl_b32 s{sA}, s{sRg}, 2", f"s_add_u32 s{sA}, s{sA}, s{sWave}", f"s_mul_i32 s{sA}, s{sA}, 288"],
                 [f"s_add_u32 s{sA}, s{sA}, {STATS}", f"s_mul_i32 s{sB}, s{sWave}, 288"],
                 [f"v_lshlrev_b32 v{vTmp}, 4, v{CS}", f"s_mov_b32 s{sC}, {CSUM}"],
                 [f"s_add_u32 m0, s{sB}, {L_STAT}", I(f"buffer_load_dwordx4 v{vL16}, {S4(sWS)}, s{sA} offen sc1 lds", 'sstat')],
                 [f"buffer_load_dword v{CS}, v{vTmp}, {S4(sWS)}, s{sC} offen offset:12 sc1"],
                 [f"buffer_load_dword v{CS+1}, v{vTmp}, {S4(sWS)}, s{sC} offen offset:76 sc1", f"s_add_u32 s{sC}, s{sC}, 16384"],
                 [f"buffer_load_dword v{CS+2}, v{vTmp}, {S4(sWS)}, s{sC} offen offset:12 sc1"],
                 [f"buffer_load_dword v{CS+3 if not self.c['stamps'] else 247}, v{vTmp}, {S4(sWS)}, s{sC} offen offset:76 sc1"]]
            return g
        g = [[f"s_mul_i32 s{sA}, s{sRg}, {140*16}", f"v_and_b32 v{vTmp}, 0xff, v{vL16}"]]
        for b in range(9):
            g.append([f"buffer_load_dwordx2 {V2(GST+2*b)}, v{vTmp}, {S4(sWS)}, s{sA} offen offset:{256*b} sc1"])
        return g

    def glu_tail(self, p):
        L = vLane
        pf = self.pf_rest + self.c_ops(2) + self.c_ops(3)
        CSR = 144
        K1 = 160
        T = 172
        self.stamp(p, 2)
        for b in range(9): p(f"v_rcp_f32 v{K1+b}, v{GST+2*b+1}")
        p(f"s_mul_i32 s{sA}, s{sRg}, 140\nv_and_b32 v{T}, 15, v{L}\nv_add_u32 v{T}, s{sA}, v{T}")
        p(f"v_lshrrev_b32 v{T+1}, 4, v{T}\nv_and_b32 v{T}, 15, v{T}\nv_lshlrev_b32 v{T}, 4, v{T}\nv_lshl_add_u32 v{T}, v{T+1}, 10, v{T}")
        p(f"v_lshrrev_b32 v{T+1}, 4, v{L}\nv_lshl_add_u32 v170, v{T+1}, 8, v{T}")
        for b in range(9): p(f"v_mul_f32 v{K1+b}, {NLOG2E}, v{K1+b}")
        for i in range(16): p(f"v_mov_b32_dpp v{CSR+i}, v{acc(8,0)+i} row_newbcast:12 row_mask:0xf bank_mask:0xf")
        for b in range(9):
            ms = V2(GST + 2 * b); k1 = V2(K1 + (b & ~1)); ks = b & 1
            pairs = [(acc(b, 2*pr) + 2*hh, acc(b, 2*pr+1) + 2*hh, CSR + 8*pr + 2*hh, CSR + 8*pr + 4 + 2*hh) for pr in range(2) for hh in range(2)]
            body = []
            for (g, u, cg, cu) in pairs:
                body.append(f"v_pk_fma_f32 {V2(g)}, {V2(cg)}, {ms}, {V2(g)} op_sel_hi:[1,0,1] neg_lo:[0,1,0] neg_hi:[0,1,0]")
            for (g, u, cg, cu) in pairs:
                body.append(f"v_pk_mul_f32 {V2(g)}, {V2(g)}, {k1} op_sel:[0,{ks}] op_sel_hi:[1,{ks}]")
            for (g, u, cg, cu) in pairs:
                body += [f"v_exp_f32 v{g}, v{g}", f"v_exp_f32 v{g+1}, v{g+1}",
                         f"v_pk_fma_f32 {V2(u)}, {V2(cu)}, {ms}, {V2(u)} op_sel_hi:[1,0,1] neg_lo:[0,1,0] neg_hi:[0,1,0]"]
            for (g, u, cg, cu) in pairs:
                body.append(f"v_pk_fma_f32 {V2(g)}, {V2(g)}, {ms}, {ms} op_sel:[0,1,1] op_sel_hi:[1,1,1]")
            for (g, u, cg, cu) in pairs:
                body += [f"v_rcp_f32 v{g}, v{g}", f"v_rcp_f32 v{g+1}, v{g+1}"]
            for (g, u, cg, cu) in pairs:
                body.append(f"v_pk_mul_f32 {V2(u)}, {V2(u)}, {V2(g)}")
            D = T + 4 * (b & 1)
            for i, (g, u, cg, cu) in enumerate(pairs):
                body.append(f"v_cvt_pk_bf16_f32 v{D+i}, v{u}, v{u+1}")
            F = {}
            for pos in (6, 18, 30):
                if pf: F[pos] = pf.pop(0)
            p.add(interleave(body, F))
            if b in (4, 8): p(f"s_add_u32 s{sHo}, s{sHo}, 4096")
            if b == 8: p("s_mov_b32 exec_lo, 0x0fff0fff\ns_mov_b32 exec_hi, 0x0fff0fff")
            p(f"buffer_store_dwordx4 {V4(D)}, v170, {S4(sWS)}, s{sHo} offen offset:{1024*(b & 3)} sc1", tag='hst')
            if b == 8: p("s_mov_b64 exec, -1")
        self.stamp(p, 3)
        self.publish(p, pf)

    def publish(self, p, pf):
        for i in range(10):
            if pf: p.add(pf.pop(0))
        self.final_pre_loads(p)
        p(f"v_mov_b32 v{vTmp}, 0\nv_mov_b32 v{vPoll}, 1")
        p.wait('hst')
        p("s_mov_b64 exec, 1")
        p(f"buffer_store_dword v{vPoll}, v{vTmp}, {S4(sWS)}, s{sFlag} offen sc1")
        p("s_mov_b64 exec, -1")
        self.stamp(p, 4)
        while pf: p.add(pf.pop(0))

    def ssm_tail(self, p):
        L = vLane
        c = self.c
        pf = self.pf_rest + self.c_ops(2)
        self.stamp(p, 2)
        if c['stamps']: csr = lambda t: (V2(CS), t >> 1) if not (t & 1) else ((V2(CS+2), 0) if t == 1 else (V2(246), 1))
        else: csr = lambda t: (V2(CS + 2 * (t & 1)), t >> 1)
        RS = 144
        E = 160
        vS = 176
        p(f"v_lshrrev_b32 v{vS}, 4, v{L}\nv_mul_u32_u24 v{vS}, 288, v{vS}\nv_add_u32 v{vS}, {L_STAT}, v{vS}")
        def rd(b): return [f"ds_read_b128 {V4(RS+8*(b&1))}, v{vS} offset:{16*b}", f"ds_read_b128 {V4(RS+8*(b&1)+4)}, v{vS} offset:{144+16*b}"]
        def step(T, n_re, n_im, e_re, e_im, p_re, p_im):
            sel = f"op_sel:[{T},0,0] op_sel_hi:[{T},1,1]"
            return [f"v_pk_fma_f32 {V2(n_re)}, {V2(LAM)}, {V2(e_re)}, {V2(p_re)} {sel}",
                    f"v_pk_fma_f32 {V2(n_im)}, {V2(LAM)}, {V2(e_im)}, {V2(p_im)} {sel}",
                    f"v_pk_fma_f32 {V2(n_re)}, {V2(LAM+2)}, {V2(e_im)}, {V2(n_re)} {sel} neg_lo:[1,0,0] neg_hi:[1,0,0]",
                    f"v_pk_fma_f32 {V2(n_im)}, {V2(LAM+2)}, {V2(e_re)}, {V2(n_im)} {sel}"]
        p.add(rd(0)); p.add(rd(1))
        st = {}
        for b in range(9):
            body = []
            for hh in range(2):
                rs = RS + 8 * (b & 1) + 2 * hh; u = rs + 4
                for t in range(4):
                    a = acc(b, t) + 2 * hh
                    body.append(f"v_pk_mul_f32 {V2(a)}, {V2(a)}, {V2(rs)}")
                for t in range(4):
                    a = acc(b, t) + 2 * hh; cr, w = csr(t)
                    body.append(f"v_pk_fma_f32 {V2(a)}, {V2(u)}, {cr}, {V2(a)} op_sel:[0,{w},0] op_sel_hi:[1,{w},1] neg_lo:[0,1,0] neg_hi:[0,1,0]")
            if b + 2 < 9: body += rd(b + 2)
            for hh in range(2):
                j = 2 * b + hh
                for T in range(2):
                    pr, pi = acc(b, 2*T) + 2*hh, acc(b, 2*T+1) + 2*hh
                    if j == 0: st[T] = (pr, pi); continue
                    n = E + 8 * (j & 1) + 4 * T
                    body += step(T, n, n + 2, st[T][0], st[T][1], pr, pi); st[T] = (n, n + 2)
            F = {}
            for pos in (4, 20):
                if pf: F[pos] = pf.pop(0)
            p.add(interleave(body, F))
        e = E + 8
        p(f"v_swap_b32 v{e+1}, v{e+4}\nv_swap_b32 v{e+3}, v{e+6}")
        E0 = e; EL = e + 4; Wv = E
        p.add(self.cfma(EL, L18, E0, EL))
        p.add(self.cmul(Wv, F36, EL))
        p(f"v_permlane32_swap_b32 v{Wv}, v{Wv+2}\nv_permlane32_swap_b32 v{Wv+1}, v{Wv+3}")
        p(f"v_and_b32 v{vS}, 15, v{L}\nv_lshrrev_b32 v{vS+1}, 4, v{L}")
        p(f"v_pk_add_f32 {V2(Wv)}, {V2(Wv)}, {V2(Wv+2)}")
        p(f"v_lshlrev_b32 v{vS}, 4, v{vS}\nv_lshl_add_u32 v{vS+2}, v{vS+1}, 2, v{vS}")
        p(f"v_permlane16_swap_b32 v{Wv}, v{Wv+1}\nv_add_f32 v{Wv}, v{Wv}, v{Wv+1}")
        p(f"buffer_store_dword v{Wv}, v{vS+2}, {S4(sWS)}, s{sCo} offen sc1")
        self.stamp(p, 3)
        p("s_barrier")
        pf += self.c_ops(3)
        body = []
        for b in range(9):
            for hh in range(2):
                for T in range(2):
                    pr, pi = acc(b, 2*T) + 2*hh, acc(b, 2*T+1) + 2*hh
                    s2 = f"op_sel:[{T},0] op_sel_hi:[{T},1]"; s3 = f"op_sel:[{T},0,0] op_sel_hi:[{T},1,1]"
                    t1 = 144 + 4 * T
                    body += [f"v_pk_mul_f32 {V2(t1)}, {V2(COEF)}, {V2(pr)} {s2}", f"v_pk_mul_f32 {V2(t1+2)}, {V2(COEF+2)}, {V2(pr)} {s2}",
                             f"v_pk_fma_f32 {V2(pr)}, {V2(COEF+2)}, {V2(pi)}, {V2(t1)} {s3} neg_lo:[1,0,0] neg_hi:[1,0,0]",
                             f"v_pk_fma_f32 {V2(pi)}, {V2(COEF)}, {V2(pi)}, {V2(t1+2)} {s3}"]
        G0, G1, G2, G3 = 144, 148, 152, 156
        for i in range(4):
            body += [f"v_mov_b32 v{G0+i}, v{EL+i}", f"v_mov_b32 v{G1+i}, v{EL+i}"]
        for i in range(4): body.append(f"v_permlane16_swap_b32 v{G0+i}, v{G1+i}")
        for i in range(4):
            body += [f"v_mov_b32 v{G2+i}, v{G0+i}", f"v_mov_b32 v{G3+i}, v{G1+i}"]
        for i in range(4):
            body += [f"v_permlane32_swap_b32 v{G0+i}, v{G2+i}", f"v_permlane32_swap_b32 v{G1+i}, v{G3+i}"]
        body += self.cfma(G1, L36, G0, G1) + self.cfma(G2, L36, G1, G2)
        PRE = 180
        body += [f"v_mov_b32 v{G3+i}, 0" for i in range(4)]
        body += self.csel(G3, G3, G0, sQ1) + self.csel(G3, G3, G1, sQ2) + self.csel(G3, G3, G2, sQ3)
        body += self.cmul(PRE, COEF, G3)
        E0C = 184
        body += self.cmul(E0C, COEF, E0)
        P72, P108, P144, P288, P432 = 144, 148, 152, 156, 160
        G36, F144, L576 = 236, 240, 188
        body += self.cmul(P72, L36, L36) + self.cmul(P108, P72, L36) + self.cmul(P144, P72, P72) + self.cmul(P288, P144, P144)
        body += self.cmul(P432, P288, P144) + self.cmul(L576, P288, P288)
        body += self.cone(164)
        body += self.csel(F144, P432, P288, sQ1) + self.csel(F144, F144, P144, sQ2) + self.csel(F144, F144, 164, sQ3)
        body += self.csel(164, 164, L36, sQ1) + self.csel(164, 164, P72, sQ2) + self.csel(164, 164, P108, sQ3)
        body += self.cmul(G36, COEF, 164)
        AD = 200; ID = 192; CO = 194
        body += [f"s_mul_i32 s{sA}, s{sRg}, 144", f"v_bfe_u32 v164, v{L}, 2, 2", f"v_mul_u32_u24 v165, 36, v164", f"v_and_b32 v166, 3, v{L}",
                 f"v_add3_u32 v165, v165, v166, s{sA}", f"v_lshlrev_b32 v167, 8, v{vS+1}"]
        for j in range(9):
            body += [f"v_and_b32 v168, 15, v165", f"v_lshrrev_b32 v169, 4, v165", f"v_lshl_add_u32 v168, v168, 4, v167",
                     f"v_lshl_add_u32 v{AD+j}, v169, 10, v168", f"v_add_u32 v165, 4, v165"]
        body += [f"v_and_b32 v168, 1, v{L}", f"v_lshlrev_b32 v168, 4, v168", f"v_mov_b32 v169, 0x3f80", f"v_lshlrev_b32 v168, v168, v169",
                 f"v_cmp_eq_u32 vcc, v164, v{vS+1}", f"v_cndmask_b32 v168, 0, v168, vcc", f"v_cmp_gt_u32 vcc, 2, v166",
                 f"v_cndmask_b32 v{ID}, 0, v168, vcc", f"v_sub_u32 v{ID+1}, v168, v{ID}"]
        body += [f"v_mov_b32 v169, {OOB}", f"v_lshl_add_u32 v168, v{vS+1}, 8, v{vS}", f"s_sub_u32 s{sCo}, s{sCo}, 4096"]
        for n in range(4):
            body += [f"s_sub_u32 s{sB}, {16 - 4*n}, s{sRg}", f"v_cmp_gt_i32 vcc, s{sB}, v{vS+1}", f"v_cndmask_b32 v{CO+n}, v168, v169, vcc"]
        F = {}
        pos = 8
        while pf and pos < 140: F[pos] = pf.pop(0); pos += 14
        p.add(interleave(body, F))
        CL = 144
        lp = self.lab('lb'); ok = self.lab('lbok')
        p(f"s_mov_b32 s{sSpin}, 0x10000")
        p(f"{lp}:")
        for n in range(4):
            p(f"buffer_load_dwordx4 {V4(CL+4*n)}, v{CO+n}, {S4(sWS)}, s{sCo} offen offset:{1024*n} sc1")
        p("s_waitcnt vmcnt(0)")
        p(f"v_max3_u32 v164, v{CL}, v{CL+1}, v{CL+2}")
        for i in range(3, 15, 2): p(f"v_max3_u32 v164, v164, v{CL+i}, v{CL+i+1}")
        p(f"v_max_u32 v164, v164, v{CL+15}\nv_cmp_eq_u32 vcc, -1, v164")
        p(f"s_sub_u32 s{sSpin}, s{sSpin}, 1\ns_cmp_eq_u32 s{sSpin}, 0\ns_cbranch_scc1 {ok}\ns_cbranch_vccnz {lp}")
        p(f"{ok}:")
        self.stamp(p, 5)
        for n in range(1, 4): p.add(self.cfma(CL + 4*n, L576, CL + 4*(n-1), CL + 4*n))
        p.add(self.cmul(CL, F144, CL + 12))
        for sw in ("v_permlane32_swap_b32", "v_permlane16_swap_b32"):
            p(f"v_mov_b64 {V2(CL+4)}, {V2(CL)}\nv_mov_b64 {V2(CL+6)}, {V2(CL+2)}")
            for i in range(4): p(f"{sw} v{CL+i}, v{CL+4+i}")
            p(f"v_pk_add_f32 {V2(CL)}, {V2(CL)}, {V2(CL+4)}\nv_pk_add_f32 {V2(CL+2)}, {V2(CL+2)}, {V2(CL+6)}")
        p.add(self.cfma(PRE, G36, CL, PRE))
        p.add(self.cfma(E0C, L18, PRE, E0C))
        p(f"v_swap_b32 v{PRE+1}, v{PRE+4}\nv_swap_b32 v{PRE+3}, v{PRE+6}")
        st = {0: (PRE, PRE + 2), 1: (PRE + 4, PRE + 6)}
        PK = 144; MO = 152; SD = 168
        def dsrc(n, t): return (acc(n, t), acc(n, t) + 2) if n < 9 else (acc(n - 9, t) + 1, acc(n - 9, t) + 3)
        def stageA(j):
            o = []
            for t in range(4):
                ng = '-' if t & 1 else ''
                for k in range(2):
                    a, b_ = dsrc(2*j + k, t)
                    o.append(f"v_cvt_pk_bf16_f32 v{PK+2*t+k}, {ng}v{a}, {ng}v{b_}")
            for t in range(4):
                o.append(f"v_mfma_f32_16x16x16_bf16 {V4(MO+4*t)}, {V2(PK+2*t)}, {V2(ID)}, 0")
            return o
        def stageB(j):
            o = []
            for m in range(2):
                for T in range(2):
                    s_ = MO + 4 * (2*T + m)
                    o += [f"v_cvt_pk_bf16_f32 v{SD+4*m+2*T}, v{s_}, v{s_+1}", f"v_cvt_pk_bf16_f32 v{SD+4*m+2*T+1}, v{s_+2}, v{s_+3}"]
                o.append(I(f"buffer_store_dwordx4 {V4(SD+4*m)}, v{AD+j}, {S4(sWS)}, s{sHo if m == 0 else sC} offen sc1", 'hst'))
            return o
        p(f"s_add_u32 s{sC}, s{sHo}, {20*HS}")
        done = {1: [0], 3: [1], 5: [2], 7: [3], 2: [5], 4: [6], 6: [7], 8: [4, 8]}
        pend = None
        for b in range(9):
            for hh in range(2):
                for T in range(2):
                    pr, pi = acc(b, 2*T) + 2*hh, acc(b, 2*T+1) + 2*hh
                    p.add(step(T, pr, pi, st[T][0], st[T][1], pr, pi)); st[T] = (pr, pi)
            for j in done.get(b, []):
                if pend is not None: p.add(stageB(pend))
                p.add(stageA(j)); pend = j
        p.add(stageB(pend))
        self.stamp(p, 6)
        self.publish(p, pf)

    def final_pre_loads(self, p):
        L = vLane
        OO = 204
        p(f"s_lshl_b32 s{sA}, s{sRt}, 6\ns_lshl_b32 s{sB}, s{sWave}, 4\ns_add_u32 s{sA}, s{sA}, s{sB}\ns_mul_i32 s{sB}, s{sCt}, 160\ns_mov_b32 s{sC}, 1280")
        for n in range(5):
            p(f"v_add_u32 v0, {64*n}, v{L}\nv_mul_u32_u24 v1, 205, v0\nv_lshrrev_b32 v1, 12, v1\nv_mul_u32_u24 v2, 20, v1\nv_sub_u32 v2, v0, v2")
            p(f"v_add_u32 v1, s{sA}, v1\nv_lshl_add_u32 v{4+n}, v2, 3, s{sB}\nv_mad_u32_u24 v{OO+n}, v1, s{sC}, v{4+n}\nv_lshlrev_b32 v{10+n}, 4, v1")
        for n in range(5):
            p(f"buffer_load_dwordx2 {V2(184+2*n)}, v{OO+n}, {S4(sX)}, 0 offen")
            p(f"global_load_dwordx2 {V2(16+2*n)}, v{4+n}, {S2(pDsk)}")
            p(f"buffer_load_dwordx4 {V4(28+4*n)}, v{10+n}, {S4(sWS)}, 0 offen sc1")
    def final_pre_compute(self, p):
        OO = 204
        for n in range(5):
            x = 184 + 2*n; d = 16 + 2*n; s_ = 28 + 4*n
            p(f"v_lshlrev_b32 v0, 16, v{x}\nv_and_b32 v1, 0xffff0000, v{x}\nv_lshlrev_b32 v2, 16, v{x+1}\nv_and_b32 v3, 0xffff0000, v{x+1}")
            p(f"v_lshlrev_b32 v4, 16, v{d}\nv_and_b32 v5, 0xffff0000, v{d}\nv_lshlrev_b32 v6, 16, v{d+1}\nv_and_b32 v7, 0xffff0000, v{d+1}")
            def rnd():
                p("v_cvt_pk_bf16_f32 v8, v0, v1\nv_cvt_pk_bf16_f32 v9, v2, v3")
                p("v_lshlrev_b32 v0, 16, v8\nv_and_b32 v1, 0xffff0000, v8\nv_lshlrev_b32 v2, 16, v9\nv_and_b32 v3, 0xffff0000, v9")
            for k in (0, 2): p(f"v_pk_add_f32 {V2(k)}, {V2(k)}, {V2(s_)} op_sel_hi:[1,0] neg_lo:[0,1] neg_hi:[0,1]")
            rnd()
            for k in (0, 2): p(f"v_pk_mul_f32 {V2(k)}, {V2(k)}, {V2(s_+2)} op_sel_hi:[1,0]")
            rnd()
            for k in (0, 2): p(f"v_pk_mul_f32 {V2(k)}, {V2(k)}, {V2(4+k)}")
            p(f"v_cvt_pk_bf16_f32 v{194+2*n}, v0, v1\nv_cvt_pk_bf16_f32 v{195+2*n}, v2, v3\nv_lshlrev_b32 v{OO+n}, 1, v{OO+n}")

    def flag_offsets(self, p, reg, div, nper, first_sgpr_expr, nl, base):
        m = {140: 1873, 144: 1821}[div]
        p(f"s_lshl_b32 s{sA}, s{sRt}, 6\ns_add_u32 s{sB}, s{sA}, 63\ns_mul_i32 s{sA}, s{sA}, {m}\ns_lshr_b32 s{sA}, s{sA}, 18\ns_mul_i32 s{sB}, s{sB}, {m}\ns_lshr_b32 s{sB}, s{sB}, 18")
        p(f"s_mul_i32 s{sA}, s{sA}, {nper}\ns_mul_i32 s{sB}, s{sB}, {nper}\ns_sub_u32 s{sB}, s{sB}, {nl}")
        p(first_sgpr_expr)
        p(f"v_min_u32 v0, {2*nl-1}, v{vLane}\nv_mov_b32 v1, s{sA}\nv_mov_b32 v2, s{sB}\nv_cmp_gt_u32 vcc, {nl}, v0\nv_cndmask_b32 v1, v2, v1, vcc")
        p(f"v_add3_u32 v0, v0, v1, s{sC}\nv_lshlrev_b32 v0, 6, v0\nv_add_u32 v{reg}, {base}, v0")

    def phase2(self, p):
        L = vLane
        AR = 80; NA = 4; C0 = 144; OO = 204
        vFG, vFS, vCR0, vCR1 = 216, 217, 218, 219
        self.final_pre_compute(p)
        self.flag_offsets(p, vFG, 140, 48, f"s_mul_i32 s{sC}, s{sWave}, 12", 12, FLAGG)
        self.flag_offsets(p, vFS, 144, 20, f"s_and_b32 s{sC}, s{sWave}, 1\ns_mul_i32 s{sC}, s{sC}, 10", 10, FLAGS)
        p(f"v_and_b32 v0, 15, v{L}\nv_lshrrev_b32 v1, 4, v{L}\nv_lshrrev_b32 v2, 1, v0\nv_xor_b32 v2, v2, v1\nv_lshlrev_b32 v2, 4, v2")
        p(f"v_lshl_add_u32 v220, v0, 7, v2")
        def cbase(i):
            sg, k = self.cslot(i)
            return [f"s_add_u32 s{sA}, s{sg}, {k}", f"v_add_u32 v{vCR0}, s{sA}, v220", f"v_xor_b32 v{vCR1}, 64, v{vCR0}"]
        p.add(cbase(0)); p.wait('c0')
        for h in range(2):
            for nb in range(5):
                p(f"ds_read_b128 {V4(C0+20*h+4*nb)}, v{vCR1 if h else vCR0} offset:{2048*nb}", tag='c0r')
        p.wait('c0r')
        for g in self.c_ops(4): p.add(g)
        self.stamp(p, 7)
        ldg = f"buffer_load_dword v{vPoll}, v{vFG}, {S4(sWS)}, 0 offen sc1"
        lds_ = f"buffer_load_dword v{vPoll}, v{vFS}, {S4(sWS)}, 0 offen sc1"
        p(ldg); p.add(self.poll_check(ldg, 1, vPoll))
        self.stamp(p, 8)
        def aload(i):
            if i == 0:
                pre = [f"s_mov_b32 s{sK2}, s{sRot2}", f"s_mul_i32 s{sD}, s{sWave}, {12*HS}", f"s_lshl_b32 s{sC}, s{sRt}, 12",
                       f"s_add_u32 s{sD}, s{sD}, s{sC}", f"s_add_u32 s{sD}, s{sD}, {H}"]
            elif i == 12:
                pre = [f"s_lshl_b32 s{sK2}, s{sRotC}, 1", f"s_mul_i32 s{sD}, s{sWave}, {10*HS}", f"s_lshl_b32 s{sC}, s{sRt}, 12",
                       f"s_add_u32 s{sD}, s{sD}, s{sC}", f"s_add_u32 s{sD}, s{sD}, {H + 48*HS}"]
            else:
                pre = [f"s_add_u32 s{sK2}, s{sK2}, 1", f"s_cmp_eq_u32 s{sK2}, {12 if i < 12 else 10}", f"s_cselect_b32 s{sK2}, 0, s{sK2}"]
            pre += [f"s_mul_i32 s{sO2}, s{sK2}, {HS}", f"s_add_u32 s{sO2}, s{sO2}, s{sD}"]
            lds = [f"buffer_load_dwordx4 {V4(AR+16*(i % NA)+4*bb)}, v{vL16}, {S4(sWS)}, s{sO2} offen offset:{1024*bb} sc1" for bb in range(4)]
            return pre, lds
        for i in range(NA - 1):
            pre, lds = aload(i); p.add(pre); p.add(lds)
        CW = 80
        mf = []; F = {}
        def put(i, g, items): F.setdefault(i * 20 + g, []).extend(items)
        for i in range(22):
            for bb in range(4):
                for nb in range(5):
                    a = 4 * (bb * 5 + nb); x = V4(AR + 16 * (i % NA) + 4 * bb)
                    if i < 12:
                        w = A4(20 * i + 4 * nb); d = V4(a)
                    else:
                        y = i - 12
                        w = V4(C0 + 20 * y + 4 * nb) if y < 2 else A4(CW + 20 * (y & 1) + 4 * nb); d = A4(a)
                    cc = '0' if i in (0, 12) else d
                    mf.append(f"v_mfma_f32_16x16x32_bf16 {d}, {w}, {x}, {cc}")
            j = i + NA - 1
            if j < 22:
                pre, lds = aload(j)
                if j == 12: put(i, 0, self.poll_check(lds_, 1, vPoll))
                put(i, 0, pre[:3]); put(i, 1, pre[3:])
                for bb in range(4): put(i, 2 + 5 * bb, [lds[bb]])
            if j == 10: put(i, 19, [lds_])
            y = i + 1 - 12
            if 2 <= y < 10:
                ch = y >> 1; h = y & 1
                if h == 0: put(i, 3, cbase(ch) + [W(f'c{ch}')])
                for nb in range(5):
                    put(i, 4 + 2 * nb, [f"ds_read_b128 {A4(CW+20*(y & 1)+4*nb)}, v{vCR1 if h else vCR0} offset:{2048*nb}"])
        p.add(interleave(mf, F))
        self.stamp(p, 9)
        WA = 80
        RA = 84
        p(f"v_and_b32 v90, 15, v{L}\nv_lshrrev_b32 v91, 4, v{L}\nv_add_u32 v90, v90, v91\ns_mul_i32 s{sA}, s{sWave}, 5120\nv_lshl_add_u32 v91, v91, 8, s{sA}")
        for k in range(4):
            p(f"v_add_u32 v92, {4*k}, v90\nv_and_b32 v92, 15, v92\nv_lshl_add_u32 v{WA+k}, v92, 4, v91")
        p(f"s_mul_i32 s{sA}, s{sWave}, 40960")
        for n in range(5):
            p(f"v_add_u32 v90, {64*n}, v{L}\nv_mul_u32_u24 v91, 205, v90\nv_lshrrev_b32 v91, 12, v91\nv_mul_u32_u24 v92, 20, v91\nv_sub_u32 v92, v90, v92")
            p(f"v_add_u32 v91, v91, v92\nv_and_b32 v91, 15, v91\nv_lshlrev_b32 v91, 4, v91\nv_lshl_add_u32 v91, v92, 8, v91\nv_add_u32 v{RA+n}, s{sA}, v91")
        p.wait('ALLLG'); p("s_barrier")
        for bb in range(4):
            if bb:
                for k in range(4): p(f"v_add_u32 v{WA+k}, 40960, v{WA+k}")
            for ac in range(2):
                for nb in range(5):
                    a = 4 * (bb * 5 + nb)
                    p(f"ds_write_b128 v{WA + (nb & 3)}, {A4(a) if ac else V4(a)} offset:{ac*20480 + nb*1024}")
        p.wait('ALLLG'); p("s_barrier")
        self.stamp(p, 10)
        def rdn(n):
            for ac in range(2):
                for s_ in range(4):
                    p(f"ds_read_b128 {V4(32*(n & 1) + 16*ac + 4*s_)}, v{RA+n} offset:{ac*20480 + s_*5120}")
        rdn(0)
        for n in range(5):
            R = 32 * (n & 1); T = 64
            for ac in range(2):
                r = R + 16 * ac
                for k in (0, 2):
                    p(f"v_pk_add_f32 {V2(r+k)}, {V2(r+k)}, {V2(r+4+k)}\nv_pk_add_f32 {V2(r+8+k)}, {V2(r+8+k)}, {V2(r+12+k)}")
                if ac == 0 and n < 4: rdn(n + 1)
                for k in (0, 2):
                    p(f"v_pk_add_f32 {V2(r+k)}, {V2(r+k)}, {V2(r+8+k)}")
            d = R; y = R + 16
            for k in range(4): p(f"v_mul_f32 v{T+k}, {NLOG2E}, v{d+k}")
            for k in range(4): p(f"v_exp_f32 v{T+k}, v{T+k}")
            x = 184 + 2*n; t = 194 + 2*n
            p(f"v_lshlrev_b32 v{T+4}, 16, v{t}\nv_and_b32 v{T+5}, 0xffff0000, v{t}\nv_lshlrev_b32 v{T+6}, 16, v{t+1}\nv_and_b32 v{T+7}, 0xffff0000, v{t+1}")
            for k in (0, 2): p(f"v_pk_add_f32 {V2(T+k)}, {V2(T+k)}, 1.0 op_sel_hi:[1,0]")
            for k in (0, 2): p(f"v_pk_add_f32 {V2(y+k)}, {V2(y+k)}, {V2(T+4+k)}")
            for k in range(4): p(f"v_rcp_f32 v{T+k}, v{T+k}")
            O = 72 + 4 * (n & 1)
            p(f"v_lshlrev_b32 v{O}, 16, v{x}\nv_and_b32 v{O+1}, 0xffff0000, v{x}\nv_lshlrev_b32 v{O+2}, 16, v{x+1}\nv_and_b32 v{O+3}, 0xffff0000, v{x+1}")
            for k in (0, 2): p(f"v_pk_mul_f32 {V2(d+k)}, {V2(d+k)}, {V2(T+k)}")
            for k in (0, 2): p(f"v_pk_fma_f32 {V2(O+k)}, {V2(y+k)}, {V2(d+k)}, {V2(O+k)}")
            p(f"buffer_store_dwordx4 {V4(O)}, v{OO+n}, {S4(sU)}, 0 offen")
        self.stamp(p, 11)
        self.stamp_flush(p)
        p("s_endpgm")

    def build(self, code_bytes):
        paths = []
        for ssm in (0, 1):
            p = Prog()
            self.entry(p, code_bytes)
            n0 = 'MARK'
            p("L_mark:")
            self.prologue(p, ssm)
            self.mainloop(p, ssm)
            (self.ssm_tail if ssm else self.glu_tail)(p)
            self.phase2(p)
            Lf = finalize(p)
            k = [i for i, x in enumerate(Lf) if x.text == 'L_mark:'][0]
            paths.append((Lf[:k], Lf[k+1:]))
        assert text_of(paths[0][0]) == text_of(paths[1][0])
        body = text_of(paths[0][0]) + text_of(paths[0][1]) + "L_ssm:\n" + text_of(paths[1][1]) + "L_end:\n    s_endpgm\n"
        return body

HEADER = open(os.path.join(os.path.dirname(os.path.abspath(__file__)), "..", "cdna_kernels", NAME + ".s.ref")).read().split("; Override launch")[0] \
    if os.path.exists(os.path.join(os.path.dirname(os.path.abspath(__file__)), "..", "cdna_kernels", NAME + ".s.ref")) else ""

def make(cfg, code_bytes=61440):
    body = Gen(cfg).build(code_bytes)
    return HEADER + f"""; One persistent launch: 256 workgroups x 4 waves, one per CU (generated by gen/k1.py).
; @launch grid=(256,1,1) block=(256,1,1) lds=163840
.amdgcn_target "amdgcn-amd-amdhsa--gfx950"
.text
.globl {KERN}
.p2align 8
.type {KERN},@function
{KERN}:
{body}L_code_end:
.section .rodata,"a"
.p2align 6
.amdhsa_kernel {KERN}
  .amdhsa_next_free_vgpr 512
  .amdhsa_next_free_sgpr 102
  .amdhsa_accum_offset 256
  .amdhsa_group_segment_fixed_size 0
  .amdhsa_kernarg_size 128
  .amdhsa_user_sgpr_count 2
  .amdhsa_user_sgpr_kernarg_segment_ptr 1
  .amdhsa_system_sgpr_workgroup_id_x 1
  .amdhsa_float_denorm_mode_32 3
.end_amdhsa_kernel
"""

def code_size(txt):
    import subprocess, tempfile
    with tempfile.TemporaryDirectory() as d:
        open(d + "/k.s", "w").write(txt)
        r = subprocess.run(["clang", "-x", "assembler", "-target", "amdgcn-amd-amdhsa", "-mcpu=gfx950", "-c", d + "/k.s", "-o", d + "/k.o"], capture_output=True, text=True)
        assert r.returncode == 0, r.stderr[:3000]
        r = subprocess.run(["llvm-readelf", "-S", d + "/k.o"], capture_output=True, text=True)
        for ln in r.stdout.split('\n'):
            if ' .text' in ln:
                f = ln.split(']')[1].split()
                return int(f[4], 16)

if __name__ == "__main__":
    cfg = dict(CFG)
    out = None
    for a in sys.argv[1:]:
        if '=' in a:
            k, v = a.split('='); cfg[k] = int(v)
        else: out = a
    n = code_size(make(cfg))
    txt = make(cfg, n)
    n2 = code_size(txt)
    assert abs(n2 - n) <= 64, (n, n2)
    open(out or "k.s", "w").write(txt)
    print("code bytes", n2, "source bytes", len(txt))
```

```python
import sys, os
sys.path.insert(0, os.path.dirname(os.path.abspath(__file__)))
from fw import *

NAME = "recurrent_scan__ssm_conv_s5__glu_gated_glu__prompt"
KERN = NAME + "_kernel"

CFG = dict(
    rot=1,
    poll_stage=5,
    stamps=0,
    rot2=1,
    endspin=0,
    probe=-1,
)

STATG = 0
CSUM = STATG + 2304 * 16
STATS = CSUM + 2048 * 16
CARRY = STATS + 18 * 1152 + 128 - ((18 * 1152) % 128)
CARRY = (CARRY + 255) // 256 * 256
FLAGG = CARRY + 320 * 256
FLAGS = FLAGG + 16 * 48 * 64
WD = (FLAGS + 16 * 20 * 64 + 4095) // 4096 * 4096
HS = 140 * 1024
H = WD + 8 * 52 * 5 * 1024
WS_END = H + 88 * HS
STAMP = WS_END
WS_SIZE = WS_END + 1024 * 256
OOB = 0x7ff00000

STG = 51200; XIMG = 18432
SPARE = 3 * STG
L_WDST = SPARE
L_DUMMY = SPARE + 8192
L_STAT = SPARE

pX, pLre, pLim, pBre, pBim, pCre, pCim, pLdt = 4, 6, 8, 10, 12, 14, 16, 18
pDsk, pBx, pWg, pWu, pWd, pOut, pDbg, pWs = 20, 22, 24, 26, 28, 30, 32, 34
sX, sW0, sW1, sWS, sT, sU = 36, 40, 44, 48, 52, 56
sWave, sCg, sRg, sRt, sCt = 60, 61, 62, 63, 64
sOffX, sOffW, sChunk, sM0X, sM0W = 65, 66, 67, 68, 69
sM0H = 70
sA, sB, sC, sD = 73, 74, 75, 76
sK2, sO2, sCo, sSpin = 77, 78, 79, 80
sCslot = 81
sCsp = 82
sMask = 84
sQ1, sQ2, sQ3 = 86, 88, 90
sSt = 92
sHo = 94
sFlag = 95
sRot2 = 96
sRotC = 97

def S4(r): return f"s[{r}:{r+3}]"
def S2(r): return f"s[{r}:{r+1}]"
def V4(r): return f"v[{r}:{r+3}]"
def V2(r): return f"v[{r}:{r+1}]"
def A4(r): return f"a[{r}:{r+3}]"

def acc(b, t): return 16 * b + 4 * t
XR = 144; NXR = 6
def xr(B): return XR + 4 * (B % NXR)
def wb(par, t): return 168 + 16 * par + 4 * t
vXD = 200; vWDm = 205
vXR0, vXR1, vWR0, vWR1 = 209, 210, 211, 212
vL16, vL16b, vLane = 213, 214, 215
LAM, COEF, L18, L36, F36, CS = 216, 220, 224, 228, 232, 248
GST = 216
vPoll, vCD0, vCD1, vTmp = 252, 253, 254, 255

LOG2E = 0x3fb8aa3b
NLOG2E = 0xbfb8aa3b
INV2PI = 0x3e22f983
INV640 = 0x3acccccd
EPS = 0x3727c5ac

class Gen:
    def __init__(self, cfg):
        self.c = cfg
        self.nlab = 0
        self.nstamp = 0

    def lab(self, s):
        self.nlab += 1
        return f"L_{s}_{self.nlab}"

    def stamp(self, p, idx):
        if self.c['probe'] == idx:
            p(f"s_memrealtime {S2(sSt)}\ns_waitcnt lgkmcnt(0)\ns_sub_u32 s101, s{sSt}, s100")
        if not self.c['stamps']: return
        p(f"s_memrealtime {S2(sSt)}")
        p("s_waitcnt lgkmcnt(0)")
        p(f"v_writelane_b32 v251, s{sSt}, {idx}")

    def stamp_flush(self, p):
        if not self.c['stamps']: return
        p(f"s_lshl_b32 s{sA}, s2, 2\ns_add_u32 s{sA}, s{sA}, s{sWave}\ns_lshl_b32 s{sA}, s{sA}, 8\ns_add_u32 s{sA}, s{sA}, {STAMP}")
        p(f"v_writelane_b32 v251, s100, 39")
        p(f"v_lshlrev_b32 v250, 2, v{vLane}")
        p(f"buffer_store_dword v251, v250, {S4(sWS)}, s{sA} offen")

    def cmul(self, d, a, b):
        return [f"v_pk_mul_f32 {V2(d)}, {V2(a)}, {V2(b)}",
                f"v_pk_mul_f32 {V2(d+2)}, {V2(a)}, {V2(b+2)}",
                f"v_pk_fma_f32 {V2(d)}, {V2(a+2)}, {V2(b+2)}, {V2(d)} neg_lo:[1,0,0] neg_hi:[1,0,0]",
                f"v_pk_fma_f32 {V2(d+2)}, {V2(a+2)}, {V2(b)}, {V2(d+2)}"]
    def cfma(self, d, a, b, c):
        return [f"v_pk_fma_f32 {V2(d)}, {V2(a)}, {V2(b)}, {V2(c)}",
                f"v_pk_fma_f32 {V2(d+2)}, {V2(a)}, {V2(b+2)}, {V2(c+2)}",
                f"v_pk_fma_f32 {V2(d)}, {V2(a+2)}, {V2(b+2)}, {V2(d)} neg_lo:[1,0,0] neg_hi:[1,0,0]",
                f"v_pk_fma_f32 {V2(d+2)}, {V2(a+2)}, {V2(b)}, {V2(d+2)}"]
    def csel(self, d, f, t, mask):
        return [f"v_cndmask_b32 v{d+i}, v{f+i}, v{t+i}, {S2(mask)}" for i in range(4)]
    def cone(self, d):
        return [f"v_mov_b32 v{d}, 1.0", f"v_mov_b32 v{d+1}, 1.0", f"v_mov_b32 v{d+2}, 0", f"v_mov_b32 v{d+3}, 0"]
    def bfr(self, d, a):
        return [f"v_cvt_pk_bf16_f32 v{d}, v{a}, v{a}", f"v_lshlrev_b32 v{d}, 16, v{d}"]

    def entry(self, p, code_bytes):
        if self.c['endspin'] or self.c['stamps']: p("s_memrealtime s[100:101]")
        p(f"s_cmp_ge_u32 s2, 256\ns_cbranch_scc1 L_end")
        p(f"s_load_dwordx16 s[4:19], s[0:1], 0\ns_load_dwordx16 s[20:35], s[0:1], 64")
        per = (code_bytes + 32 * 128 - 1) // (32 * 128)
        assert per <= 64
        p(f"s_getpc_b64 {S2(sMask)}")
        p(f"s_lshr_b32 s{sA}, s2, 3\ns_mul_i32 s{sA}, s{sA}, {per*128}")
        p(f"v_min_u32 v1, {per-1}, v0\nv_lshlrev_b32 v1, 7, v1\nv_add_u32 v1, s{sA}, v1")
        p(f"v_min_u32 v1, {max(0, code_bytes - 256)}, v1")
        p(f"v_lshrrev_b32 v2, 6, v0\nv_and_b32 v{vLane}, 63, v0")
        p(f"global_load_dword v{vTmp}, v1, {S2(sMask)}")
        p(f"v_readfirstlane_b32 s{sWave}, v2")
        if self.c['stamps']: p("v_mov_b32 v251, 0")
        p(f"s_and_b32 s{sA}, s2, 7\ns_lshr_b32 s{sB}, s2, 3\ns_and_b32 s{sCt}, s{sB}, 7\ns_lshr_b32 s{sC}, s{sB}, 3\ns_lshl_b32 s{sRt}, s{sA}, 2\ns_add_u32 s{sRt}, s{sRt}, s{sC}")
        p(f"s_lshl_b32 s{sA}, s{sA}, 5\ns_add_u32 s{sA}, s{sA}, s{sB}")
        p(f"s_sub_u32 s{sB}, s{sA}, 136\ns_mul_i32 s{sC}, s{sB}, 147\ns_lshr_b32 s{sC}, s{sC}, 10")
        p(f"s_mul_i32 s{sD}, s{sC}, 7\ns_sub_u32 s{sB}, s{sB}, s{sD}\ns_add_u32 s{sB}, s{sB}, 8\ns_sub_u32 s{sC}, 16, s{sC}")
        p(f"s_lshr_b32 s{sCg}, s{sA}, 3\ns_and_b32 s{sRg}, s{sA}, 7")
        p(f"s_cmp_ge_u32 s{sA}, 136\ns_cselect_b32 s{sCg}, s{sC}, s{sCg}\ns_cselect_b32 s{sRg}, s{sB}, s{sRg}")
        p(f"s_cmp_eq_u32 s{sA}, 255\ns_cselect_b32 s{sCg}, 0, s{sCg}\ns_cselect_b32 s{sRg}, 15, s{sRg}")
        if self.c['rot']:
            p(f"s_mul_i32 s{sChunk}, s{sCg}, 3\ns_add_u32 s{sChunk}, s{sChunk}, s{sRg}")
            p(f"s_mul_i32 s{sA}, s{sChunk}, 205\ns_lshr_b32 s{sA}, s{sA}, 11\ns_mul_i32 s{sA}, s{sA}, 10\ns_sub_u32 s{sChunk}, s{sChunk}, s{sA}")
        else:
            p(f"s_mov_b32 s{sChunk}, 0")
        p(f"v_lshlrev_b32 v{vL16}, 4, v{vLane}\nv_add_u32 v{vL16b}, 0x1000, v{vL16}")
        p(f"s_and_b32 s{sA}, s{sCg}, 3\ns_lshr_b32 s{sB}, s{sCg}, 2\ns_cmp_eq_u32 s{sCg}, 16\ns_cselect_b32 s{sA}, 3, s{sA}")
        p(f"s_sub_u32 s{sC}, s{sCg}, s{sB}\ns_cmp_eq_u32 s{sA}, 3\ns_cselect_b32 s{sCg}, s{sB}, s{sC}")
        p("s_cbranch_scc1 L_ssm")

    def prologue(self, p, ssm):
        L = vLane
        t0, t1, t2, t3, t4, t5 = 0, 1, 2, 3, 4, 5
        p(f"s_mul_i32 s{sA}, s{sWave}, 36\ns_mul_i32 s{sB}, s{sRg}, {144 if ssm else 140}\ns_mov_b32 s{sD}, 1280")
        p(f"v_lshrrev_b32 v{t0}, 3, v{L}\nv_and_b32 v{t1}, 7, v{L}\nv_add_u32 v{t0}, s{sA}, v{t0}")
        for n in range(5):
            if n: p(f"v_add_u32 v{t0}, 8, v{t0}")
            p(f"v_bfe_u32 v{t2}, v{t0}, 1, 3\nv_xor_b32 v{t2}, v{t2}, v{t1}")
            if ssm:
                p(f"v_bfe_u32 v{t3}, v{t0}, 2, 2\nv_mul_u32_u24 v{t3}, 36, v{t3}")
                p(f"v_and_b32 v{t4}, 1, v{t0}\nv_mad_u32_u24 v{t3}, v{t4}, 18, v{t3}")
                p(f"v_lshrrev_b32 v{t4}, 4, v{t0}\nv_lshl_add_u32 v{t3}, v{t4}, 1, v{t3}")
                p(f"v_bfe_u32 v{t4}, v{t0}, 1, 1\nv_add3_u32 v{t3}, v{t3}, v{t4}, s{sB}")
            else:
                p(f"v_add_u32 v{t3}, s{sB}, v{t0}")
            p(f"v_lshlrev_b32 v{t2}, 4, v{t2}\nv_mad_u32_u24 v{vXD+n}, v{t3}, s{sD}, v{t2}")
            if 0 < n < 4: p(f"v_subrev_u32 v{vXD+n}, {1024*n}, v{vXD+n}")
        if ssm:
            p(f"s_lshl_b32 s{sA}, s{sCg}, 2\ns_add_u32 s{sA}, s{sA}, s{sWave}\ns_lshl_b32 s{sA}, s{sA}, 5")
            p(f"v_lshrrev_b32 v{t0}, 5, v{L}\nv_lshlrev_b32 v{t0}, 3, v{t0}\nv_bfe_u32 v{t2}, v{L}, 3, 2\nv_add3_u32 v{t0}, v{t0}, v{t2}, s{sA}")
            p(f"v_lshrrev_b32 v{t2}, 4, v{L}\nv_xor_b32 v{t2}, v{t2}, v{t1}\nv_lshlrev_b32 v{t2}, 4, v{t2}")
            p(f"v_mad_u32_u24 v{vWDm}, v{t0}, s{sD}, v{t2}")
            p(f"v_xor_b32 v{t2}, 64, v{vWDm}\nv_add_u32 v{vWDm+1}, {16*1280-1024}, v{t2}")
            p(f"v_add_u32 v{vWDm+2}, {4*1280-2048}, v{vWDm}\nv_add_u32 v{vWDm+3}, {4*1280-2048}, v{vWDm+1}")
            p(f"s_mul_i32 s{sM0W}, s{sWave}, 8192")
        else:
            p(f"s_mul_i32 s{sA}, s{sWave}, {16*3072}\ns_lshl_b32 s{sB}, s{sCg}, 8\ns_add_u32 s{sA}, s{sA}, s{sB}\ns_mov_b32 s{sC}, 3072")
            p(f"v_lshrrev_b32 v{t0}, 4, v{L}\nv_and_b32 v{t2}, 15, v{L}\nv_lshlrev_b32 v{t3}, 1, v{t0}\nv_xor_b32 v{t2}, v{t2}, v{t3}\nv_lshlrev_b32 v{t2}, 4, v{t2}")
            p(f"v_mad_u32_u24 v{t2}, v{t0}, s{sC}, v{t2}\nv_add_u32 v{vWDm}, s{sA}, v{t2}")
            p(f"v_add_u32 v{vWDm+1}, {4*3072-1024}, v{vWDm}")
            p(f"v_xor_b32 v{t2}, 128, v{vWDm}\nv_add_u32 v{vWDm+2}, {8*3072-2048}, v{t2}\nv_add_u32 v{vWDm+3}, {12*3072-3072}, v{t2}")
            p(f"s_mul_i32 s{sM0W}, s{sWave}, 4096")
        p(f"s_add_u32 s{sM0W}, s{sM0W}, {XIMG}\ns_mul_i32 s{sM0X}, s{sWave}, {36*128}")
        for i in range(3):
            p(f"s_add_u32 s{sM0H+i}, s{sM0X}, {i*STG + 4096}")
        if not ssm:
            p(f"s_cmp_eq_u32 s{sWave}, 3")
            for i in range(3): p(f"s_cselect_b32 s{sM0H+i}, {L_DUMMY}, s{sM0H+i}")
        p(f"s_lshl_b32 s{sOffX}, s{sChunk}, 7")
        p(f"s_mul_i32 s{sOffW}, s{sChunk}, {128 if ssm else 196608}")
        p(f"s_lshl_b32 s{sA}, s2, 3\ns_lshl_b32 s{sB}, s{sWave}, 2\ns_add_u32 s{sA}, s{sA}, s{sB}\ns_lshl_b32 s{sB}, s2, 2")
        p(f"s_cmp_ge_u32 s{sWave}, 2\ns_cselect_b32 s{sA}, s{sB}, s{sA}")
        p(f"v_lshrrev_b32 v7, 4, v{L}\nv_add_u32 v7, s{sA}, v7\nv_and_b32 v{t0}, 15, v{L}\nv_lshlrev_b32 v{t0}, 4, v{t0}\nv_mad_u32_u24 v6, v7, s{sD}, v{t0}")
        p(f"s_mul_i32 s{sK2}, s2, 205\ns_lshr_b32 s{sK2}, s{sK2}, 10\ns_mul_i32 s{sB}, s{sK2}, 5\ns_sub_u32 s{sO2}, s2, s{sB}")
        p(f"s_mul_i32 s{sA}, s{sK2}, {32*1280}\ns_lshl_b32 s{sB}, s{sO2}, 8\ns_add_u32 s{sA}, s{sA}, s{sB}\ns_lshl_b32 s{sB}, s{sWave}, 6\ns_add_u32 s{sA}, s{sA}, s{sB}")
        p(f"v_lshrrev_b32 v{t0}, 2, v{L}\nv_and_b32 v{t2}, 3, v{L}\nv_lshlrev_b32 v{t2}, 4, v{t2}\nv_mad_u32_u24 v8, v{t0}, s{sD}, v{t2}\nv_add_u32 v8, s{sA}, v8")
        p(f"v_add_u32 v9, {16*1280-1024}, v8")
        if ssm:
            p(f"s_lshl_b32 s{sA}, s{sCg}, 2\ns_add_u32 s{sA}, s{sA}, s{sWave}\ns_lshl_b32 s{sA}, s{sA}, 5")
            p(f"v_bfe_u32 v{t0}, v{L}, 2, 2\nv_and_b32 v{t2}, 3, v{L}\nv_lshl_add_u32 v{t0}, v{t0}, 3, v{t2}\nv_add_u32 v{CS}, s{sA}, v{t0}\nv_lshlrev_b32 v10, 1, v{CS}")
        p("s_waitcnt lgkmcnt(0)")
        def srd(r, ptr, n): p(f"s_mov_b32 s{r}, s{ptr}\ns_mov_b32 s{r+1}, s{ptr+1}\ns_mov_b32 s{r+2}, {n}\ns_mov_b32 s{r+3}, 0x20000")
        p(f"s_cmp_eq_u32 s{sWave}, 2\ns_cselect_b64 {S2(sT)}, {S2(pBre)}, {S2(pBim)}\ns_cmp_lt_u32 s{sWave}, 2\ns_cselect_b64 {S2(sT)}, {S2(pX)}, {S2(sT)}")
        p(f"s_cselect_b32 s{sT+2}, {2621440-819200}, 0\ns_add_u32 s{sT+2}, s{sT+2}, 819200\ns_mov_b32 s{sT+3}, 0x20000")
        for j in range(5):
            p(f"buffer_load_dwordx4 {V4(16+4*j)}, v6, {S4(sT)}, 0 offen offset:{256*j}")
        srd(sU, pWd, 1966080)
        p(f"s_lshl_b32 s{sA}, s{sWave}, 11\ns_add_u32 m0, s{sA}, {L_WDST}")
        p(f"buffer_load_dwordx4 v8, {S4(sU)}, 0 offen lds", tag='wdst')
        p(f"buffer_load_dwordx4 v9, {S4(sU)}, 0 offen offset:1024 lds", tag='wdst')
        if ssm:
            for i, ptr in enumerate((pLre, pLim, pLdt)):
                p(f"global_load_ushort v{100+2*i}, v10, {S2(ptr)}\nglobal_load_ushort v{101+2*i}, v10, {S2(ptr)} offset:8")
        srd(sX, pX, 2621440)
        if ssm: srd(sW0, pBre, 819200); srd(sW1, pBim, 819200)
        else: srd(sW0, pWg, 1966080); srd(sW1, pWu, 1966080)
        srd(sWS, pWs, WS_SIZE)
        self.stamp(p, 0)
        for s in (0, 1):
            for grp in self.dma_stage(s, ssm): p.add(grp)
        p(f"v_and_b32 v{t0}, 15, v{L}\nv_lshrrev_b32 v{t1}, 4, v{L}\nv_lshrrev_b32 v{t2}, 1, v{t0}\nv_xor_b32 v{t2}, v{t2}, v{t1}\nv_lshlrev_b32 v{t2}, 4, v{t2}")
        p(f"v_lshl_add_u32 v{vXR0}, v{t0}, 7, v{t2}\nv_xor_b32 v{vXR1}, 64, v{vXR0}")
        if ssm:
            p(f"v_add_u32 v{vWR0}, s{sM0W}, v{vXR0}\nv_add_u32 v{vWR1}, s{sM0W}, v{vXR1}")
        else:
            p(f"v_bfe_u32 v{t0}, v{L}, 2, 3\ns_lshl_b32 s{sA}, s{sWave}, 1\nv_xor_b32 v{t0}, s{sA}, v{t0}\nv_lshlrev_b32 v{t0}, 5, v{t0}")
            p(f"v_and_b32 v{t2}, 3, v{L}\nv_lshl_add_u32 v{t0}, v{t2}, 3, v{t0}")
            p(f"v_bfe_u32 v{t2}, v{L}, 2, 2\nv_lshl_add_u32 v{t2}, v{t1}, 3, v{t2}\nv_lshl_add_u32 v{t0}, v{t2}, 8, v{t0}")
            p(f"v_add_u32 v{vWR0}, {XIMG}, v{t0}\nv_xor_b32 v{vWR1}, 32, v{vWR0}")
            p(f"v_mov_b32 v12, 0x3f803f80\nv_mov_b32 v13, 0x3f803f80\nv_lshlrev_b32 v{t0}, 3, v{L}\nv_add_u32 v{t2}, {STG}, v{t0}")
            p(f"ds_write_b64 v{t0}, v[12:13] offset:{140*128}", tag='ones')
            p(f"ds_write_b64 v{t2}, v[12:13] offset:{140*128}", tag='ones')
            p(f"v_add_u32 v{t3}, {2*STG}, v{t0}")
            p(f"ds_write_b64 v{t3}, v[12:13] offset:{140*128}", tag='ones')
        p(f"s_mul_i32 s{sA}, s{sCt}, {80*1280}\ns_mov_b32 s{sD}, 1280")
        p(f"v_lshrrev_b32 v{t0}, 3, v{L}\nv_and_b32 v{t2}, 7, v{L}\nv_lshrrev_b32 v{t3}, 4, v{L}\nv_xor_b32 v{t2}, v{t2}, v{t3}\nv_lshlrev_b32 v{t2}, 4, v{t2}")
        p(f"v_mad_u32_u24 v{t0}, v{t0}, s{sD}, v{t2}\nv_add_u32 v{vCD0}, s{sA}, v{t0}\nv_xor_b32 v{t0}, 64, v{vCD0}\nv_add_u32 v{vCD1}, {8*1280-1024}, v{t0}")
        p(f"s_mul_i32 s{sCslot}, s{sWave}, 10240\ns_mul_i32 s{sCsp}, s{sWave}, {STG}\ns_add_u32 s{sCsp}, s{sCsp}, 40960\ns_cmp_eq_u32 s{sWave}, 3\ns_cselect_b32 s{sCsp}, {SPARE}, s{sCsp}")
        if self.c['rot2']:
            p(f"s_mul_i32 s{sRot2}, s{sCt}, 3\ns_lshr_b32 s{sRot2}, s{sRot2}, 1")
            p(f"s_mul_i32 s{sRotC}, s{sCt}, 5\ns_lshr_b32 s{sRotC}, s{sRotC}, 3")
        else:
            p(f"s_mov_b32 s{sRot2}, 0\ns_mov_b32 s{sRotC}, 0")
        p(f"s_lshl_b32 s{sA}, s{sCg}, 2\ns_add_u32 s{sA}, s{sA}, s{sWave}")
        p(f"s_mul_i32 s{sB}, s{sRg}, {20 if ssm else 48}\ns_add_u32 s{sB}, s{sB}, s{sA}\ns_lshl_b32 s{sB}, s{sB}, 6\ns_add_u32 s{sFlag}, s{sB}, {FLAGS if ssm else FLAGG}")
        p(f"v_mov_b32 v12, 0")
        p(f"buffer_store_dword v12, v12, {S4(sWS)}, s{sFlag} offen sc1", tag='side')
        if ssm:
            p(f"s_lshl_b32 s{sB}, s{sA}, 4\ns_add_u32 s{sB}, s{sB}, s{sRg}\ns_lshl_b32 s{sB}, s{sB}, 8\ns_add_u32 s{sCo}, s{sB}, {CARRY}")
            p(f"v_mov_b32 v13, -1\nv_lshlrev_b32 v14, 2, v{L}")
            p(f"buffer_store_dword v13, v14, {S4(sWS)}, s{sCo} offen sc1", tag='side')
            p(f"s_add_u32 s{sA}, s{sA}, 48")
        p(f"s_mul_i32 s{sHo}, s{sA}, {HS}\ns_add_u32 s{sHo}, s{sHo}, {H}")
        self.side_stats(p)
        self.side_wd(p)
        if ssm: self.ssm_consts(p)
        p(f"s_cmp_lt_u32 s{sWave}, 2\ns_cselect_b64 {S2(sT)}, {S2(pCre)}, {S2(pCim)}\ns_mov_b32 s{sT+2}, 819200")
        srd(sU, pOut, 5242880)

    def side_stats(self, p):
        L = vLane
        X = 40
        for j in range(20):
            p(f"v_lshlrev_b32 v{X+2*j}, 16, v{16+j}\nv_and_b32 v{X+2*j+1}, 0xffff0000, v{16+j}")
        p(f"v_pk_add_f32 v[80:81], {V2(X)}, {V2(X+2)}\nv_pk_add_f32 v[82:83], {V2(X+4)}, {V2(X+6)}")
        for j in range(4, 20):
            a = 80 + 2 * (j & 1)
            p(f"v_pk_add_f32 {V2(a)}, {V2(a)}, {V2(X+2*j)}")
        p("v_pk_add_f32 v[80:81], v[80:81], v[82:83]\nv_add_f32 v87, v80, v81")
        for r in (8, 4, 2, 1):
            p(f"v_add_f32_dpp v87, v87, v87 row_ror:{r} row_mask:0xf bank_mask:0xf")
        p(f"v_mul_f32 v88, {INV640}, v87")
        for j in range(20):
            p(f"v_pk_add_f32 {V2(X+2*j)}, {V2(X+2*j)}, v[88:89] op_sel_hi:[1,0] neg_lo:[0,1] neg_hi:[0,1]")
        p(f"v_pk_mul_f32 v[80:81], {V2(X)}, {V2(X)}\nv_pk_mul_f32 v[82:83], {V2(X+2)}, {V2(X+2)}")
        for j in range(2, 20):
            a = 80 + 2 * (j & 1)
            p(f"v_pk_fma_f32 {V2(a)}, {V2(X+2*j)}, {V2(X+2*j)}, {V2(a)}")
        p("v_pk_add_f32 v[80:81], v[80:81], v[82:83]\nv_add_f32 v80, v80, v81")
        for r in (8, 4, 2, 1):
            p(f"v_add_f32_dpp v80, v80, v80 row_ror:{r} row_mask:0xf bank_mask:0xf")
        p(f"v_mul_f32 v80, {INV640}, v80")
        p.add(self.bfr(80, 80)); p(f"v_add_f32 v80, {EPS}, v80"); p.add(self.bfr(80, 80))
        p("v_sqrt_f32 v80, v80"); p.add(self.bfr(85, 80)); p("v_rcp_f32 v86, v85"); p.add(self.bfr(84, 88))
        p("v_mul_f32 v81, v84, v86")
        p(f"s_lshl_b32 s{sA}, s{sWave}, 14\ns_add_u32 s{sA}, s{sA}, {CSUM - 2*16384}\ns_cmp_lt_u32 s{sWave}, 2\ns_cselect_b32 s{sA}, {STATG}, s{sA}")
        p(f"s_cselect_b32 s{sB}, 0, 1408\ns_cselect_b32 s{sC}, 0, 2048")
        p(f"v_lshlrev_b32 v0, 4, v7\nv_add_u32 v7, s{sB}, v7")
        p(f"s_mov_b32 s{sD}, 1821\nv_mul_u32_u24 v1, s{sD}, v7\nv_lshrrev_b32 v1, 18, v1")
        p(f"v_mul_u32_u24 v2, 144, v1\nv_sub_u32 v2, v7, v2\nv_mul_u32_u24 v3, 57, v2\nv_lshrrev_b32 v3, 10, v3")
        p(f"v_mul_u32_u24 v4, 18, v3\nv_sub_u32 v4, v2, v4")
        p(f"v_lshrrev_b32 v5, 1, v3\nv_lshl_add_u32 v1, v1, 2, v5\nv_mul_u32_u24 v1, 72, v1")
        p(f"v_and_b32 v3, 1, v3\nv_lshl_add_u32 v3, v4, 1, v3\nv_add_lshl_u32 v1, v1, v3, 2")
        p(f"v_mov_b32 v2, {OOB}\nv_cmp_gt_u32 vcc, s{sC}, v7\nv_cndmask_b32 v1, v1, v2, vcc")
        p(f"s_mov_b32 s{sB}, {STATS}\ns_mov_b32 exec_lo, 0x00010001\ns_mov_b32 exec_hi, 0x00010001")
        p(f"buffer_store_dwordx4 v[84:87], v0, {S4(sWS)}, s{sA} offen sc1", tag='side')
        p(f"buffer_store_dword v86, v1, {S4(sWS)}, s{sB} offen sc1", tag='side')
        p(f"buffer_store_dword v81, v1, {S4(sWS)}, s{sB} offen offset:144 sc1", tag='side')
        p("s_mov_b64 exec, -1")

    def side_wd(self, p):
        L = vLane
        p(f"s_lshl_b32 s{sA}, s{sWave}, 11\ns_add_u32 s{sA}, s{sA}, {L_WDST}")
        p(f"v_lshrrev_b32 v0, 2, v{L}\nv_and_b32 v1, 3, v{L}\nv_lshlrev_b32 v1, 3, v1\nv_lshl_add_u32 v0, v0, 6, v1\nv_add_u32 v0, s{sA}, v0")
        p.wait('wdst')
        for nbl in range(2):
            for t in range(2):
                p(f"ds_read_b64_tr_b16 {V2(16+4*nbl+2*t)}, v0 offset:{t*1024 + nbl*32}")
        for nbl in range(2):
            p(f"s_lshl_b32 s{sA}, s{sO2}, 3\ns_lshl_b32 s{sB}, s{sWave}, 1\ns_add_u32 s{sA}, s{sA}, s{sB}\ns_add_u32 s{sA}, s{sA}, {nbl}")
            p(f"s_mul_i32 s{sB}, s{sA}, 205\ns_lshr_b32 s{sB}, s{sB}, 10\ns_mul_i32 s{sB}, s{sB}, 255\ns_add_u32 s{sA}, s{sA}, s{sB}")
            p(f"s_mul_i32 s{sB}, s{sK2}, 5\ns_add_u32 s{sA}, s{sA}, s{sB}\ns_lshl_b32 s{sA}, s{sA}, 10\ns_add_u32 s{sA}, s{sA}, {WD}")
            p(f"buffer_store_dwordx4 {V4(16+4*nbl)}, v{vL16}, {S4(sWS)}, s{sA} offen sc1", tag='side')

    def ssm_consts(self, p):
        for i in range(100, 106): p(f"v_lshlrev_b32 v{i}, 16, v{i}")
        for i in (0, 1):
            p(f"v_mul_f32 v{104+i}, {LOG2E}, v{104+i}\nv_exp_f32 v{104+i}, v{104+i}")
        for i in (0, 1): p.add(self.bfr(104+i, 104+i))
        p("v_pk_mul_f32 v[106:107], v[104:105], v[100:101]\nv_pk_mul_f32 v[108:109], v[104:105], v[102:103]")
        for i in (0, 1):
            p(f"v_mul_f32 v{106+i}, {LOG2E}, v{106+i}\nv_exp_f32 v{106+i}, v{106+i}")
            p(f"v_mul_f32 v{108+i}, {INV2PI}, v{108+i}\nv_rndne_f32 v110, v{108+i}\nv_sub_f32 v{108+i}, v{108+i}, v110")
            p(f"v_cos_f32 v{112+i}, v{108+i}\nv_sin_f32 v{114+i}, v{108+i}")
        p(f"v_pk_mul_f32 {V2(LAM)}, v[106:107], v[112:113]\nv_pk_mul_f32 {V2(LAM+2)}, v[106:107], v[114:115]")
        p(f"v_pk_mul_f32 v[106:107], v[100:101], v[100:101]\nv_pk_fma_f32 v[106:107], v[102:103], v[102:103], v[106:107]")
        p("v_rcp_f32 v106, v106\nv_rcp_f32 v107, v107")
        p(f"v_add_f32 v112, -1.0, v{LAM}\nv_add_f32 v113, -1.0, v{LAM+1}\nv_mov_b32 v114, v{LAM+2}\nv_mov_b32 v115, v{LAM+3}")
        p("v_add_f32 v106, v106, v106\nv_add_f32 v107, v107, v107")
        p("v_pk_mul_f32 v[100:101], v[100:101], v[106:107]\nv_pk_mul_f32 v[102:103], v[102:103], v[106:107] neg_lo:[1,0] neg_hi:[1,0]")
        p.add(self.cmul(COEF, 112, 100))
        p.add(self.cmul(100, LAM, LAM))
        p.add(self.cmul(104, 100, 100))
        p.add(self.cmul(108, 104, 104))
        p.add(self.cmul(104, 108, 108))
        p.add(self.cmul(L18, 104, 100))
        p.add(self.cmul(L36, L18, L18))
        p.add(self.cmul(100, L36, L36))
        p.add(self.cmul(104, 100, L36))
        p(f"v_cmp_le_u32 {S2(sQ1)}, 16, v{vLane}\nv_cmp_le_u32 {S2(sQ2)}, 32, v{vLane}\nv_cmp_le_u32 {S2(sQ3)}, 48, v{vLane}")
        p.add(self.cone(108))
        p.add(self.csel(F36, 104, 100, sQ1)); p.add(self.csel(F36, F36, L36, sQ2)); p.add(self.csel(F36, F36, 108, sQ3))

    def dma_stage(self, s, ssm):
        buf = (s % 3) * STG; tag = f'st{s}'
        g = []
        for n in range(4):
            pre = [f"s_add_u32 m0, s{sM0X}, {buf}"] if n == 0 else []
            g.append(pre + [I(f"buffer_load_dwordx4 v{vXD+n}, {S4(sX)}, s{sOffX} offen offset:{1024*n} lds", tag)])
        g.append([f"s_mov_b32 m0, s{sM0H + s % 3}", "s_mov_b32 exec_hi, 0",
                  I(f"buffer_load_dwordx4 v{vXD+4}, {S4(sX)}, s{sOffX} offen lds", tag), "s_mov_b32 exec_hi, -1"])
        for m in range(2):
            for n in range(4):
                pre = [f"s_add_u32 m0, s{sM0W}, {buf + m * (4096 if ssm else 16384)}"] if n == 0 else []
                g.append(pre + [I(f"buffer_load_dwordx4 v{vWDm+n}, {S4(sW1 if m else sW0)}, s{sOffW} offen offset:{1024*n} lds", tag)])
        g[-1] = g[-1] + [f"s_add_u32 s{sChunk}, s{sChunk}, 1", f"s_cmp_eq_u32 s{sChunk}, 10", f"s_cselect_b32 s{sChunk}, 0, s{sChunk}",
                         f"s_lshl_b32 s{sOffX}, s{sChunk}, 7", f"s_mul_i32 s{sOffW}, s{sChunk}, {128 if ssm else 196608}"]
        return g

    def xread(self, B):
        h = (B // 9) & 1; b = B % 9
        return f"ds_read_b128 {V4(xr(B))}, v{vXR1 if h else vXR0} offset:{b*2048}"
    def wreads(self, K, ssm):
        h = K & 1; out = []
        for t in range(4):
            d = wb(K & 1, t)
            if ssm:
                out.append(f"ds_read_b128 {V4(d)}, v{vWR1 if h else vWR0} offset:{(t & 1)*4096 + (t >> 1)*2048}")
            else:
                for tt in range(2):
                    out.append(f"ds_read_b64_tr_b16 {V2(d+2*tt)}, v{vWR1 if (t >> 1) else vWR0} offset:{(t & 1)*16384 + (32*h + 4*tt)*256}")
        return out

    def wd_ops(self):
        ops = []
        for i in range(12):
            if i == 0:
                pre = [f"s_mov_b32 s{sK2}, s{sRot2}", f"s_mul_i32 s{sD}, s{sCt}, 52", f"s_mul_i32 s{sC}, s{sWave}, 12", f"s_add_u32 s{sD}, s{sD}, s{sC}",
                       f"s_mul_i32 s{sD}, s{sD}, 5120", f"s_add_u32 s{sD}, s{sD}, {WD}"]
            else:
                pre = [f"s_add_u32 s{sK2}, s{sK2}, 1", f"s_cmp_eq_u32 s{sK2}, 12", f"s_cselect_b32 s{sK2}, 0, s{sK2}"]
            pre += [f"s_mul_i32 s{sO2}, s{sK2}, 5120", f"s_add_u32 s{sO2}, s{sO2}, s{sD}"]
            for nb in range(5):
                a = 20 * i + 4 * nb
                ld = (f"buffer_load_dwordx4 {A4(a)}, v{vL16}, {S4(sWS)}, s{sO2} offen offset:{1024*nb} sc1" if nb < 4 else
                      f"buffer_load_dwordx4 {A4(a)}, v{vL16b}, {S4(sWS)}, s{sO2} offen sc1")
                ops.append((pre if nb == 0 else []) + [ld])
        return ops
    def cslot(self, i):
        i = i % 4
        return (sCsp, 0) if i == 3 else (sCslot, ((i + 1) % 3) * STG)
    def c_ops(self, i):
        ops = []; sg, k = self.cslot(i)
        for j in range(10):
            pre = []
            if j == 0:
                pre = [f"s_add_u32 s{sA}, s{sRotC}, {i}", f"s_cmp_ge_u32 s{sA}, 5", f"s_cselect_b32 s{sB}, 5, 0", f"s_sub_u32 s{sA}, s{sA}, s{sB}",
                       f"s_and_b32 s{sB}, s{sWave}, 1", f"s_mul_i32 s{sB}, s{sB}, 5", f"s_add_u32 s{sA}, s{sA}, s{sB}", f"s_lshl_b32 s98, s{sA}, 7"]
            elif j % 2 == 0:
                pre = [f"s_add_u32 s98, s98, {16*1280}"]
            pre += [f"s_add_u32 m0, s{sg}, {k + (j & ~1) * 1024}"]
            ops.append(pre + [I(f"buffer_load_dwordx4 v{vCD1 if j & 1 else vCD0}, {S4(sT)}, s98 offen offset:{1024*(j & 1)} lds", f'c{i}')])
        return ops

    def poll_check(self, load, cmpc, reg):
        ok = self.lab('ok'); lp = self.lab('spin')
        out = [f"v_cmp_ne_u32 vcc, {cmpc}, v{reg}", f"s_cbranch_vccz {ok}"]
        slow = [f"s_mov_b32 s{sSpin}, 0x10000", f"{lp}:", "s_sleep 2", load, "s_waitcnt vmcnt(0)",
                f"v_cmp_ne_u32 vcc, {cmpc}, v{reg}", f"s_sub_u32 s{sSpin}, s{sSpin}, 1", f"s_cmp_eq_u32 s{sSpin}, 0",
                f"s_cbranch_scc1 {ok}", f"s_cbranch_vccnz {lp}"]
        out += [self.optI(x) for x in slow] + [f"{ok}:"]
        return out
    def optI(self, x):
        i = I(x, opt=True)
        if i.kind == 'vmem': i.kind = 'ctl'; i.wr = set(); i.rd = set()
        return i

    def mainloop(self, p, ssm):
        c = self.c
        mf = []
        for K in range(20):
            for b in range(9):
                B = K * 9 + b
                for t in range(4):
                    a = acc(b, t); w = wb(K & 1, t); x = xr(B)
                    cc = '0' if K == 0 else V4(a)
                    if ssm: mf.append(f"v_mfma_f32_16x16x32_bf16 {V4(a)}, {V4(x)}, {V4(w)}, {cc}")
                    else: mf.append(f"v_mfma_f32_16x16x32_bf16 {V4(a)}, {V4(w)}, {V4(x)}, {cc}")
        F = {}
        def put(B, g, items): F.setdefault(B * 4 + g, []).extend(items if isinstance(items, list) else [items])
        p.wait('st0', 'ones'); p("s_barrier")
        self.stamp(p, 1)
        wr = self.wreads(0, ssm); k = len(wr) // 4
        p.add(wr[:k]); p(self.xread(0)); p.add(wr[k:])
        for B in range(1, 5): p(self.xread(B))
        BB = 5
        pf = self.wd_ops() + self.c_ops(0) + self.c_ops(1)
        self.pf_rest = None
        for s in range(10):
            B0 = s * 18
            for B in range(B0 + 5, B0 + 18): put(B - 5, 0, self.xread(B))
            w1 = self.wreads(2 * s + 1, ssm)
            for i, r in enumerate(w1): put(B0 + 1 + (i * 6) // len(w1), 1 if i % 2 == 0 or ssm else 3, r)
            Bb = B0 + 9 + BB
            tags = [f'st{s+1}', 'ALLLG'] + (['side'] if s == 0 else []) + (['sstat'] if s >= 7 else [])
            bar = [W(*tags), "s_barrier"]
            if s < 9:
                d = STG if (s + 1) % 3 else -2 * STG
                op = "v_add_u32" if d > 0 else "v_subrev_u32"
                upd = [f"{op} v{r}, {abs(d)}, v{r}" for r in (vWR0, vXR0, vWR1, vXR1)]
                put(Bb - 2, 1, upd[:2]); put(Bb - 2, 2, upd[2:])
            put(Bb - 1, 3, bar)
            if s < 9:
                w0 = self.wreads(2 * s + 2, ssm); k = len(w0) // 4
                seq = w0[:k] + [self.xread(B0 + 18)] + w0[k:2*k] + [self.xread(B0 + 19)] + w0[2*k:]
                for i, r in enumerate(seq): put(Bb + i // 4, i % 4, r)
                put(Bb + 2, 3, self.xread(B0 + 20)); put(Bb + 3, 0, self.xread(B0 + 21)); put(Bb + 3, 2, self.xread(B0 + 22))
            if s == 0:
                arr = self.lab('arr')
                put(Bb, 1, [f"s_cmp_lg_u32 s{sWave}, 0", f"s_cbranch_scc1 {arr}"] +
                    [I(x, opt=True) for x in [f"v_mov_b32 v{vTmp}, s2", f"v_mov_b32 v{vPoll}, 1", "s_mov_b64 exec, 1",
                                              f"global_store_byte v{vTmp}, v{vPoll}, {S2(pDbg)} sc1", "s_mov_b64 exec, -1"]] + [f"{arr}:"])
            if s + 2 < 10:
                for i, g in enumerate(self.dma_stage(s + 2, ssm)):
                    if len(g) > 1 and not isinstance(g[0], I) and 'exec' not in ' '.join(x for x in g if not isinstance(x, I)):
                        put(B0 + i, 1, [g[0]]); g = g[1:]
                    if i == 12:
                        put(B0 + i, 2, g[:1]); put(B0 + i, 3, g[1:4]); put(B0 + i + 1, 0, g[4:])
                    else:
                        put(B0 + i, 2, g)
            ps = c['poll_stage']
            ld = f"global_load_dword v{vPoll}, v{vTmp}, {S2(pDbg)} sc1"
            if s == ps:
                put(B0, 3, [f"v_lshlrev_b32 v{vTmp}, 2, v{vLane}"]); put(B0 + 1, 3, [ld])
                put(B0 + 17, 1, self.poll_check(ld, 0x01010101, vPoll))
            if s == ps + 1:
                st = self.stat_loads(ssm)
                for i, g in enumerate(st): put(B0 + i, 3, g)
            n = {ps + 1: 3, ps + 2: 5}.get(s, 0) if s < 8 else 17
            if s > ps:
                lim = 60 if s < 8 else (70 if s == 8 else 80)
                done = 80 - len(pf)
                n = min(n, lim - done)
                for i in range(n):
                    g = pf.pop(0)
                    B = B0 + (13 + i if s < 8 else i)
                    if len(g) > 1: put(B, 1, g[:-1])
                    put(B, 2, g[-1:])
        p.add(interleave(mf, F))
        self.pf_rest = pf

    def stat_loads(self, ssm):
        L = vLane
        if ssm:
            g = [[f"s_lshl_b32 s{sA}, s{sRg}, 2", f"s_add_u32 s{sA}, s{sA}, s{sWave}", f"s_mul_i32 s{sA}, s{sA}, 288"],
                 [f"s_add_u32 s{sA}, s{sA}, {STATS}", f"s_mul_i32 s{sB}, s{sWave}, 288"],
                 [f"v_lshlrev_b32 v{vTmp}, 4, v{CS}", f"s_mov_b32 s{sC}, {CSUM}"],
                 [f"s_add_u32 m0, s{sB}, {L_STAT}", I(f"buffer_load_dwordx4 v{vL16}, {S4(sWS)}, s{sA} offen sc1 lds", 'sstat')],
                 [f"buffer_load_dword v{CS}, v{vTmp}, {S4(sWS)}, s{sC} offen offset:12 sc1"],
                 [f"buffer_load_dword v{CS+1}, v{vTmp}, {S4(sWS)}, s{sC} offen offset:76 sc1", f"s_add_u32 s{sC}, s{sC}, 16384"],
                 [f"buffer_load_dword v{CS+2}, v{vTmp}, {S4(sWS)}, s{sC} offen offset:12 sc1"],
                 [f"buffer_load_dword v{CS+3 if not self.c['stamps'] else 247}, v{vTmp}, {S4(sWS)}, s{sC} offen offset:76 sc1"]]
            return g
        g = [[f"s_mul_i32 s{sA}, s{sRg}, {140*16}", f"v_and_b32 v{vTmp}, 0xff, v{vL16}"]]
        for b in range(9):
            g.append([f"buffer_load_dwordx2 {V2(GST+2*b)}, v{vTmp}, {S4(sWS)}, s{sA} offen offset:{256*b} sc1"])
        return g

    def glu_tail(self, p):
        L = vLane
        pf = self.pf_rest + self.c_ops(2) + self.c_ops(3)
        CSR = 144
        K1 = 160
        T = 172
        self.stamp(p, 2)
        for b in range(9): p(f"v_rcp_f32 v{K1+b}, v{GST+2*b+1}")
        p(f"s_mul_i32 s{sA}, s{sRg}, 140\nv_and_b32 v{T}, 15, v{L}\nv_add_u32 v{T}, s{sA}, v{T}")
        p(f"v_lshrrev_b32 v{T+1}, 4, v{T}\nv_and_b32 v{T}, 15, v{T}\nv_lshlrev_b32 v{T}, 4, v{T}\nv_lshl_add_u32 v{T}, v{T+1}, 10, v{T}")
        p(f"v_lshrrev_b32 v{T+1}, 4, v{L}\nv_lshl_add_u32 v170, v{T+1}, 8, v{T}")
        for b in range(9): p(f"v_mul_f32 v{K1+b}, {NLOG2E}, v{K1+b}")
        for i in range(16): p(f"v_mov_b32_dpp v{CSR+i}, v{acc(8,0)+i} row_newbcast:12 row_mask:0xf bank_mask:0xf")
        for b in range(9):
            ms = V2(GST + 2 * b); k1 = V2(K1 + (b & ~1)); ks = b & 1
            pairs = [(acc(b, 2*pr) + 2*hh, acc(b, 2*pr+1) + 2*hh, CSR + 8*pr + 2*hh, CSR + 8*pr + 4 + 2*hh) for pr in range(2) for hh in range(2)]
            body = []
            for (g, u, cg, cu) in pairs:
                body.append(f"v_pk_fma_f32 {V2(g)}, {V2(cg)}, {ms}, {V2(g)} op_sel_hi:[1,0,1] neg_lo:[0,1,0] neg_hi:[0,1,0]")
            for (g, u, cg, cu) in pairs:
                body.append(f"v_pk_mul_f32 {V2(g)}, {V2(g)}, {k1} op_sel:[0,{ks}] op_sel_hi:[1,{ks}]")
            for (g, u, cg, cu) in pairs:
                body += [f"v_exp_f32 v{g}, v{g}", f"v_exp_f32 v{g+1}, v{g+1}",
                         f"v_pk_fma_f32 {V2(u)}, {V2(cu)}, {ms}, {V2(u)} op_sel_hi:[1,0,1] neg_lo:[0,1,0] neg_hi:[0,1,0]"]
            for (g, u, cg, cu) in pairs:
                body.append(f"v_pk_fma_f32 {V2(g)}, {V2(g)}, {ms}, {ms} op_sel:[0,1,1] op_sel_hi:[1,1,1]")
            for (g, u, cg, cu) in pairs:
                body += [f"v_rcp_f32 v{g}, v{g}", f"v_rcp_f32 v{g+1}, v{g+1}"]
            for (g, u, cg, cu) in pairs:
                body.append(f"v_pk_mul_f32 {V2(u)}, {V2(u)}, {V2(g)}")
            D = T + 4 * (b & 1)
            for i, (g, u, cg, cu) in enumerate(pairs):
                body.append(f"v_cvt_pk_bf16_f32 v{D+i}, v{u}, v{u+1}")
            F = {}
            for pos in (6, 18, 30):
                if pf: F[pos] = pf.pop(0)
            p.add(interleave(body, F))
            if b in (4, 8): p(f"s_add_u32 s{sHo}, s{sHo}, 4096")
            if b == 8: p("s_mov_b32 exec_lo, 0x0fff0fff\ns_mov_b32 exec_hi, 0x0fff0fff")
            p(f"buffer_store_dwordx4 {V4(D)}, v170, {S4(sWS)}, s{sHo} offen offset:{1024*(b & 3)} sc1", tag='hst')
            if b == 8: p("s_mov_b64 exec, -1")
        self.stamp(p, 3)
        self.publish(p, pf)

    def publish(self, p, pf):
        for i in range(10):
            if pf: p.add(pf.pop(0))
        self.final_pre_loads(p)
        p(f"v_mov_b32 v{vTmp}, 0\nv_mov_b32 v{vPoll}, 1")
        p.wait('hst')
        p("s_mov_b64 exec, 1")
        p(f"buffer_store_dword v{vPoll}, v{vTmp}, {S4(sWS)}, s{sFlag} offen sc1")
        p("s_mov_b64 exec, -1")
        self.stamp(p, 4)
        while pf: p.add(pf.pop(0))

    def ssm_tail(self, p):
        L = vLane
        c = self.c
        pf = self.pf_rest + self.c_ops(2)
        self.stamp(p, 2)
        if c['stamps']: csr = lambda t: (V2(CS), t >> 1) if not (t & 1) else ((V2(CS+2), 0) if t == 1 else (V2(246), 1))
        else: csr = lambda t: (V2(CS + 2 * (t & 1)), t >> 1)
        RS = 144
        E = 160
        vS = 176
        p(f"v_lshrrev_b32 v{vS}, 4, v{L}\nv_mul_u32_u24 v{vS}, 288, v{vS}\nv_add_u32 v{vS}, {L_STAT}, v{vS}")
        def rd(b): return [f"ds_read_b128 {V4(RS+8*(b&1))}, v{vS} offset:{16*b}", f"ds_read_b128 {V4(RS+8*(b&1)+4)}, v{vS} offset:{144+16*b}"]
        def step(T, n_re, n_im, e_re, e_im, p_re, p_im):
            sel = f"op_sel:[{T},0,0] op_sel_hi:[{T},1,1]"
            return [f"v_pk_fma_f32 {V2(n_re)}, {V2(LAM)}, {V2(e_re)}, {V2(p_re)} {sel}",
                    f"v_pk_fma_f32 {V2(n_im)}, {V2(LAM)}, {V2(e_im)}, {V2(p_im)} {sel}",
                    f"v_pk_fma_f32 {V2(n_re)}, {V2(LAM+2)}, {V2(e_im)}, {V2(n_re)} {sel} neg_lo:[1,0,0] neg_hi:[1,0,0]",
                    f"v_pk_fma_f32 {V2(n_im)}, {V2(LAM+2)}, {V2(e_re)}, {V2(n_im)} {sel}"]
        p.add(rd(0)); p.add(rd(1))
        st = {}
        for b in range(9):
            body = []
            for hh in range(2):
                rs = RS + 8 * (b & 1) + 2 * hh; u = rs + 4
                for t in range(4):
                    a = acc(b, t) + 2 * hh
                    body.append(f"v_pk_mul_f32 {V2(a)}, {V2(a)}, {V2(rs)}")
                for t in range(4):
                    a = acc(b, t) + 2 * hh; cr, w = csr(t)
                    body.append(f"v_pk_fma_f32 {V2(a)}, {V2(u)}, {cr}, {V2(a)} op_sel:[0,{w},0] op_sel_hi:[1,{w},1] neg_lo:[0,1,0] neg_hi:[0,1,0]")
            if b + 2 < 9: body += rd(b + 2)
            for hh in range(2):
                j = 2 * b + hh
                for T in range(2):
                    pr, pi = acc(b, 2*T) + 2*hh, acc(b, 2*T+1) + 2*hh
                    if j == 0: st[T] = (pr, pi); continue
                    n = E + 8 * (j & 1) + 4 * T
                    body += step(T, n, n + 2, st[T][0], st[T][1], pr, pi); st[T] = (n, n + 2)
            F = {}
            for pos in (4, 20):
                if pf: F[pos] = pf.pop(0)
            p.add(interleave(body, F))
        e = E + 8
        p(f"v_swap_b32 v{e+1}, v{e+4}\nv_swap_b32 v{e+3}, v{e+6}")
        E0 = e; EL = e + 4; Wv = E
        p.add(self.cfma(EL, L18, E0, EL))
        p.add(self.cmul(Wv, F36, EL))
        p(f"v_permlane32_swap_b32 v{Wv}, v{Wv+2}\nv_permlane32_swap_b32 v{Wv+1}, v{Wv+3}")
        p(f"v_and_b32 v{vS}, 15, v{L}\nv_lshrrev_b32 v{vS+1}, 4, v{L}")
        p(f"v_pk_add_f32 {V2(Wv)}, {V2(Wv)}, {V2(Wv+2)}")
        p(f"v_lshlrev_b32 v{vS}, 4, v{vS}\nv_lshl_add_u32 v{vS+2}, v{vS+1}, 2, v{vS}")
        p(f"v_permlane16_swap_b32 v{Wv}, v{Wv+1}\nv_add_f32 v{Wv}, v{Wv}, v{Wv+1}")
        p(f"buffer_store_dword v{Wv}, v{vS+2}, {S4(sWS)}, s{sCo} offen sc1")
        self.stamp(p, 3)
        p("s_barrier")
        pf += self.c_ops(3)
        body = []
        for b in range(9):
            for hh in range(2):
                for T in range(2):
                    pr, pi = acc(b, 2*T) + 2*hh, acc(b, 2*T+1) + 2*hh
                    s2 = f"op_sel:[{T},0] op_sel_hi:[{T},1]"; s3 = f"op_sel:[{T},0,0] op_sel_hi:[{T},1,1]"
                    t1 = 144 + 4 * T
                    body += [f"v_pk_mul_f32 {V2(t1)}, {V2(COEF)}, {V2(pr)} {s2}", f"v_pk_mul_f32 {V2(t1+2)}, {V2(COEF+2)}, {V2(pr)} {s2}",
                             f"v_pk_fma_f32 {V2(pr)}, {V2(COEF+2)}, {V2(pi)}, {V2(t1)} {s3} neg_lo:[1,0,0] neg_hi:[1,0,0]",
                             f"v_pk_fma_f32 {V2(pi)}, {V2(COEF)}, {V2(pi)}, {V2(t1+2)} {s3}"]
        G0, G1, G2, G3 = 144, 148, 152, 156
        for i in range(4):
            body += [f"v_mov_b32 v{G0+i}, v{EL+i}", f"v_mov_b32 v{G1+i}, v{EL+i}"]
        for i in range(4): body.append(f"v_permlane16_swap_b32 v{G0+i}, v{G1+i}")
        for i in range(4):
            body += [f"v_mov_b32 v{G2+i}, v{G0+i}", f"v_mov_b32 v{G3+i}, v{G1+i}"]
        for i in range(4):
            body += [f"v_permlane32_swap_b32 v{G0+i}, v{G2+i}", f"v_permlane32_swap_b32 v{G1+i}, v{G3+i}"]
        body += self.cfma(G1, L36, G0, G1) + self.cfma(G2, L36, G1, G2)
        PRE = 180
        body += [f"v_mov_b32 v{G3+i}, 0" for i in range(4)]
        body += self.csel(G3, G3, G0, sQ1) + self.csel(G3, G3, G1, sQ2) + self.csel(G3, G3, G2, sQ3)
        body += self.cmul(PRE, COEF, G3)
        E0C = 184
        body += self.cmul(E0C, COEF, E0)
        P72, P108, P144, P288, P432 = 144, 148, 152, 156, 160
        G36, F144, L576 = 236, 240, 188
        body += self.cmul(P72, L36, L36) + self.cmul(P108, P72, L36) + self.cmul(P144, P72, P72) + self.cmul(P288, P144, P144)
        body += self.cmul(P432, P288, P144) + self.cmul(L576, P288, P288)
        body += self.cone(164)
        body += self.csel(F144, P432, P288, sQ1) + self.csel(F144, F144, P144, sQ2) + self.csel(F144, F144, 164, sQ3)
        body += self.csel(164, 164, L36, sQ1) + self.csel(164, 164, P72, sQ2) + self.csel(164, 164, P108, sQ3)
        body += self.cmul(G36, COEF, 164)
        AD = 200; ID = 192; CO = 194
        body += [f"s_mul_i32 s{sA}, s{sRg}, 144", f"v_bfe_u32 v164, v{L}, 2, 2", f"v_mul_u32_u24 v165, 36, v164", f"v_and_b32 v166, 3, v{L}",
                 f"v_add3_u32 v165, v165, v166, s{sA}", f"v_lshlrev_b32 v167, 8, v{vS+1}"]
        for j in range(9):
            body += [f"v_and_b32 v168, 15, v165", f"v_lshrrev_b32 v169, 4, v165", f"v_lshl_add_u32 v168, v168, 4, v167",
                     f"v_lshl_add_u32 v{AD+j}, v169, 10, v168", f"v_add_u32 v165, 4, v165"]
        body += [f"v_and_b32 v168, 1, v{L}", f"v_lshlrev_b32 v168, 4, v168", f"v_mov_b32 v169, 0x3f80", f"v_lshlrev_b32 v168, v168, v169",
                 f"v_cmp_eq_u32 vcc, v164, v{vS+1}", f"v_cndmask_b32 v168, 0, v168, vcc", f"v_cmp_gt_u32 vcc, 2, v166",
                 f"v_cndmask_b32 v{ID}, 0, v168, vcc", f"v_sub_u32 v{ID+1}, v168, v{ID}"]
        body += [f"v_mov_b32 v169, {OOB}", f"v_lshl_add_u32 v168, v{vS+1}, 8, v{vS}", f"s_sub_u32 s{sCo}, s{sCo}, 4096"]
        for n in range(4):
            body += [f"s_sub_u32 s{sB}, {16 - 4*n}, s{sRg}", f"v_cmp_gt_i32 vcc, s{sB}, v{vS+1}", f"v_cndmask_b32 v{CO+n}, v168, v169, vcc"]
        F = {}
        pos = 8
        while pf and pos < 140: F[pos] = pf.pop(0); pos += 14
        p.add(interleave(body, F))
        CL = 144
        lp = self.lab('lb'); ok = self.lab('lbok')
        p(f"s_mov_b32 s{sSpin}, 0x10000")
        p(f"{lp}:")
        for n in range(4):
            p(f"buffer_load_dwordx4 {V4(CL+4*n)}, v{CO+n}, {S4(sWS)}, s{sCo} offen offset:{1024*n} sc1")
        p("s_waitcnt vmcnt(0)")
        p(f"v_max3_u32 v164, v{CL}, v{CL+1}, v{CL+2}")
        for i in range(3, 15, 2): p(f"v_max3_u32 v164, v164, v{CL+i}, v{CL+i+1}")
        p(f"v_max_u32 v164, v164, v{CL+15}\nv_cmp_eq_u32 vcc, -1, v164")
        p(f"s_sub_u32 s{sSpin}, s{sSpin}, 1\ns_cmp_eq_u32 s{sSpin}, 0\ns_cbranch_scc1 {ok}\ns_cbranch_vccnz {lp}")
        p(f"{ok}:")
        self.stamp(p, 5)
        for n in range(1, 4): p.add(self.cfma(CL + 4*n, L576, CL + 4*(n-1), CL + 4*n))
        p.add(self.cmul(CL, F144, CL + 12))
        for sw in ("v_permlane32_swap_b32", "v_permlane16_swap_b32"):
            p(f"v_mov_b64 {V2(CL+4)}, {V2(CL)}\nv_mov_b64 {V2(CL+6)}, {V2(CL+2)}")
            for i in range(4): p(f"{sw} v{CL+i}, v{CL+4+i}")
            p(f"v_pk_add_f32 {V2(CL)}, {V2(CL)}, {V2(CL+4)}\nv_pk_add_f32 {V2(CL+2)}, {V2(CL+2)}, {V2(CL+6)}")
        p.add(self.cfma(PRE, G36, CL, PRE))
        p.add(self.cfma(E0C, L18, PRE, E0C))
        p(f"v_swap_b32 v{PRE+1}, v{PRE+4}\nv_swap_b32 v{PRE+3}, v{PRE+6}")
        st = {0: (PRE, PRE + 2), 1: (PRE + 4, PRE + 6)}
        PK = 144; MO = 152; SD = 168
        def dsrc(n, t): return (acc(n, t), acc(n, t) + 2) if n < 9 else (acc(n - 9, t) + 1, acc(n - 9, t) + 3)
        def stageA(j):
            o = []
            for t in range(4):
                ng = '-' if t & 1 else ''
                for k in range(2):
                    a, b_ = dsrc(2*j + k, t)
                    o.append(f"v_cvt_pk_bf16_f32 v{PK+2*t+k}, {ng}v{a}, {ng}v{b_}")
            for t in range(4):
                o.append(f"v_mfma_f32_16x16x16_bf16 {V4(MO+4*t)}, {V2(PK+2*t)}, {V2(ID)}, 0")
            return o
        def stageB(j):
            o = []
            for m in range(2):
                for T in range(2):
                    s_ = MO + 4 * (2*T + m)
                    o += [f"v_cvt_pk_bf16_f32 v{SD+4*m+2*T}, v{s_}, v{s_+1}", f"v_cvt_pk_bf16_f32 v{SD+4*m+2*T+1}, v{s_+2}, v{s_+3}"]
                o.append(I(f"buffer_store_dwordx4 {V4(SD+4*m)}, v{AD+j}, {S4(sWS)}, s{sHo if m == 0 else sC} offen sc1", 'hst'))
            return o
        p(f"s_add_u32 s{sC}, s{sHo}, {20*HS}")
        done = {1: [0], 3: [1], 5: [2], 7: [3], 2: [5], 4: [6], 6: [7], 8: [4, 8]}
        pend = None
        for b in range(9):
            for hh in range(2):
                for T in range(2):
                    pr, pi = acc(b, 2*T) + 2*hh, acc(b, 2*T+1) + 2*hh
                    p.add(step(T, pr, pi, st[T][0], st[T][1], pr, pi)); st[T] = (pr, pi)
            for j in done.get(b, []):
                if pend is not None: p.add(stageB(pend))
                p.add(stageA(j)); pend = j
        p.add(stageB(pend))
        self.stamp(p, 6)
        self.publish(p, pf)

    def final_pre_loads(self, p):
        L = vLane
        OO = 204
        p(f"s_lshl_b32 s{sA}, s{sRt}, 6\ns_lshl_b32 s{sB}, s{sWave}, 4\ns_add_u32 s{sA}, s{sA}, s{sB}\ns_mul_i32 s{sB}, s{sCt}, 160\ns_mov_b32 s{sC}, 1280")
        for n in range(5):
            p(f"v_add_u32 v0, {64*n}, v{L}\nv_mul_u32_u24 v1, 205, v0\nv_lshrrev_b32 v1, 12, v1\nv_mul_u32_u24 v2, 20, v1\nv_sub_u32 v2, v0, v2")
            p(f"v_add_u32 v1, s{sA}, v1\nv_lshl_add_u32 v{4+n}, v2, 3, s{sB}\nv_mad_u32_u24 v{OO+n}, v1, s{sC}, v{4+n}\nv_lshlrev_b32 v{10+n}, 4, v1")
        for n in range(5):
            p(f"buffer_load_dwordx2 {V2(184+2*n)}, v{OO+n}, {S4(sX)}, 0 offen")
            p(f"global_load_dwordx2 {V2(16+2*n)}, v{4+n}, {S2(pDsk)}")
            p(f"buffer_load_dwordx4 {V4(28+4*n)}, v{10+n}, {S4(sWS)}, 0 offen sc1")
    def final_pre_compute(self, p):
        OO = 204
        for n in range(5):
            x = 184 + 2*n; d = 16 + 2*n; s_ = 28 + 4*n
            p(f"v_lshlrev_b32 v0, 16, v{x}\nv_and_b32 v1, 0xffff0000, v{x}\nv_lshlrev_b32 v2, 16, v{x+1}\nv_and_b32 v3, 0xffff0000, v{x+1}")
            p(f"v_lshlrev_b32 v4, 16, v{d}\nv_and_b32 v5, 0xffff0000, v{d}\nv_lshlrev_b32 v6, 16, v{d+1}\nv_and_b32 v7, 0xffff0000, v{d+1}")
            def rnd():
                p("v_cvt_pk_bf16_f32 v8, v0, v1\nv_cvt_pk_bf16_f32 v9, v2, v3")
                p("v_lshlrev_b32 v0, 16, v8\nv_and_b32 v1, 0xffff0000, v8\nv_lshlrev_b32 v2, 16, v9\nv_and_b32 v3, 0xffff0000, v9")
            for k in (0, 2): p(f"v_pk_add_f32 {V2(k)}, {V2(k)}, {V2(s_)} op_sel_hi:[1,0] neg_lo:[0,1] neg_hi:[0,1]")
            rnd()
            for k in (0, 2): p(f"v_pk_mul_f32 {V2(k)}, {V2(k)}, {V2(s_+2)} op_sel_hi:[1,0]")
            rnd()
            for k in (0, 2): p(f"v_pk_mul_f32 {V2(k)}, {V2(k)}, {V2(4+k)}")
            p(f"v_cvt_pk_bf16_f32 v{194+2*n}, v0, v1\nv_cvt_pk_bf16_f32 v{195+2*n}, v2, v3\nv_lshlrev_b32 v{OO+n}, 1, v{OO+n}")

    def flag_offsets(self, p, reg, div, nper, first_sgpr_expr, nl, base):
        m = {140: 1873, 144: 1821}[div]
        p(f"s_lshl_b32 s{sA}, s{sRt}, 6\ns_add_u32 s{sB}, s{sA}, 63\ns_mul_i32 s{sA}, s{sA}, {m}\ns_lshr_b32 s{sA}, s{sA}, 18\ns_mul_i32 s{sB}, s{sB}, {m}\ns_lshr_b32 s{sB}, s{sB}, 18")
        p(f"s_mul_i32 s{sA}, s{sA}, {nper}\ns_mul_i32 s{sB}, s{sB}, {nper}\ns_sub_u32 s{sB}, s{sB}, {nl}")
        p(first_sgpr_expr)
        p(f"v_min_u32 v0, {2*nl-1}, v{vLane}\nv_mov_b32 v1, s{sA}\nv_mov_b32 v2, s{sB}\nv_cmp_gt_u32 vcc, {nl}, v0\nv_cndmask_b32 v1, v2, v1, vcc")
        p(f"v_add3_u32 v0, v0, v1, s{sC}\nv_lshlrev_b32 v0, 6, v0\nv_add_u32 v{reg}, {base}, v0")

    def phase2(self, p):
        L = vLane
        AR = 80; NA = 4; C0 = 144; OO = 204
        vFG, vFS, vCR0, vCR1 = 216, 217, 218, 219
        self.final_pre_compute(p)
        self.flag_offsets(p, vFG, 140, 48, f"s_mul_i32 s{sC}, s{sWave}, 12", 12, FLAGG)
        self.flag_offsets(p, vFS, 144, 20, f"s_and_b32 s{sC}, s{sWave}, 1\ns_mul_i32 s{sC}, s{sC}, 10", 10, FLAGS)
        p(f"v_and_b32 v0, 15, v{L}\nv_lshrrev_b32 v1, 4, v{L}\nv_lshrrev_b32 v2, 1, v0\nv_xor_b32 v2, v2, v1\nv_lshlrev_b32 v2, 4, v2")
        p(f"v_lshl_add_u32 v220, v0, 7, v2")
        def cbase(i):
            sg, k = self.cslot(i)
            return [f"s_add_u32 s{sA}, s{sg}, {k}", f"v_add_u32 v{vCR0}, s{sA}, v220", f"v_xor_b32 v{vCR1}, 64, v{vCR0}"]
        p.add(cbase(0)); p.wait('c0')
        for h in range(2):
            for nb in range(5):
                p(f"ds_read_b128 {V4(C0+20*h+4*nb)}, v{vCR1 if h else vCR0} offset:{2048*nb}", tag='c0r')
        p.wait('c0r')
        for g in self.c_ops(4): p.add(g)
        self.stamp(p, 7)
        ldg = f"buffer_load_dword v{vPoll}, v{vFG}, {S4(sWS)}, 0 offen sc1"
        lds_ = f"buffer_load_dword v{vPoll}, v{vFS}, {S4(sWS)}, 0 offen sc1"
        p(ldg); p.add(self.poll_check(ldg, 1, vPoll))
        self.stamp(p, 8)
        def aload(i):
            if i == 0:
                pre = [f"s_mov_b32 s{sK2}, s{sRot2}", f"s_mul_i32 s{sD}, s{sWave}, {12*HS}", f"s_lshl_b32 s{sC}, s{sRt}, 12",
                       f"s_add_u32 s{sD}, s{sD}, s{sC}", f"s_add_u32 s{sD}, s{sD}, {H}"]
            elif i == 12:
                pre = [f"s_lshl_b32 s{sK2}, s{sRotC}, 1", f"s_mul_i32 s{sD}, s{sWave}, {10*HS}", f"s_lshl_b32 s{sC}, s{sRt}, 12",
                       f"s_add_u32 s{sD}, s{sD}, s{sC}", f"s_add_u32 s{sD}, s{sD}, {H + 48*HS}"]
            else:
                pre = [f"s_add_u32 s{sK2}, s{sK2}, 1", f"s_cmp_eq_u32 s{sK2}, {12 if i < 12 else 10}", f"s_cselect_b32 s{sK2}, 0, s{sK2}"]
            pre += [f"s_mul_i32 s{sO2}, s{sK2}, {HS}", f"s_add_u32 s{sO2}, s{sO2}, s{sD}"]
            lds = [f"buffer_load_dwordx4 {V4(AR+16*(i % NA)+4*bb)}, v{vL16}, {S4(sWS)}, s{sO2} offen offset:{1024*bb} sc1" for bb in range(4)]
            return pre, lds
        for i in range(NA - 1):
            pre, lds = aload(i); p.add(pre); p.add(lds)
        CW = 80
        mf = []; F = {}
        def put(i, g, items): F.setdefault(i * 20 + g, []).extend(items)
        for i in range(22):
            for bb in range(4):
                for nb in range(5):
                    a = 4 * (bb * 5 + nb); x = V4(AR + 16 * (i % NA) + 4 * bb)
                    if i < 12:
                        w = A4(20 * i + 4 * nb); d = V4(a)
                    else:
                        y = i - 12
                        w = V4(C0 + 20 * y + 4 * nb) if y < 2 else A4(CW + 20 * (y & 1) + 4 * nb); d = A4(a)
                    cc = '0' if i in (0, 12) else d
                    mf.append(f"v_mfma_f32_16x16x32_bf16 {d}, {w}, {x}, {cc}")
            j = i + NA - 1
            if j < 22:
                pre, lds = aload(j)
                if j == 12: put(i, 0, self.poll_check(lds_, 1, vPoll))
                put(i, 0, pre[:3]); put(i, 1, pre[3:])
                for bb in range(4): put(i, 2 + 5 * bb, [lds[bb]])
            if j == 10: put(i, 19, [lds_])
            y = i + 1 - 12
            if 2 <= y < 10:
                ch = y >> 1; h = y & 1
                if h == 0: put(i, 3, cbase(ch) + [W(f'c{ch}')])
                for nb in range(5):
                    put(i, 4 + 2 * nb, [f"ds_read_b128 {A4(CW+20*(y & 1)+4*nb)}, v{vCR1 if h else vCR0} offset:{2048*nb}"])
        p.add(interleave(mf, F))
        self.stamp(p, 9)
        WA = 80
        RA = 84
        p(f"v_and_b32 v90, 15, v{L}\nv_lshrrev_b32 v91, 4, v{L}\nv_add_u32 v90, v90, v91\ns_mul_i32 s{sA}, s{sWave}, 5120\nv_lshl_add_u32 v91, v91, 8, s{sA}")
        for k in range(4):
            p(f"v_add_u32 v92, {4*k}, v90\nv_and_b32 v92, 15, v92\nv_lshl_add_u32 v{WA+k}, v92, 4, v91")
        p(f"s_mul_i32 s{sA}, s{sWave}, 40960")
        for n in range(5):
            p(f"v_add_u32 v90, {64*n}, v{L}\nv_mul_u32_u24 v91, 205, v90\nv_lshrrev_b32 v91, 12, v91\nv_mul_u32_u24 v92, 20, v91\nv_sub_u32 v92, v90, v92")
            p(f"v_add_u32 v91, v91, v92\nv_and_b32 v91, 15, v91\nv_lshlrev_b32 v91, 4, v91\nv_lshl_add_u32 v91, v92, 8, v91\nv_add_u32 v{RA+n}, s{sA}, v91")
        p.wait('ALLLG'); p("s_barrier")
        for bb in range(4):
            if bb:
                for k in range(4): p(f"v_add_u32 v{WA+k}, 40960, v{WA+k}")
            for ac in range(2):
                for nb in range(5):
                    a = 4 * (bb * 5 + nb)
                    p(f"ds_write_b128 v{WA + (nb & 3)}, {A4(a) if ac else V4(a)} offset:{ac*20480 + nb*1024}")
        p.wait('ALLLG'); p("s_barrier")
        self.stamp(p, 10)
        def rdn(n):
            for ac in range(2):
                for s_ in range(4):
                    p(f"ds_read_b128 {V4(32*(n & 1) + 16*ac + 4*s_)}, v{RA+n} offset:{ac*20480 + s_*5120}")
        rdn(0)
        for n in range(5):
            R = 32 * (n & 1); T = 64
            for ac in range(2):
                r = R + 16 * ac
                for k in (0, 2):
                    p(f"v_pk_add_f32 {V2(r+k)}, {V2(r+k)}, {V2(r+4+k)}\nv_pk_add_f32 {V2(r+8+k)}, {V2(r+8+k)}, {V2(r+12+k)}")
                if ac == 0 and n < 4: rdn(n + 1)
                for k in (0, 2):
                    p(f"v_pk_add_f32 {V2(r+k)}, {V2(r+k)}, {V2(r+8+k)}")
            d = R; y = R + 16
            for k in range(4): p(f"v_mul_f32 v{T+k}, {NLOG2E}, v{d+k}")
            for k in range(4): p(f"v_exp_f32 v{T+k}, v{T+k}")
            x = 184 + 2*n; t = 194 + 2*n
            p(f"v_lshlrev_b32 v{T+4}, 16, v{t}\nv_and_b32 v{T+5}, 0xffff0000, v{t}\nv_lshlrev_b32 v{T+6}, 16, v{t+1}\nv_and_b32 v{T+7}, 0xffff0000, v{t+1}")
            for k in (0, 2): p(f"v_pk_add_f32 {V2(T+k)}, {V2(T+k)}, 1.0 op_sel_hi:[1,0]")
            for k in (0, 2): p(f"v_pk_add_f32 {V2(y+k)}, {V2(y+k)}, {V2(T+4+k)}")
            for k in range(4): p(f"v_rcp_f32 v{T+k}, v{T+k}")
            O = 72 + 4 * (n & 1)
            p(f"v_lshlrev_b32 v{O}, 16, v{x}\nv_and_b32 v{O+1}, 0xffff0000, v{x}\nv_lshlrev_b32 v{O+2}, 16, v{x+1}\nv_and_b32 v{O+3}, 0xffff0000, v{x+1}")
            for k in (0, 2): p(f"v_pk_mul_f32 {V2(d+k)}, {V2(d+k)}, {V2(T+k)}")
            for k in (0, 2): p(f"v_pk_fma_f32 {V2(O+k)}, {V2(y+k)}, {V2(d+k)}, {V2(O+k)}")
            p(f"buffer_store_dwordx4 {V4(O)}, v{OO+n}, {S4(sU)}, 0 offen")
        self.stamp(p, 11)
        self.stamp_flush(p)
        if self.c['endspin']:
            l = self.lab('es')
            if self.c['probe'] < 0: p("s_mov_b32 s101, 0")
            p(f"s_add_u32 s101, s101, {self.c['endspin']*100}\n{l}:\ns_memrealtime {S2(sSt)}\ns_waitcnt lgkmcnt(0)\ns_sub_u32 s{sSt}, s{sSt}, s100\ns_cmp_lt_u32 s{sSt}, s101\ns_cbranch_scc1 {l}")
        p("s_endpgm")

    def build(self, code_bytes):
        paths = []
        for ssm in (0, 1):
            p = Prog()
            self.entry(p, code_bytes)
            n0 = 'MARK'
            p("L_mark:")
            self.prologue(p, ssm)
            self.mainloop(p, ssm)
            (self.ssm_tail if ssm else self.glu_tail)(p)
            self.phase2(p)
            Lf = finalize(p)
            k = [i for i, x in enumerate(Lf) if x.text == 'L_mark:'][0]
            paths.append((Lf[:k], Lf[k+1:]))
        assert text_of(paths[0][0]) == text_of(paths[1][0])
        body = text_of(paths[0][0]) + text_of(paths[0][1]) + "L_ssm:\n" + text_of(paths[1][1]) + "L_end:\n    s_endpgm\n"
        return body

HEADER = open(os.path.join(os.path.dirname(os.path.abspath(__file__)), "..", "cdna_kernels", NAME + ".s.ref")).read().split("; Override launch")[0] \
    if os.path.exists(os.path.join(os.path.dirname(os.path.abspath(__file__)), "..", "cdna_kernels", NAME + ".s.ref")) else ""

def make(cfg, code_bytes=61440):
    body = Gen(cfg).build(code_bytes)
    return HEADER + f"""; One persistent launch: 256 workgroups x 4 waves, one per CU (generated by gen/k1.py).
; @launch grid=(256,1,1) block=(256,1,1) lds=163840
.amdgcn_target "amdgcn-amd-amdhsa--gfx950"
.text
.globl {KERN}
.p2align 8
.type {KERN},@function
{KERN}:
{body}L_code_end:
.section .rodata,"a"
.p2align 6
.amdhsa_kernel {KERN}
  .amdhsa_next_free_vgpr 512
  .amdhsa_next_free_sgpr 102
  .amdhsa_accum_offset 256
  .amdhsa_group_segment_fixed_size 0
  .amdhsa_kernarg_size 128
  .amdhsa_user_sgpr_count 2
  .amdhsa_user_sgpr_kernarg_segment_ptr 1
  .amdhsa_system_sgpr_workgroup_id_x 1
  .amdhsa_float_denorm_mode_32 3
.end_amdhsa_kernel
"""

def code_size(txt):
    import subprocess, tempfile
    with tempfile.TemporaryDirectory() as d:
        open(d + "/k.s", "w").write(txt)
        r = subprocess.run(["clang", "-x", "assembler", "-target", "amdgcn-amd-amdhsa", "-mcpu=gfx950", "-c", d + "/k.s", "-o", d + "/k.o"], capture_output=True, text=True)
        assert r.returncode == 0, r.stderr[:3000]
        r = subprocess.run(["llvm-readelf", "-S", d + "/k.o"], capture_output=True, text=True)
        for ln in r.stdout.split('\n'):
            if ' .text' in ln:
                f = ln.split(']')[1].split()
                return int(f[4], 16)

if __name__ == "__main__":
    cfg = dict(CFG)
    out = None
    for a in sys.argv[1:]:
        if '=' in a:
            k, v = a.split('='); cfg[k] = int(v)
        else: out = a
    n = code_size(make(cfg))
    txt = make(cfg, n)
    n2 = code_size(txt)
    assert abs(n2 - n) <= 64, (n, n2)
    open(out or "k.s", "w").write(txt)
    print("code bytes", n2, "source bytes", len(txt))
```

```python
import re

REG = re.compile(r'(?<![\w.])([vas])(?:(\d+)|\[(\d+):(\d+)\])(?![\w])')
TRANS = ('v_exp_f32', 'v_log_f32', 'v_rcp_f32', 'v_rsq_f32', 'v_sqrt_f32', 'v_sin_f32', 'v_cos_f32')

def regs_of(op):
    out = []
    for m in REG.finditer(op):
        k = m.group(1)
        if m.group(2) is not None: out.append((k, int(m.group(2))))
        else: out += [(k, i) for i in range(int(m.group(3)), int(m.group(4)) + 1)]
    if re.search(r'\bvcc\b', op): out += [('s', 'vcc')]
    if re.search(r'\bm0\b', op): out += [('s', 'm0')]
    if re.search(r'\bexec(_lo|_hi)?\b', op): out += [('s', 'exec')]
    return out

def split_ops(s):
    ops, depth, cur = [], 0, ''
    for ch in s:
        if ch == '[': depth += 1
        if ch == ']': depth -= 1
        if ch == ',' and depth == 0: ops.append(cur.strip()); cur = ''
        else: cur += ch
    if cur.strip(): ops.append(cur.strip())
    return ops

class I:
    __slots__ = ('text', 'mn', 'kind', 'rd', 'wr', 'tag', 'opt', 'srcc', 'ab', 'data', 'passes')
    def __init__(self, text, tag=None, opt=False):
        self.text = text; self.tag = tag; self.opt = opt
        self.srcc = set(); self.ab = set(); self.data = set(); self.passes = 0
        t = text.split(';')[0].strip()
        if t.endswith(':') or t.startswith('.') or not t:
            self.mn = ''; self.kind = 'label'; self.rd = set(); self.wr = set(); return
        p = t.split(None, 1); mn = p[0]; self.mn = mn
        ops = split_ops(p[1]) if len(p) > 1 else []
        R = [regs_of(o) for o in ops]
        flat = lambda l: set(x for r in l for x in r)
        rd, wr = set(), set()
        if mn.startswith('v_mfma'):
            k = 'mfma'; wr = set(R[0]); rd = flat(R[1:]); self.srcc = set(R[3]); self.ab = flat(R[1:3])
            self.passes = 8 if '32x32' in mn else 4
        elif mn.startswith('v_'):
            k = 'trans' if mn.replace('_e32', '').replace('_e64', '') in TRANS else 'valu'
            if mn.startswith(('v_swap', 'v_permlane')): wr = flat(R[:2]); rd = flat(R[:2])
            elif mn.startswith(('v_add_co', 'v_addc_co', 'v_sub_co')): wr = flat(R[:2]); rd = flat(R[2:])
            elif mn == 'v_nop': pass
            else:
                wr = set(R[0]); rd = flat(R[1:])
                if mn.startswith(('v_fmac', 'v_writelane')) or '_dpp' in mn: rd |= set(R[0])
        elif mn.startswith('ds_'):
            k = 'ds'
            if mn.startswith(('ds_read', 'ds_bpermute', 'ds_permute', 'ds_swizzle')): wr = set(R[0]); rd = flat(R[1:])
            else: rd = flat(R)
        elif mn.startswith(('buffer_', 'global_')):
            k = 'vmem'
            islds = bool(re.search(r'\blds\b', t)) or '_lds_' in mn
            if '_load' in mn and not islds: wr = set(R[0]); rd = flat(R[1:])
            else: rd = flat(R)
            if '_d16' in mn: rd |= set(R[0])
            if islds: rd |= {('s', 'm0')}
            if '_store' in mn and ('x4' in mn or 'x3' in mn):
                self.data = set(R[0]) if mn.startswith('buffer_') else set(R[1])
        elif mn.startswith(('s_load', 's_memtime', 's_memrealtime')):
            k = 'smem'; wr = set(R[0]); rd = flat(R[1:])
        elif mn in ('s_waitcnt', 's_barrier', 's_nop', 's_endpgm', 's_setprio', 's_sleep') or mn.startswith(('s_cbranch', 's_branch')):
            k = 'ctl'
            if 'vcc' in mn: rd = {('s', 'vcc')}
        elif mn.startswith('s_cmp') or mn.startswith('s_bitcmp'):
            k = 'salu'; rd = flat(R)
        elif mn.startswith('s_'):
            k = 'salu'; wr = set(R[0]); rd = flat(R[1:])
            if 'saveexec' in mn: wr |= {('s', 'exec')}
        elif mn == 'WAIT':
            k = 'wait'
        else:
            raise ValueError(text)
        self.kind = k; self.rd = rd; self.wr = wr

class Prog:
    def __init__(self): self.L = []
    def __call__(self, text, tag=None, opt=False):
        for ln in text.strip().split('\n'):
            ln = ln.strip()
            if ln: self.L.append(I(ln, tag, opt))
    def add(self, items):
        for x in items:
            if isinstance(x, I): self.L.append(x)
            elif isinstance(x, (list, tuple)): self.add(x)
            else: self(x)
    def wait(self, *tags): self.L.append(W(*tags))

def W(*tags):
    i = I('WAIT'); i.tag = tags; return i

def resolve_waits(L):
    out = []; vm = []; lg = []
    def need(q, pred):
        for j in range(len(q) - 1, -1, -1):
            if pred(q[j]): return j
        return None
    def emit_wait(jv, jl):
        parts = []
        nonlocal vm, lg
        if jv is not None:
            n = min(63, sum(1 for x in vm[jv + 1:] if not x.opt)); parts.append(f'vmcnt({n})')
            vm = vm[jv + 1:]
        if jl is not None:
            if any(x.kind == 'smem' for x in lg): n = 0; lg = []
            else:
                n = min(15, sum(1 for x in lg[jl + 1:] if not x.opt)); lg = lg[jl + 1:]
            parts.append(f'lgkmcnt({n})')
        if parts: out.append(I('s_waitcnt ' + ' '.join(parts)))
    for ins in L:
        if ins.kind == 'wait':
            tags = set(ins.tag)
            if 'ALLVM' in tags: jv = len(vm) - 1 if vm else None
            else: jv = need(vm, lambda x: x.tag in tags)
            if 'ALLLG' in tags: jl = len(lg) - 1 if lg else None
            else: jl = need(lg, lambda x: x.tag in tags)
            emit_wait(jv, jl); continue
        touch = ins.rd | ins.wr
        if touch:
            jv = need(vm, lambda x: x.wr & (ins.rd if ins.kind == 'vmem' else touch))
            jl = need(lg, lambda x: x.wr & (ins.rd if (ins.kind == 'ds' and x.kind == 'ds') else touch))
            emit_wait(jv, jl)
        if ins.mn == 's_waitcnt':
            m = re.search(r'vmcnt\((\d+)\)', ins.text)
            if m and int(m.group(1)) == 0 and not ins.opt: vm = []
            m = re.search(r'lgkmcnt\((\d+)\)', ins.text)
            if m and int(m.group(1)) == 0 and not ins.opt: lg = []
        out.append(ins)
        if ins.kind == 'vmem': vm.append(ins)
        if ins.kind in ('ds', 'smem'): lg.append(ins)
    return out

def states(i):
    if i.kind == 'label': return 0
    if i.mn == 's_nop': return int(i.text.split()[1]) + 1
    return 1

def vonly(s): return set(x for x in s if x[0] in 'va')
def sonly(s): return set(x for x in s if x[0] == 's')

def required(p, c):
    r = 0
    pv = p.kind in ('valu', 'trans'); cv = c.kind in ('valu', 'trans')
    if pv:
        w = vonly(p.wr)
        if c.kind == 'mfma' and w & c.rd: r = max(r, 2)
        if cv and w & c.rd:
            if c.mn.startswith('v_permlane') or '_dpp' in c.mn: r = max(r, 2)
            if c.mn.startswith(('v_readfirstlane', 'v_readlane')): r = max(r, 1)
            if p.kind == 'trans' and c.kind == 'valu': r = max(r, 1)
        if p.kind == 'trans' and c.kind in ('vmem', 'ds') and w & c.rd: r = max(r, 1)
        if p.mn.startswith('v_dot') and c.mn != p.mn and w & (c.rd | c.wr): r = max(r, 3)
        ws = sonly(p.wr)
        if ws & c.rd:
            if cv: r = max(r, 4 if c.mn.startswith(('v_readlane', 'v_writelane')) else 2)
            elif c.kind == 'vmem': r = max(r, 5)
            else: r = max(r, 2)
    if p.kind == 'mfma':
        big = {4: 8, 8: 12}[p.passes]
        if c.kind == 'mfma':
            if p.wr & c.ab: r = max(r, big)
            elif p.wr & c.srcc and not (p.wr == c.srcc and p.passes == c.passes): r = max(r, big - 2)
            elif p.wr & c.wr and not (p.wr == c.srcc): r = max(r, big - 2)
        elif c.kind in ('valu', 'trans', 'vmem', 'ds'):
            if p.wr & (c.rd | c.wr): r = max(r, big)
            if cv and p.srcc & c.wr: r = max(r, {4: 3, 8: 7}[p.passes])
    if p.kind == 'salu' and ('s', 'm0') in p.wr and c.kind == 'vmem' and ('s', 'm0') in c.rd: r = max(r, 1)
    if p.data and p.data & c.wr: r = max(r, 2 if cv else 1)
    return r

def insert_nops(L):
    out = []
    for c in L:
        if c.kind not in ('label',):
            dist = 0; pad = 0
            for p in reversed(out):
                if dist >= 12: break
                if p.kind != 'label':
                    r = required(p, c)
                    if r - dist > pad: pad = r - dist
                    if not p.opt: dist += states(p)
            if pad > 0: out.append(I(f's_nop {pad - 1}'))
        out.append(c)
    return out

def gap_time(g):
    t = 4; prev = None
    for i in g:
        if i.kind == 'label' or i.opt: continue
        if i.kind in ('salu', 'ctl', 'smem'):
            if prev is not None and prev.kind == 'vmem': t += 4
            t += 4 * states(i)
        else:
            if prev is not None and prev.kind == 'salu' and ('s', 'm0') in prev.wr and ('s', 'm0') in i.rd: t += 4
            t = max(t, 8)
            if prev is not None and prev.kind == 'ds' and i.kind == 'ds': t += 4
            t += 8 if i.kind == 'trans' else 4
        prev = i
    return t

def hoist_salu(L, reach=6):
    gaps = [[]]; mf = []
    for i in L:
        if i.kind == 'mfma': mf.append(i); gaps.append([])
        else: gaps[-1].append(i)
    def fixed(i): return i.kind == 'label' or i.opt or i.mn.startswith(('s_cbranch', 's_branch'))
    def movable(i): return i.kind == 'salu' and not i.opt and ('s', 'exec') not in i.wr
    def conflict(a, b): return bool(a.wr & (b.rd | b.wr)) or bool(a.rd & b.wr)
    def front(g):
        for k in range(1, len(g)):
            if movable(g[k]):
                j = k
                while j > 0 and (g[j-1].kind in ('ds', 'vmem', 'valu', 'trans') or g[j-1].mn == 's_waitcnt') and not g[j-1].opt and not conflict(g[j], g[j-1]):
                    g[j-1], g[j] = g[j], g[j-1]; j -= 1
    def push(n, depth):
        g = gaps[n]
        if not g or not movable(g[0]) or n <= 1 or depth > reach or len(gaps[n-1]) > 8: return False
        x = g[0]; e = gaps[n-1]
        if e and fixed(e[-1]) and e[-1].kind != 'label': return False
        old = gap_time(e)
        e.append(x); g.pop(0); front(e)
        while gap_time(e) > max(16, old):
            if not push(n - 1, depth + 1):
                if x in e: e.remove(x); g.insert(0, x); return False
                return True
        return True
    for n in range(1, len(gaps) - 1):
        if len(gaps[n]) > 12: continue
        front(gaps[n])
        while gap_time(gaps[n]) > 16:
            t = gap_time(gaps[n])
            if gap_time(gaps[n][1:]) >= t and not (len(gaps[n]) > 1 and movable(gaps[n][1])): break
            if not push(n, 0): break
    out = list(gaps[0])
    for m, g in zip(mf, gaps[1:]): out.append(m); out += g
    return out

def finalize(prog):
    L = insert_nops(hoist_salu(resolve_waits(prog.L)))
    return L

def text_of(L):
    return '\n'.join((i.text if i.kind == 'label' else '    ' + i.text) for i in L) + '\n'

def interleave(main, fills):
    out = []
    for i, m in enumerate(main):
        out.append(m)
        out += fills.get(i, [])
    return out
```

```python
import sys, os
sys.path.insert(0, os.path.dirname(os.path.abspath(__file__)))
from fw import *

NAME = "recurrent_scan__ssm_conv_s5__glu_gated_glu__prompt"
KERN = NAME + "_kernel"

CFG = dict(
    rot=1,
    poll_stage=3,
    wd_mid=4,
    wd_late=17,
    g_epi=2,
    s_p1=1,
    s_sh=11,
    s_p2=0,
    pub=8,
    c4loop=1,
    bw=0, x_nodma=0, x_nobar=0, x_noa=0, cyc=0, map2=0,
    head=3,
    touch=2,
    outmode=0,
    pre1=6,
    stamps=0,
    rot2=1,
    endspin=0,
    probe=-1,
    chase=0,
)

STATG = 0
CSUM = STATG + 2368 * 16
ARR = CSUM + 320 * 16
EPOCH = ARR + 4096
STATS = EPOCH + 256
CARRY = STATS + 18 * 1152 + 128 - ((18 * 1152) % 128)
CARRY = (CARRY + 255) // 256 * 256
FLAGG = CARRY + 320 * 256
FLAGS = FLAGG + 16 * 48 * 64
WD = (FLAGS + 16 * 20 * 64 + 4095) // 4096 * 4096
HS = 140 * 1024
H = WD + 8 * 52 * 5 * 1024
WS_END = H + 88 * HS
STAMP = WS_END
WS_SIZE = WS_END + 1024 * 256
OOB = 0x7ff00000

STG = 51200; XIMG = 18432
SPARE = 3 * STG
L_WDST = SPARE
L_DUMMY = SPARE + 8192
L_STAT = SPARE

pX, pLre, pLim, pBre, pBim, pCre, pCim, pLdt = 4, 6, 8, 10, 12, 14, 16, 18
pDsk, pBx, pWg, pWu, pWd, pOut, pDbg, pWs = 20, 22, 24, 26, 28, 30, 32, 34
sX, sW0, sW1, sWS, sT, sU = 36, 40, 44, 48, 52, 56
sWave, sCg, sRg, sRt, sCt = 60, 61, 62, 63, 64
sOffX, sOffW, sChunk, sM0X, sM0W = 65, 66, 67, 68, 69
sM0H = 70
sA, sB, sC, sD = 73, 74, 75, 76
sK2, sO2, sCo, sSpin = 77, 78, 79, 80
sCslot = 81
sTag = 82
sPar = 83
sMask = 84
sQ1, sQ2, sQ3 = 86, 88, 90
sSt = 92
sHo = 94
sFlag = 95
sRot2 = 96
sRotC = 97
sCw = 3
sKC = 67

def S4(r): return f"s[{r}:{r+3}]"
def S2(r): return f"s[{r}:{r+1}]"
def V4(r): return f"v[{r}:{r+3}]"
def V2(r): return f"v[{r}:{r+1}]"
def A4(r): return f"a[{r}:{r+3}]"

def acc(b, t): return 16 * b + 4 * t
XR = 144; NXR = 6
def xr(B): return XR + 4 * (B % NXR)
def wb(par, t): return 168 + 16 * par + 4 * t
vXD = 200; vWDm = 205
vXR0, vXR1, vWR0, vWR1 = 209, 210, 211, 212
vL16, vL16b, vLane = 213, 214, 215
LAM, COEF, L18, L36, F36, CS = 216, 220, 224, 228, 232, 244
GST, GK1, GHA = 216, 234, 244
XF, TT = 184, 216
vWA, vRA, vT2 = 204, 206, 208
vSR, vDr, vBI, vOO, vFG, vFS, vCR0, vCR1, vCpat = 236, 240, 241, 242, 243, 248, 245, 246, 247
vPoll, vCD0, vCD1, vTmp = 252, 253, 254, 255

LOG2E = 0x3fb8aa3b
NLOG2E = 0xbfb8aa3b
INV2PI = 0x3e22f983
INV640 = 0x3acccccd
EPS = 0x3727c5ac

class Seq:
    def __init__(self): self.items = []
    def __call__(self, text, tag=None): self.items.append([I(x.strip(), tag) for x in text.strip().split('\n')])
    def add(self, l): self.items.append(list(l))

class Gen:
    def __init__(self, cfg):
        self.c = cfg
        self.nlab = 0
        self.nstamp = 0
        self.light = {}

    def lab(self, s):
        self.nlab += 1
        return f"L_{s}_{self.nlab}"

    def stamp(self, p, idx):
        if self.c['probe'] == idx:
            p(f"s_memrealtime {S2(sSt)}\ns_waitcnt lgkmcnt(0)\ns_sub_u32 s101, s{sSt}, s100")
        if not self.c['stamps']: return
        if idx >= 20:
            r = [4, 6, 8, 10, 12, 14, 16, 18, 22, 24, 26, 28, 30, 32, 34][idx - 20]
            i = I(f"{'s_memtime' if self.c['cyc'] else 's_memrealtime'} {S2(r)}"); i.kind = 'ctl'; i.wr = set(); i.rd = set()
            p.L.append(i); self.light[idx] = r
            return
        p(f"{'s_memtime' if (idx >= 20 and self.c['cyc']) else 's_memrealtime'} {S2(sSt)}")
        if idx < 20: p(f"s_memtime s[0:1]")
        p("s_waitcnt lgkmcnt(0)")
        p(f"v_writelane_b32 v251, s{sSt}, {idx}")
        if idx < 20: p(f"v_writelane_b32 v251, s0, {40 + idx}")

    def stamp_flush(self, p):
        if not self.c['stamps']: return
        p(f"s_lshl_b32 s{sA}, s2, 2\ns_add_u32 s{sA}, s{sA}, s{sWave}\ns_lshl_b32 s{sA}, s{sA}, 8\ns_add_u32 s{sA}, s{sA}, {STAMP}")
        p(f"v_writelane_b32 v251, s100, 39")
        p("s_waitcnt lgkmcnt(0)")
        for k_, r_ in self.light.items(): p(f"v_writelane_b32 v251, s{r_}, {k_}")
        p(f"v_lshlrev_b32 v250, 2, v{vLane}")
        p(f"buffer_store_dword v251, v250, {S4(sWS)}, s{sA} offen")

    def cmul(self, d, a, b):
        return [f"v_pk_mul_f32 {V2(d)}, {V2(a)}, {V2(b)}",
                f"v_pk_mul_f32 {V2(d+2)}, {V2(a)}, {V2(b+2)}",
                f"v_pk_fma_f32 {V2(d)}, {V2(a+2)}, {V2(b+2)}, {V2(d)} neg_lo:[1,0,0] neg_hi:[1,0,0]",
                f"v_pk_fma_f32 {V2(d+2)}, {V2(a+2)}, {V2(b)}, {V2(d+2)}"]
    def cfma(self, d, a, b, c):
        return [f"v_pk_fma_f32 {V2(d)}, {V2(a)}, {V2(b)}, {V2(c)}",
                f"v_pk_fma_f32 {V2(d+2)}, {V2(a)}, {V2(b+2)}, {V2(c+2)}",
                f"v_pk_fma_f32 {V2(d)}, {V2(a+2)}, {V2(b+2)}, {V2(d)} neg_lo:[1,0,0] neg_hi:[1,0,0]",
                f"v_pk_fma_f32 {V2(d+2)}, {V2(a+2)}, {V2(b)}, {V2(d+2)}"]
    def csel(self, d, f, t, mask):
        return [f"v_cndmask_b32 v{d+i}, v{f+i}, v{t+i}, {S2(mask)}" for i in range(4)]
    def cone(self, d):
        return [f"v_mov_b32 v{d}, 1.0", f"v_mov_b32 v{d+1}, 1.0", f"v_mov_b32 v{d+2}, 0", f"v_mov_b32 v{d+3}, 0"]
    def bfr(self, d, a):
        return [f"v_cvt_pk_bf16_f32 v{d}, v{a}, v{a}", f"v_lshlrev_b32 v{d}, 16, v{d}"]

    def entry(self, p, code_bytes):
        if self.c['endspin'] or self.c['stamps']: p("s_memrealtime s[100:101]")
        p(f"s_cmp_ge_u32 s2, 256\ns_cbranch_scc1 L_end")
        p(f"s_load_dwordx16 s[4:19], s[0:1], 0\ns_load_dwordx16 s[20:35], s[0:1], 64")
        per = (code_bytes + 32 * 128 - 1) // (32 * 128)
        assert per <= 64
        p(f"s_getpc_b64 {S2(sMask)}")
        p(f"s_lshr_b32 s{sB}, s2, 3\ns_mul_i32 s{sA}, s{sB}, {per*128}")
        p(f"v_min_u32 v1, {per-1}, v0\nv_lshl_add_u32 v1, v1, 7, s{sA}")
        p(f"v_min_u32 v1, {max(0, code_bytes - 256)}, v1")
        p(f"v_lshrrev_b32 v2, 6, v0\nv_and_b32 v{vLane}, 63, v0")
        p(f"global_load_dword a240, v1, {S2(sMask)}")
        p(f"v_readfirstlane_b32 s{sWave}, v2")
        if self.c['stamps']: p("v_mov_b32 v251, 0")
        p(f"s_and_b32 s{sA}, s2, 7\ns_lshl_b32 s{sA}, s{sA}, 5\ns_add_u32 s{sA}, s{sA}, s{sB}")
        p(f"s_and_b32 s{sCt}, s{sA}, 7\ns_lshr_b32 s{sRt}, s{sA}, 3")
        p(f"s_sub_u32 s{sB}, s{sA}, 136\ns_mul_i32 s{sC}, s{sB}, 147\ns_lshr_b32 s{sC}, s{sC}, 10")
        p(f"s_mul_i32 s{sD}, s{sC}, 7\ns_sub_u32 s{sB}, s{sB}, s{sD}\ns_add_u32 s{sB}, s{sB}, 8\ns_sub_u32 s{sC}, 16, s{sC}")
        p(f"s_cmp_ge_u32 s{sA}, 136\ns_cselect_b32 s{sCg}, s{sC}, s{sRt}\ns_cselect_b32 s{sRg}, s{sB}, s{sCt}")
        p(f"s_cmp_eq_u32 s{sA}, 255\ns_cselect_b32 s{sCg}, 0, s{sCg}\ns_cselect_b32 s{sRg}, 15, s{sRg}")
        if self.c['map2']:
            p(f"s_lshr_b32 s{sRt}, s{sA}, 6\ns_lshl_b32 s{sRt}, s{sRt}, 3\ns_bfe_u32 s{sB}, s{sA}, 0x30002\ns_add_u32 s{sRt}, s{sRt}, s{sB}")
            p(f"s_bfe_u32 s{sB}, s{sA}, 0x10005\ns_lshl_b32 s{sB}, s{sB}, 2\ns_and_b32 s{sCt}, s{sA}, 3\ns_add_u32 s{sCt}, s{sCt}, s{sB}")
        r = self.c['rot']
        if r == 1:
            p(f"s_mul_i32 s{sPar}, s{sCg}, 3\ns_add_u32 s{sPar}, s{sPar}, s{sRg}")
            p(f"s_mul_i32 s{sA}, s{sPar}, 205\ns_lshr_b32 s{sA}, s{sA}, 11\ns_mul_i32 s{sA}, s{sA}, 10\ns_sub_u32 s{sPar}, s{sPar}, s{sA}")
        elif r == 2:
            p(f"s_add_u32 s{sPar}, s{sCg}, s{sRg}\ns_and_b32 s{sPar}, s{sPar}, 1")
        elif r == 3:
            p(f"s_lshl_b32 s{sPar}, s{sCg}, 1\ns_add_u32 s{sPar}, s{sPar}, s{sRg}")
            p(f"s_mul_i32 s{sA}, s{sPar}, 205\ns_lshr_b32 s{sA}, s{sA}, 10\ns_mul_i32 s{sA}, s{sA}, 5\ns_sub_u32 s{sPar}, s{sPar}, s{sA}")
        elif r == 4:
            p(f"s_add_u32 s{sPar}, s{sCg}, s{sRg}\ns_and_b32 s{sPar}, s{sPar}, 3")
        p(f"s_and_b32 s{sA}, s{sCg}, 3\ns_lshr_b32 s{sB}, s{sCg}, 2\ns_cmp_eq_u32 s{sCg}, 16\ns_cselect_b32 s{sA}, 3, s{sA}")
        p(f"s_sub_u32 s{sC}, s{sCg}, s{sB}\ns_cmp_eq_u32 s{sA}, 3\ns_cselect_b32 s{sCg}, s{sB}, s{sC}")
        p("s_cbranch_scc1 L_ssm")

    def chunk_ops(self, s, ssm):
        r = self.c['rot']; ws = 128 if ssm else 196608
        if r == 0: return [f"s_mov_b32 s{sOffX}, {s*128}", f"s_mov_b32 s{sOffW}, {s*ws}"]
        if r in (1, 3):
            n = 10 if r == 1 else 5
            o = [] if s == 0 else [f"s_add_u32 s{sPar}, s{sPar}, 1", f"s_cmp_eq_u32 s{sPar}, {n}", f"s_cselect_b32 s{sPar}, 0, s{sPar}"]
            k = sPar
            if r == 3 and s >= 5: o.append(f"s_add_u32 s{sChunk}, s{sPar}, 5"); k = sChunk
        elif r == 2:
            o = [f"s_xor_b32 s{sChunk}, s{sPar}, {s}"]; k = sChunk
        else:
            if s < 2: o = [f"s_and_b32 s{sChunk}, s{sPar}, 1", f"s_xor_b32 s{sChunk}, s{sChunk}, {s}"]
            else: o = [f"s_xor_b32 s{sChunk}, s{sPar}, {s-2}", f"s_add_u32 s{sChunk}, s{sChunk}, 2"]
            k = sChunk
        return o + [f"s_lshl_b32 s{sOffX}, s{k}, 7", f"s_mul_i32 s{sOffW}, s{k}, {ws}"]

    def prologue(self, p, ssm):
        L = vLane; c = self.c
        t0, t1, t2, t3, t4, t5 = 0, 1, 2, 3, 4, 5
        p(f"s_mov_b32 s{sD}, 1280\ns_lshl_b32 s{sA}, s2, 3\ns_lshl_b32 s{sB}, s{sWave}, 2\ns_add_u32 s{sA}, s{sA}, s{sB}\ns_lshl_b32 s{sB}, s2, 2")
        p(f"s_cmp_ge_u32 s{sWave}, 2\ns_cselect_b32 s{sA}, s{sB}, s{sA}\ns_cselect_b32 s{sT+2}, 0, {2621440-819200}\ns_add_u32 s{sT+2}, s{sT+2}, 819200")
        p(f"v_lshlrev_b32 v{vL16}, 4, v{L}\nv_lshrrev_b32 v7, 4, v{L}\nv_add_u32 v7, s{sA}, v7\nv_and_b32 v{t0}, 0xff, v{vL16}\nv_mad_u32_u24 v6, v7, s{sD}, v{t0}")
        p(f"s_mul_i32 s{sK2}, s2, 205\ns_lshr_b32 s{sK2}, s{sK2}, 10\ns_mul_i32 s{sB}, s{sK2}, 5\ns_sub_u32 s{sO2}, s2, s{sB}")
        p(f"s_mul_i32 s{sA}, s{sK2}, {32*1280}\ns_lshl_b32 s{sB}, s{sO2}, 8\ns_add_u32 s{sA}, s{sA}, s{sB}\ns_lshl_b32 s{sB}, s{sWave}, 6\ns_add_u32 s{sA}, s{sA}, s{sB}")
        p(f"v_lshrrev_b32 v{t0}, 2, v{L}\nv_and_b32 v{t2}, 48, v{vL16}\nv_mad_u32_u24 v8, v{t0}, s{sD}, v{t2}\nv_add_u32 v8, s{sA}, v8")
        p(f"v_add_u32 v9, {16*1280-1024}, v8\nv_mov_b32 v11, {EPOCH}")
        p(f"s_lshl_b32 s{sA}, s{sWave}, 11\ns_add_u32 m0, s{sA}, {L_WDST}")
        p(f"s_lshl_b32 s{sCw}, s{sCg}, 2\ns_add_u32 s{sCw}, s{sCw}, s{sWave}")
        if ssm:
            p(f"s_lshl_b32 s{sA}, s{sCw}, 5")
            p(f"v_bfe_u32 v{t0}, v{L}, 2, 2\nv_and_b32 v{t2}, 3, v{L}\nv_lshl_add_u32 v{t0}, v{t0}, 3, v{t2}\nv_add_lshl_u32 v10, v{t0}, s{sA}, 1")
        for r_, n in ((sX, 2621440), (sW0, 819200 if ssm else 1966080), (sW1, 819200 if ssm else 1966080), (sWS, WS_SIZE), (sU, 1966080)):
            p(f"s_mov_b32 s{r_+2}, {n}\ns_mov_b32 s{r_+3}, 0x20000")
        p(f"s_mov_b32 s{sT+3}, 0x20000")
        NS = 36 if ssm else 35
        p(f"s_mul_i32 s{sA}, s{sWave}, {NS}\ns_mul_i32 s{sB}, s{sRg}, {144 if ssm else 140}")
        p(f"v_lshrrev_b32 v{t0}, 3, v{L}\nv_and_b32 v{t1}, 7, v{L}\nv_add_u32 v{t0}, s{sA}, v{t0}")
        for n in (0, 1, 4):
            if n: p(f"v_add_u32 v{t0}, {8 if n == 1 else NS - 16}, v{t0}")
            p(f"v_bfe_u32 v{t2}, v{t0}, 1, 3\nv_xor_b32 v{t2}, v{t2}, v{t1}")
            if ssm:
                p(f"v_bfe_u32 v{t3}, v{t0}, 2, 2\nv_mul_u32_u24 v{t3}, 36, v{t3}")
                p(f"v_and_b32 v{t4}, 1, v{t0}\nv_mad_u32_u24 v{t3}, v{t4}, 18, v{t3}")
                p(f"v_lshrrev_b32 v{t4}, 4, v{t0}\nv_lshl_add_u32 v{t3}, v{t4}, 1, v{t3}")
                p(f"v_bfe_u32 v{t4}, v{t0}, 1, 1\nv_add3_u32 v{t3}, v{t3}, v{t4}, s{sB}")
            else:
                p(f"v_add_u32 v{t3}, s{sB}, v{t0}")
            p(f"v_lshlrev_b32 v{t2}, 4, v{t2}\nv_mad_u32_u24 v{vXD+n}, v{t3}, s{sD}, v{t2}")
        step = (2 if ssm else 16) * 1280
        p(f"v_subrev_u32 v{vXD+1}, 1024, v{vXD+1}\nv_add_u32 v{vXD+2}, {step-2048}, v{vXD}\nv_add_u32 v{vXD+3}, {step-2048}, v{vXD+1}\nv_subrev_u32 v{vXD+4}, {(NS-8)*128}, v{vXD+4}")
        if ssm:
            p(f"s_lshl_b32 s{sA}, s{sCw}, 5")
            p(f"v_lshrrev_b32 v{t0}, 5, v{L}\nv_lshlrev_b32 v{t0}, 3, v{t0}\nv_bfe_u32 v{t2}, v{L}, 3, 2\nv_add3_u32 v{t0}, v{t0}, v{t2}, s{sA}")
            p(f"v_lshrrev_b32 v{t2}, 4, v{L}\nv_xor_b32 v{t2}, v{t2}, v{t1}\nv_lshlrev_b32 v{t2}, 4, v{t2}")
            p(f"v_mad_u32_u24 v{vWDm}, v{t0}, s{sD}, v{t2}")
            p(f"v_xor_b32 v{t2}, 64, v{vWDm}\nv_add_u32 v{vWDm+1}, {16*1280-1024}, v{t2}")
            p(f"v_add_u32 v{vWDm+2}, {4*1280-2048}, v{vWDm}\nv_add_u32 v{vWDm+3}, {4*1280-2048}, v{vWDm+1}")
            p(f"s_mul_i32 s{sM0W}, s{sWave}, 8192")
        else:
            p(f"s_mul_i32 s{sA}, s{sWave}, {16*3072}\ns_lshl_b32 s{sB}, s{sCg}, 8\ns_add_u32 s{sA}, s{sA}, s{sB}\ns_mov_b32 s{sC}, 3072")
            p(f"v_lshrrev_b32 v{t0}, 4, v{L}\nv_and_b32 v{t2}, 15, v{L}\nv_lshlrev_b32 v{t3}, 1, v{t0}\nv_xor_b32 v{t2}, v{t2}, v{t3}\nv_lshlrev_b32 v{t2}, 4, v{t2}")
            p(f"v_mad_u32_u24 v{t2}, v{t0}, s{sC}, v{t2}\nv_add_u32 v{vWDm}, s{sA}, v{t2}")
            p(f"v_add_u32 v{vWDm+1}, {4*3072-1024}, v{vWDm}")
            p(f"v_xor_b32 v{t2}, 128, v{vWDm}\nv_add_u32 v{vWDm+2}, {8*3072-2048}, v{t2}\nv_add_u32 v{vWDm+3}, {12*3072-3072}, v{t2}")
            p(f"s_mul_i32 s{sM0W}, s{sWave}, 4096")
        p(f"s_add_u32 s{sM0W}, s{sM0W}, {XIMG}\ns_mul_i32 s{sM0X}, s{sWave}, {NS*128}")
        p("s_waitcnt lgkmcnt(0)")
        self.stamp(p, 0)
        if c['bw']:
            p(f"s_lshl_b32 s{sA}, s2, 2\ns_add_u32 s{sA}, s{sA}, s{sWave}")
            p(f"s_waitcnt vmcnt(0)\ns_memrealtime {S2(sQ1)}\ns_waitcnt lgkmcnt(0)")
            k = 0
            for ptr, nbytes in ((pX, 2621440), (pWg, 1966080), (pWu, 1966080), (pWd, 1966080), (pBre, 819200), (pBim, 819200), (pCre, 819200), (pCim, 819200))[:c['bw']]:
                per = nbytes // 1024
                p(f"s_mul_i32 s{sB}, s{sA}, {per}")
                for o in range(0, per, 1024):
                    p(f"v_add_u32 v12, {o}, v{vL16}\nv_min_u32 v12, {per-16}, v12\nv_add_u32 v12, s{sB}, v12\nglobal_load_dwordx4 a[{4*k}:{4*k+3}], v12, {S2(ptr)}"); k += 1
            p(f"s_waitcnt vmcnt(0)\ns_memrealtime {S2(sSt)}\ns_waitcnt lgkmcnt(0)\ns_sub_u32 s101, s{sSt}, s{sQ1}")
            self.stamp(p, 12)
        if c['chase']:
            ptr = c['chase']
            p(f"s_lshl_b32 s{sA}, s2, 2\ns_add_u32 s{sA}, s{sA}, s{sWave}\ns_lshl_b32 s{sA}, s{sA}, 11\nv_mov_b32 v14, s{sA}")
            p(f"s_waitcnt vmcnt(0)\ns_memrealtime {S2(sQ1)}\ns_waitcnt lgkmcnt(0)")
            for i in range(16):
                p(f"global_load_dword v12, v14, {S2(ptr)} offset:{128*i}\ns_waitcnt vmcnt(0)")
            p(f"s_memrealtime {S2(sSt)}\ns_waitcnt lgkmcnt(0)\ns_sub_u32 s101, s{sSt}, s{sQ1}")
        p(f"s_cmp_eq_u32 s{sWave}, 2\ns_cselect_b64 {S2(sT)}, {S2(pBre)}, {S2(pBim)}\ns_cmp_lt_u32 s{sWave}, 2\ns_cselect_b64 {S2(sT)}, {S2(pX)}, {S2(sT)}")
        side = []
        for j in range(5):
            side.append(f"buffer_load_dwordx4 {V4(16+4*j)}, v6, {S4(sT)}, 0 offen offset:{256*j}")
        side.append(I(f"buffer_load_dwordx4 v8, {S4(sU)}, 0 offen lds", 'wdst'))
        side.append(I(f"buffer_load_dwordx4 v9, {S4(sU)}, 0 offen offset:1024 lds", 'wdst'))
        p(f"s_mov_b64 {S2(sU)}, {S2(pWd)}\ns_mov_b64 {S2(sX)}, {S2(pX)}\ns_mov_b64 {S2(sWS)}, {S2(pWs)}")
        p(f"s_mov_b64 {S2(sW0)}, {S2(pBre if ssm else pWg)}\ns_mov_b64 {S2(sW1)}, {S2(pBim if ssm else pWu)}")
        if ssm:
            for i, ptr in enumerate((pLre, pLim, pLdt)):
                p(f"global_load_ushort v{100+2*i}, v10, {S2(ptr)}\nglobal_load_ushort v{101+2*i}, v10, {S2(ptr)} offset:8")
        p.add(side)
        p(f"buffer_load_dword v15, v11, {S4(sWS)}, 0 offen sc1")
        dq = self.dma_stage(0, ssm) + self.dma_stage(1, ssm)
        npre = 13 + c['pre1']; self.dq_rest = dq[npre:]; dq = dq[:npre]
        q = Seq()
        q(f"v_add_u32 v{vL16b}, 0x1000, v{vL16}")
        q(f"v_and_b32 v{t0}, 15, v{L}\nv_lshrrev_b32 v{t1}, 4, v{L}\nv_lshrrev_b32 v{t2}, 1, v{t0}\nv_xor_b32 v{t2}, v{t2}, v{t1}\nv_lshlrev_b32 v{t2}, 4, v{t2}")
        q(f"v_lshl_add_u32 v{vXR0}, v{t0}, 7, v{t2}\nv_xor_b32 v{vXR1}, 64, v{vXR0}")
        if ssm:
            q(f"v_add_u32 v{vWR0}, s{sM0W}, v{vXR0}\nv_add_u32 v{vWR1}, s{sM0W}, v{vXR1}")
        else:
            q(f"v_bfe_u32 v{t0}, v{L}, 2, 3\ns_lshl_b32 s{sA}, s{sWave}, 1\nv_xor_b32 v{t0}, s{sA}, v{t0}\nv_lshlrev_b32 v{t0}, 5, v{t0}")
            q(f"v_and_b32 v{t2}, 3, v{L}\nv_lshl_add_u32 v{t0}, v{t2}, 3, v{t0}")
            q(f"v_bfe_u32 v{t2}, v{L}, 2, 2\nv_lshl_add_u32 v{t2}, v{t1}, 3, v{t2}\nv_lshl_add_u32 v{t0}, v{t2}, 8, v{t0}")
            q(f"v_add_u32 v{vWR0}, {XIMG}, v{t0}\nv_xor_b32 v{vWR1}, 32, v{vWR0}")
            q(f"v_mov_b32 v12, 0x3f803f80\nv_mov_b32 v13, 0x3f803f80\nv_lshlrev_b32 v{t0}, 3, v{L}\nv_add_u32 v{t2}, {STG}, v{t0}\nv_add_u32 v{t3}, {2*STG}, v{t0}")
            for r_ in (t0, t2, t3): q(f"ds_write_b64 v{r_}, v[12:13] offset:{140*128}", tag='ones')
        q(f"s_mul_i32 s{sA}, s{sCt}, {80*1280}")
        q(f"v_lshrrev_b32 v{t0}, 3, v{L}\nv_and_b32 v{t2}, 7, v{L}\nv_lshrrev_b32 v{t3}, 4, v{L}\nv_xor_b32 v{t2}, v{t2}, v{t3}\nv_lshlrev_b32 v{t2}, 4, v{t2}")
        q(f"v_mad_u32_u24 v{t0}, v{t0}, s{sD}, v{t2}\nv_add_u32 v{vCD0}, s{sA}, v{t0}\nv_xor_b32 v{t0}, 64, v{vCD0}\nv_add_u32 v{vCD1}, {8*1280-1024}, v{t0}")
        q(f"s_mul_i32 s{sCslot}, s{sWave}, 10240")
        if c['rot2'] and c['map2']:
            q(f"s_and_b32 s{sA}, s{sCt}, 3\ns_and_b32 s{sC}, s{sRt}, 7\ns_mul_i32 s{sRot2}, s{sC}, 3\ns_lshr_b32 s{sRot2}, s{sRot2}, 1\ns_mul_i32 s{sB}, s{sA}, 3\ns_add_u32 s{sRot2}, s{sRot2}, s{sB}")
            q(f"s_cmp_ge_u32 s{sRot2}, 12\ns_cselect_b32 s{sB}, 12, 0\ns_sub_u32 s{sRot2}, s{sRot2}, s{sB}")
            q(f"s_mul_i32 s{sRotC}, s{sC}, 5\ns_lshr_b32 s{sRotC}, s{sRotC}, 3\ns_add_u32 s{sRotC}, s{sRotC}, s{sA}")
            q(f"s_cmp_ge_u32 s{sRotC}, 5\ns_cselect_b32 s{sB}, 5, 0\ns_sub_u32 s{sRotC}, s{sRotC}, s{sB}")
        elif c['rot2']:
            q(f"s_and_b32 s{sA}, s{sRt}, 3\ns_mul_i32 s{sRot2}, s{sCt}, 3\ns_lshr_b32 s{sRot2}, s{sRot2}, 1\ns_mul_i32 s{sB}, s{sA}, 3\ns_add_u32 s{sRot2}, s{sRot2}, s{sB}")
            q(f"s_cmp_ge_u32 s{sRot2}, 12\ns_cselect_b32 s{sB}, 12, 0\ns_sub_u32 s{sRot2}, s{sRot2}, s{sB}")
            q(f"s_mul_i32 s{sRotC}, s{sCt}, 5\ns_lshr_b32 s{sRotC}, s{sRotC}, 3\ns_add_u32 s{sRotC}, s{sRotC}, s{sA}")
            q(f"s_cmp_ge_u32 s{sRotC}, 5\ns_cselect_b32 s{sB}, 5, 0\ns_sub_u32 s{sRotC}, s{sRotC}, s{sB}")
        else:
            q(f"s_mov_b32 s{sRot2}, 0\ns_mov_b32 s{sRotC}, 0")
        q(f"s_mul_i32 s{sB}, s{sRg}, {20 if ssm else 48}\ns_add_u32 s{sB}, s{sB}, s{sCw}\ns_lshl_b32 s{sB}, s{sB}, 6\ns_add_u32 s{sFlag}, s{sB}, {FLAGS if ssm else FLAGG}")
        q(f"s_mul_i32 s{sHo}, s{sCw}, {HS}\ns_add_u32 s{sHo}, s{sHo}, {H + (48*HS if ssm else 0)}")
        self.side_addr(q)
        nfree = len(q.items)
        if ssm: self.ssm_consts(q)
        self.side_stats(q)
        q(f"v_readfirstlane_b32 s{sTag}, v15\ns_nop 1\ns_mul_i32 s{sTag}, s{sTag}, 1664525\ns_add_u32 s{sTag}, s{sTag}, 1013904223")
        items = q.items; nh = c['head']
        for g in dq[:nh]: p.add(g)
        dq = dq[nh:]
        tot = sum(len(x) for x in items); k = 0; cnt = 0
        for it in items:
            p.add(it); cnt += len(it)
            while k < len(dq) and cnt * len(dq) >= (k + 1) * tot: p.add(dq[k]); k += 1
        while k < len(dq): p.add(dq[k]); k += 1
        self.side_store(p, ssm)
        p(f"s_cmp_lt_u32 s{sWave}, 2\ns_cselect_b64 {S2(sT)}, {S2(pCre)}, {S2(pCim)}\ns_mov_b32 s{sT+2}, 819200")
        p(f"s_mov_b64 {S2(sU)}, {S2(pOut)}\ns_mov_b32 s{sU+2}, 5242880")

    def side_addr(self, q):
        L = vLane
        q(f"s_cmp_lt_u32 s{sWave}, 2\ns_cselect_b32 s{sB}, 0, 1408\ns_cselect_b32 s{sC}, 0, 2048\ns_cselect_b32 s{sA}, 0, {OOB}\n"
          f"v_lshl_add_u32 v40, v7, 4, s{sA}\nv_add_u32 v44, s{sB}, v7\nv_cmp_gt_u32 {S2(sMask)}, s{sC}, v44")
        q(f"s_mov_b32 s{sA}, 1821\nv_mul_u32_u24 v1, s{sA}, v44\nv_lshrrev_b32 v1, 18, v1")
        q(f"v_mul_u32_u24 v2, 144, v1\nv_sub_u32 v2, v44, v2\nv_mul_u32_u24 v3, 57, v2\nv_lshrrev_b32 v3, 10, v3")
        q(f"v_mul_u32_u24 v4, 18, v3\nv_sub_u32 v4, v2, v4")
        q(f"v_lshrrev_b32 v5, 1, v3\nv_lshl_add_u32 v1, v1, 2, v5\nv_mul_u32_u24 v1, 72, v1")
        q(f"v_and_b32 v3, 1, v3\nv_lshl_add_u32 v3, v4, 1, v3\nv_add_lshl_u32 v1, v1, v3, 2\nv_add_u32 v1, {STATS}, v1")
        q(f"v_lshrrev_b32 v2, 3, v7\nv_and_b32 v3, 3, v7\nv_lshl_add_u32 v2, v2, 2, v3\nv_and_b32 v3, 4, v7\nv_lshl_add_u32 v2, v2, 4, v3")
        q(f"s_lshl_b32 s{sA}, s{sWave}, 3\ns_add_u32 s{sA}, s{sA}, {CSUM - 16}\nv_add_u32 v2, s{sA}, v2\nv_mov_b32 v3, {OOB}")
        q(f"v_cndmask_b32 v41, v1, v2, {S2(sMask)}\nv_cndmask_b32 v42, v1, v3, {S2(sMask)}")
        q(f"s_lshl_b32 s{sA}, s{sWave}, 11\ns_add_u32 s{sA}, s{sA}, {L_WDST}\n"
          f"v_lshrrev_b32 v0, 2, v{L}\nv_and_b32 v1, 3, v{L}\nv_lshlrev_b32 v1, 3, v1\nv_lshl_add_u32 v0, v0, 6, v1\nv_add_u32 v43, s{sA}, v0")
        for nbl in range(2):
            q(f"s_lshl_b32 s{sA}, s{sO2}, 3\ns_lshl_b32 s{sB}, s{sWave}, 1\ns_add_u32 s{sA}, s{sA}, s{sB}\ns_add_u32 s{sA}, s{sA}, {nbl}")
            q(f"s_mul_i32 s{sB}, s{sA}, 205\ns_lshr_b32 s{sB}, s{sB}, 10\ns_mul_i32 s{sB}, s{sB}, 255\ns_add_u32 s{sA}, s{sA}, s{sB}")
            q(f"s_mul_i32 s{sB}, s{sK2}, 5\ns_add_u32 s{sA}, s{sA}, s{sB}\ns_lshl_b32 s{sA}, s{sA}, 10\ns_add_u32 s{98+nbl}, s{sA}, {WD}")

    def side_stats(self, q):
        q("v_mov_b32 v45, 0x3f803f80")
        for j in range(20):
            a = 46 + (j & 1); b = 48 + (j & 1)
            q(f"v_dot2_f32_bf16 v{a}, v{16+j}, v45, {'0' if j < 2 else 'v%d' % a}\nv_dot2_f32_bf16 v{b}, v{16+j}, v{16+j}, {'0' if j < 2 else 'v%d' % b}")
        q.items.append([W('wdst')])
        for nbl in range(2):
            for t in range(2):
                q(f"ds_read_b64_tr_b16 {V2(60+4*nbl+2*t)}, v43 offset:{t*1024 + nbl*32}")
        q("v_add_f32 v55, v46, v47\nv_add_f32 v48, v48, v49")
        for r in (8, 4, 2, 1):
            q(f"v_add_f32_dpp v55, v55, v55 row_ror:{r} row_mask:0xf bank_mask:0xf\nv_add_f32_dpp v48, v48, v48 row_ror:{r} row_mask:0xf bank_mask:0xf")
        q(f"v_mul_f32 v46, {INV640}, v55\nv_mul_f32 v48, {INV640}, v48\nv_fma_f32 v48, -v46, v46, v48\nv_max_f32 v48, 0, v48")
        q.add(self.bfr(48, 48)); q(f"v_add_f32 v48, {EPS}, v48"); q.add(self.bfr(48, 48))
        q("v_sqrt_f32 v48, v48"); q.add(self.bfr(52, 46)); q.add(self.bfr(53, 48)); q("v_rcp_f32 v54, v53")
        q(f"v_mul_f32 v50, v52, v54\nv_cndmask_b32 v51, v54, v55, {S2(sMask)}")

    def side_store(self, p, ssm):
        for nbl in range(2):
            p(f"buffer_store_dwordx4 {V4(60+4*nbl)}, v{vL16}, {S4(sWS)}, s{98+nbl} offen sc1", tag='side')
        if ssm:
            p(f"s_lshl_b32 s{sB}, s{sCw}, 4\ns_add_u32 s{sB}, s{sB}, s{sRg}\ns_lshl_b32 s{sB}, s{sB}, 8\ns_add_u32 s{sCo}, s{sB}, {CARRY}")
            p(f"v_mov_b32 v13, -1\nv_lshlrev_b32 v14, 2, v{vLane}")
            p(f"buffer_store_dword v13, v14, {S4(sWS)}, s{sCo} offen sc1", tag='side')
        p(f"s_mov_b32 exec_lo, 0x00010001\ns_mov_b32 exec_hi, 0x00010001")
        p(f"buffer_store_dwordx4 v[52:55], v40, {S4(sWS)}, 0 offen sc1", tag='side')
        p(f"buffer_store_dword v51, v41, {S4(sWS)}, 0 offen sc1", tag='side')
        p(f"buffer_store_dword v50, v42, {S4(sWS)}, 0 offen offset:144 sc1", tag='side')
        p("s_mov_b64 exec, -1")

    def ssm_consts(self, p):
        for i in range(100, 106): p(f"v_lshlrev_b32 v{i}, 16, v{i}")
        for i in (0, 1):
            p(f"v_mul_f32 v{104+i}, {LOG2E}, v{104+i}\nv_exp_f32 v{104+i}, v{104+i}")
        for i in (0, 1): p.add(self.bfr(104+i, 104+i))
        p("v_pk_mul_f32 v[106:107], v[104:105], v[100:101]\nv_pk_mul_f32 v[108:109], v[104:105], v[102:103]")
        for i in (0, 1):
            p(f"v_mul_f32 v{106+i}, {LOG2E}, v{106+i}\nv_exp_f32 v{106+i}, v{106+i}")
            p(f"v_mul_f32 v{108+i}, {INV2PI}, v{108+i}\nv_rndne_f32 v110, v{108+i}\nv_sub_f32 v{108+i}, v{108+i}, v110")
            p(f"v_cos_f32 v{112+i}, v{108+i}\nv_sin_f32 v{114+i}, v{108+i}")
        p(f"v_pk_mul_f32 {V2(LAM)}, v[106:107], v[112:113]\nv_pk_mul_f32 {V2(LAM+2)}, v[106:107], v[114:115]")
        p(f"v_pk_mul_f32 v[106:107], v[100:101], v[100:101]\nv_pk_fma_f32 v[106:107], v[102:103], v[102:103], v[106:107]")
        p("v_rcp_f32 v106, v106\nv_rcp_f32 v107, v107")
        p(f"v_add_f32 v112, -1.0, v{LAM}\nv_add_f32 v113, -1.0, v{LAM+1}\nv_mov_b32 v114, v{LAM+2}\nv_mov_b32 v115, v{LAM+3}")
        p("v_add_f32 v106, v106, v106\nv_add_f32 v107, v107, v107")
        p("v_pk_mul_f32 v[100:101], v[100:101], v[106:107]\nv_pk_mul_f32 v[102:103], v[102:103], v[106:107] neg_lo:[1,0] neg_hi:[1,0]")
        p.add(self.cmul(COEF, 112, 100))
        p.add(self.cmul(100, LAM, LAM))
        p.add(self.cmul(104, 100, 100))
        p.add(self.cmul(108, 104, 104))
        p.add(self.cmul(104, 108, 108))
        p.add(self.cmul(L18, 104, 100))
        p.add(self.cmul(L36, L18, L18))
        p.add(self.cmul(100, L36, L36))
        p.add(self.cmul(104, 100, L36))
        p(f"v_cmp_le_u32 {S2(sQ1)}, 16, v{vLane}\nv_cmp_le_u32 {S2(sQ2)}, 32, v{vLane}\nv_cmp_le_u32 {S2(sQ3)}, 48, v{vLane}")
        p.add(self.cone(108))
        p.add(self.csel(F36, 104, 100, sQ1)); p.add(self.csel(F36, F36, L36, sQ2)); p.add(self.csel(F36, F36, 108, sQ3))

    def dma_stage(self, s, ssm):
        buf = (s % 3) * STG; tag = f'st{s}'
        g = []
        for n in range(4):
            pre = self.chunk_ops(s, ssm) + [f"s_add_u32 m0, s{sM0X}, {buf}"] if n == 0 else []
            g.append(pre + [I(f"buffer_load_dwordx4 v{vXD+n}, {S4(sX)}, s{sOffX} offen offset:{1024*n} lds", tag)])
        g.append([I(f"buffer_load_dwordx4 v{vXD+4}, {S4(sX)}, s{sOffX} offen offset:{(28 if ssm else 27)*128} lds", tag)])
        for m in range(2):
            for n in range(4):
                pre = [f"s_add_u32 m0, s{sM0W}, {buf + m * (4096 if ssm else 16384)}"] if n == 0 else []
                g.append(pre + [I(f"buffer_load_dwordx4 v{vWDm+n}, {S4(sW1 if m else sW0)}, s{sOffW} offen offset:{1024*n} lds", tag)])
        return g

    def xread(self, B):
        h = (B // 9) & 1; b = B % 9
        return f"ds_read_b128 {V4(xr(B))}, v{vXR1 if h else vXR0} offset:{b*2048}"
    def wreads(self, K, ssm):
        h = K & 1; out = []
        for t in range(4):
            d = wb(K & 1, t)
            if ssm:
                out.append(f"ds_read_b128 {V4(d)}, v{vWR1 if h else vWR0} offset:{(t & 1)*4096 + (t >> 1)*2048}")
            else:
                for tt in range(2):
                    out.append(f"ds_read_b64_tr_b16 {V2(d+2*tt)}, v{vWR1 if (t >> 1) else vWR0} offset:{(t & 1)*16384 + (32*h + 4*tt)*256}")
        return out

    def wd_ops(self):
        ops = []
        for i in range(12):
            if i == 0:
                pre = [f"s_mov_b32 s{sK2}, s{sRot2}", f"s_mul_i32 s{sD}, s{sCt}, 52", f"s_mul_i32 s{sC}, s{sWave}, 12", f"s_add_u32 s{sD}, s{sD}, s{sC}",
                       f"s_mul_i32 s{sD}, s{sD}, 5120", f"s_add_u32 s{sD}, s{sD}, {WD}"]
            else:
                pre = [f"s_add_u32 s{sK2}, s{sK2}, 1", f"s_cmp_eq_u32 s{sK2}, 12", f"s_cselect_b32 s{sK2}, 0, s{sK2}"]
            pre += [f"s_mul_i32 s{sO2}, s{sK2}, 5120", f"s_add_u32 s{sO2}, s{sO2}, s{sD}"]
            for nb in range(5):
                a = 20 * i + 4 * nb
                ld = (f"buffer_load_dwordx4 {A4(a)}, v{vL16}, {S4(sWS)}, s{sO2} offen offset:{1024*nb} sc1" if nb < 4 else
                      f"buffer_load_dwordx4 {A4(a)}, v{vL16b}, {S4(sWS)}, s{sO2} offen sc1")
                ops.append((pre if nb == 0 else []) + [ld])
        return ops
    def crow(self, i): return (2, 0, 1, 3, 2)[i] * 40960
    def c_ops(self, i):
        ops = []
        for j in range(10):
            pre = []
            if j == 0:
                if i: pre = [f"s_add_u32 s{sKC}, s{sKC}, 1", f"s_cmp_eq_u32 s{sKC}, 5", f"s_cselect_b32 s{sKC}, 0, s{sKC}"]
                else: pre = [f"s_mov_b32 s{sKC}, s{sRotC}", f"s_and_b32 s99, s{sWave}, 1", f"s_mul_i32 s99, s99, 640"]
                pre += [f"s_lshl_b32 s98, s{sKC}, 7", f"s_add_u32 s98, s98, s99"]
            elif j % 2 == 0:
                pre = [f"s_add_u32 s98, s98, {16*1280}"]
            if j % 2 == 0: pre += [f"s_add_u32 m0, s{sCslot}, {self.crow(i) + j * 1024}"]
            ops.append(pre + [I(f"buffer_load_dwordx4 v{vCD1 if j & 1 else vCD0}, {S4(sT)}, s98 offen offset:{1024*(j & 1)} lds", f'c{i}')])
        return ops

    def poll_check(self, load, cmpc, reg):
        ok = self.lab('ok'); lp = self.lab('spin')
        out = [f"v_cmp_ne_u32 vcc, {cmpc}, v{reg}", f"s_cbranch_vccz {ok}"]
        slow = [f"s_mov_b32 s{sSpin}, 0x10000", f"{lp}:", "s_sleep 2", load, "s_waitcnt vmcnt(0)",
                f"v_cmp_ne_u32 vcc, {cmpc}, v{reg}", f"s_sub_u32 s{sSpin}, s{sSpin}, 1", f"s_cmp_eq_u32 s{sSpin}, 0",
                f"s_cbranch_scc1 {ok}", f"s_cbranch_vccnz {lp}"]
        out += [self.optI(x) for x in slow] + [f"{ok}:"]
        return out
    def optI(self, x):
        i = I(x, opt=True)
        if i.kind == 'vmem': i.kind = 'ctl'; i.wr = set(); i.rd = set()
        return i

    def mainloop(self, p, ssm):
        c = self.c; L = vLane
        mf = []
        for K in range(20):
            for b in range(9):
                B = K * 9 + b
                for t in range(4):
                    a = acc(b, t); w = wb(K & 1, t); x = xr(B)
                    cc = '0' if K == 0 else V4(a)
                    if ssm: mf.append(f"v_mfma_f32_16x16x32_bf16 {V4(a)}, {V4(x)}, {V4(w)}, {cc}")
                    else: mf.append(f"v_mfma_f32_16x16x32_bf16 {V4(a)}, {V4(w)}, {V4(x)}, {cc}")
        F = {}
        def put(B, g, items): F.setdefault(B * 4 + g, []).extend(items if isinstance(items, list) else [items])
        def place(groups, b0, b1):
            n = len(groups); nb = b1 - b0
            blocks = [b0 + (i * nb) // n for i in range(n)]
            for i, g in enumerate(groups):
                two = i + 1 < n and blocks[i + 1] == blocks[i]
                assert not (two and i > 0 and blocks[i - 1] == blocks[i])
                put(blocks[i], 0 if two else (3 if blocks[i] % 9 == 0 else 2), list(g))
        p.wait('st0', 'ones'); p("s_barrier")
        self.stamp(p, 1)
        wr = self.wreads(0, ssm); k = len(wr) // 4
        p.add(wr[:k]); p(self.xread(0)); p.add(wr[k:])
        for B in range(1, 5): p(self.xread(B))
        BB = 5
        pf = self.wd_ops() + self.c_ops(0)
        ps = c['poll_stage']
        ld = f"buffer_load_dword v{vPoll}, v{vL16}, {S4(sWS)}, s{sA} offen sc1"
        for s in range(10):
            B0 = s * 18
            for B in range(B0 + 5, B0 + 18): put(B - 5, 0, self.xread(B))
            w1 = self.wreads(2 * s + 1, ssm)
            for i, r in enumerate(w1): put(B0 + 1 + (i * 6) // len(w1), 1 if i % 2 == 0 or ssm else 3, r)
            Bb = B0 + 9 + BB
            tags = [f'st{s+1}', 'ALLLG'] + (['side'] if s == 0 else []) + (['sstat'] if s >= ps + 2 else [])
            bar = [W(*tags), "s_barrier"]
            if c['x_nobar'] and s not in (0, ps, 9): bar = [W(*tags)]
            if s == ps: put(Bb - 1, 1, self.poll_check(ld, f"s{sTag}", vPoll))
            if s < 9:
                d = STG if (s + 1) % 3 else -2 * STG
                op = "v_add_u32" if d > 0 else "v_subrev_u32"
                upd = [f"{op} v{r}, {abs(d)}, v{r}" for r in (vWR0, vXR0, vWR1, vXR1)]
                put(Bb - 2, 1, upd[:2]); put(Bb - 1, 0, upd[2:])
            if c['stamps'] > 1:
                q = Prog(); self.stamp(q, 20 + s); bar += q.L
            put(Bb - 1, 3, bar)
            if s < 9:
                w0 = self.wreads(2 * s + 2, ssm); k = len(w0) // 4
                seq = w0[:k] + [self.xread(B0 + 18)] + w0[k:2*k] + [self.xread(B0 + 19)] + w0[2*k:]
                seq += [self.xread(B0 + 20), self.xread(B0 + 21), self.xread(B0 + 22)]
                if ssm: spots = [(0, 0), (0, 1), (0, 3), (1, 0), (1, 1), (1, 3), (2, 0), (2, 1), (3, 0)]
                else: spots = [(0, 0), (0, 1), (0, 2), (0, 3), (1, 0), (1, 1), (1, 3), (2, 0), (2, 1), (2, 3), (3, 0), (3, 1), (3, 3)]
                for (db, g), r in zip(spots, seq): put(Bb + db, g, r)
            if s == 0 or s == ps:
                arr = self.lab('arr')
                cond = [f"s_cmp_lg_u32 s{sWave}, 0"] if s == 0 else [f"s_or_b32 s{sB}, s{sWave}, s2"]
                adr = [f"s_lshl_b32 s{sB}, s2, 4", f"s_add_u32 s{sB}, s{sB}, {ARR}"] if s == 0 else [f"s_mov_b32 s{sB}, {EPOCH}"]
                put(Bb, 0, cond + [f"s_cbranch_scc1 {arr}"] +
                    [I(x, opt=True) for x in adr + [f"v_mov_b32 v{vPoll}, s{sTag}", "s_mov_b64 exec, 1",
                                              f"buffer_store_dword v{vPoll}, v{vL16}, {S4(sWS)}, s{sB} offen sc1", "s_mov_b64 exec, -1"]] + [f"{arr}:"])
            early = []; late = []
            if s == ps: early.append([f"s_lshl_b32 s{sA}, s{sWave}, 10", f"s_add_u32 s{sA}, s{sA}, {ARR}", ld])
            if s == 0: early += self.dq_rest
            if s + 2 < 10 and not (c['x_nodma'] and s > 0): early += self.dma_stage(s + 2, ssm)
            if s == 1 and c['touch']:
                late.append([f"s_mul_i32 s{sA}, s2, 25", f"s_and_b32 s{sB}, s{sWave}, 1", f"s_mul_i32 s{sB}, s{sB}, 13", f"s_add_u32 s{sA}, s{sA}, s{sB}", f"s_lshl_b32 s{sA}, s{sA}, 7",
                             f"v_min_u32 v{vTmp}, 12, v{L}", f"v_lshlrev_b32 v{vTmp}, 7, v{vTmp}", f"buffer_load_dword a241, v{vTmp}, {S4(sT)}, s{sA} offen"])
            if s == 2 and c['touch'] > 1:
                late.append([f"s_mov_b32 s{sA}, {2*HS}", f"s_mov_b32 s{sB}, {H + 139*1024}", f"v_min_u32 v{vTmp}, 43, v{L}", f"v_mul_u32_u24 v{vTmp}, s{sA}, v{vTmp}",
                             f"buffer_load_dword a242, v{vTmp}, {S4(sWS)}, s{sB} offen"])
                late.append([f"s_mul_i32 s{sA}, s{sRt}, {64*2560}", f"v_mov_b32 v{vTmp}, 0", f"buffer_load_dword a243, v{vTmp}, {S4(sU)}, s{sA} offen"])
            if s == ps: late += self.stat_loads(ssm)
            if s >= ps:
                n = c['wd_late'] if s >= 8 else (c['wd_mid'] - len(late))
                n = max(0, min(n, len(pf) - (10 if s < 9 else 0)))
                ops, pf = pf[:n], pf[n:]
                if s >= 8: early += ops
                else: late += ops
            if s == 0 or s >= 8:
                if early + late: place(early + late, B0, B0 + 18)
            else:
                if early: place(early, B0, B0 + max(13, len(early)))
                if late: place(late, B0 + 14, B0 + 18)
            if s == 9 and not ssm:
                put(B0, 1, [f"v_and_b32 v{vTmp}, 0xff, v{vL16}"]); put(B0, 3, [f"v_add_u32 v{vTmp}, {L_STAT}, v{vTmp}"])
                for b in range(9):
                    put(B0 + 1 + b, 3, [f"ds_read_b64 {V2(GST+2*b)}, v{vTmp} offset:{256*b}"])
                    if b < 9: put(B0 + 6 + b, 1, [f"v_rcp_f32 v{GK1+b}, v{GST+2*b+1}"]); put(B0 + 7 + b, 3, [f"v_mul_f32 v{GK1+b}, {NLOG2E}, v{GK1+b}"])
            if s == 8 and not ssm:
                T = 245
                seq = [f"s_mul_i32 s{sA}, s{sRg}, 140", f"v_and_b32 v{T}, 15, v{L}", f"v_add_u32 v{T}, s{sA}, v{T}", f"v_lshrrev_b32 v{T+1}, 4, v{T}",
                       f"v_and_b32 v{T}, 15, v{T}", f"v_lshlrev_b32 v{T}, 4, v{T}", f"v_lshl_add_u32 v{T}, v{T+1}, 10, v{T}",
                       f"v_lshrrev_b32 v{T+1}, 4, v{L}", f"v_lshl_add_u32 v{GHA}, v{T+1}, 8, v{T}"]
                for i, x in enumerate(seq): put(B0 + 2 + i, 3, [x])
        p.add(interleave(mf, F))
        self.pf_rest = pf

    def stat_loads(self, ssm):
        n = 288 if ssm else 576
        pre = [f"s_mul_i32 s{sA}, s{sRg}, {1152 if ssm else 2240}", f"s_mul_i32 s{sC}, s{sWave}, {n}", f"s_add_u32 s{sA}, s{sA}, s{sC}",
               f"s_add_u32 s{sA}, s{sA}, {STATS if ssm else STATG}", f"s_add_u32 m0, s{sC}, {L_STAT}"]
        g = [pre + [I(f"buffer_load_dwordx4 v{vL16}, {S4(sWS)}, s{sA} offen sc1 lds", 'sstat')]]
        if ssm:
            g.append([f"s_lshl_b32 s{sA}, s{sCw}, 8", f"s_add_u32 s{sA}, s{sA}, {CSUM}", f"v_and_b32 v{vTmp}, 0xff, v{vL16}",
                      f"buffer_load_dwordx4 {V4(CS)}, v{vTmp}, {S4(sWS)}, s{sA} offen sc1"])
        return g

    def glu_tail(self, p):
        L = vLane; c = self.c
        pf = self.pf_rest + self.c_ops(1) + self.c_ops(2) + self.c_ops(3)
        CSR = 144
        T = 172
        self.stamp(p, 2)
        for i in range(16): p(f"v_mov_b32_dpp v{CSR+i}, v{acc(8,0)+i} row_newbcast:12 row_mask:0xf bank_mask:0xf")
        for b in range(9):
            ms = V2(GST + 2 * b); k1 = V2(GK1 + (b & ~1)); ks = b & 1
            pairs = [(acc(b, 2*pr) + 2*hh, acc(b, 2*pr+1) + 2*hh, CSR + 8*pr + 2*hh, CSR + 8*pr + 4 + 2*hh) for pr in range(2) for hh in range(2)]
            body = []
            for (g, u, cg, cu) in pairs:
                body.append(f"v_pk_fma_f32 {V2(g)}, {V2(cg)}, {ms}, {V2(g)} op_sel_hi:[1,0,1] neg_lo:[0,1,0] neg_hi:[0,1,0]")
            for (g, u, cg, cu) in pairs:
                body.append(f"v_pk_mul_f32 {V2(g)}, {V2(g)}, {k1} op_sel:[0,{ks}] op_sel_hi:[1,{ks}]")
            for (g, u, cg, cu) in pairs:
                body += [f"v_exp_f32 v{g}, v{g}", f"v_exp_f32 v{g+1}, v{g+1}",
                         f"v_pk_fma_f32 {V2(u)}, {V2(cu)}, {ms}, {V2(u)} op_sel_hi:[1,0,1] neg_lo:[0,1,0] neg_hi:[0,1,0]"]
            for (g, u, cg, cu) in pairs:
                body.append(f"v_pk_fma_f32 {V2(g)}, {V2(g)}, {ms}, {ms} op_sel:[0,1,1] op_sel_hi:[1,1,1]")
            for (g, u, cg, cu) in pairs:
                body += [f"v_rcp_f32 v{g}, v{g}", f"v_rcp_f32 v{g+1}, v{g+1}"]
            for (g, u, cg, cu) in pairs:
                body.append(f"v_pk_mul_f32 {V2(u)}, {V2(u)}, {V2(g)}")
            D = T + 4 * (b & 1)
            for i, (g, u, cg, cu) in enumerate(pairs):
                body.append(f"v_cvt_pk_bf16_f32 v{D+i}, v{u}, v{u+1}")
            F = {}
            n = c['g_epi']
            for i in range(n):
                if pf: F[(i + 1) * 40 // (n + 1)] = pf.pop(0)
            p.add(interleave(body, F))
            if b in (4, 8): p(f"s_add_u32 s{sHo}, s{sHo}, 4096")
            if b == 8: p("s_mov_b32 exec_lo, 0x0fff0fff\ns_mov_b32 exec_hi, 0x0fff0fff")
            p(f"buffer_store_dwordx4 {V4(D)}, v{GHA}, {S4(sWS)}, s{sHo} offen offset:{1024*(b & 3)} sc1", tag='hst')
            if b == 8: p("s_mov_b64 exec, -1")
        self.stamp(p, 3)
        self.publish(p, pf)

    def publish(self, p, pf):
        self.p2_addr(p)
        for i in range(self.c['pub']):
            if pf: p.add(pf.pop(0))
        p(f"v_mov_b32 v{vPoll}, s{sTag}")
        p.wait('hst')
        p("s_mov_b64 exec, 1")
        p(f"buffer_store_dword v{vPoll}, v{vL16}, {S4(sWS)}, s{sFlag} offen sc1")
        p("s_mov_b64 exec, -1")
        self.stamp(p, 4)
        while pf: p.add(pf.pop(0))

    def ssm_tail(self, p):
        L = vLane
        c = self.c
        pf = self.pf_rest + self.c_ops(1) + self.c_ops(2)
        self.stamp(p, 2)
        csr = lambda t: (V2(CS + 2 * (t & 1)), t >> 1)
        RS = 144
        E = 160
        vS = 176
        p(f"v_lshrrev_b32 v{vS}, 4, v{L}\nv_mul_u32_u24 v{vS}, 288, v{vS}\nv_add_u32 v{vS}, {L_STAT}, v{vS}")
        def rd(b): return [f"ds_read_b128 {V4(RS+8*(b&1))}, v{vS} offset:{16*b}", f"ds_read_b128 {V4(RS+8*(b&1)+4)}, v{vS} offset:{144+16*b}"]
        def step(T, n_re, n_im, e_re, e_im, p_re, p_im):
            sel = f"op_sel:[{T},0,0] op_sel_hi:[{T},1,1]"
            return [f"v_pk_fma_f32 {V2(n_re)}, {V2(LAM)}, {V2(e_re)}, {V2(p_re)} {sel}",
                    f"v_pk_fma_f32 {V2(n_im)}, {V2(LAM)}, {V2(e_im)}, {V2(p_im)} {sel}",
                    f"v_pk_fma_f32 {V2(n_re)}, {V2(LAM+2)}, {V2(e_im)}, {V2(n_re)} {sel} neg_lo:[1,0,0] neg_hi:[1,0,0]",
                    f"v_pk_fma_f32 {V2(n_im)}, {V2(LAM+2)}, {V2(e_re)}, {V2(n_im)} {sel}"]
        p.add(rd(0)); p.add(rd(1))
        st = {}
        for b in range(9):
            body = []
            for hh in range(2):
                rs = RS + 8 * (b & 1) + 2 * hh; u = rs + 4
                for t in range(4):
                    a = acc(b, t) + 2 * hh
                    body.append(f"v_pk_mul_f32 {V2(a)}, {V2(a)}, {V2(rs)}")
                for t in range(4):
                    a = acc(b, t) + 2 * hh; cr, w = csr(t)
                    body.append(f"v_pk_fma_f32 {V2(a)}, {V2(u)}, {cr}, {V2(a)} op_sel:[0,{w},0] op_sel_hi:[1,{w},1] neg_lo:[0,1,0] neg_hi:[0,1,0]")
            if b + 2 < 9: body += rd(b + 2)
            for hh in range(2):
                j = 2 * b + hh
                for T in range(2):
                    pr, pi = acc(b, 2*T) + 2*hh, acc(b, 2*T+1) + 2*hh
                    if j == 0: st[T] = (pr, pi); continue
                    n = E + 8 * (j & 1) + 4 * T
                    body += step(T, n, n + 2, st[T][0], st[T][1], pr, pi); st[T] = (n, n + 2)
            F = {}
            for pos in (4, 20, 12)[:c['s_p1']]:
                if pf: F[pos] = pf.pop(0)
            p.add(interleave(body, F))
        e = E + 8
        p(f"v_swap_b32 v{e+1}, v{e+4}\nv_swap_b32 v{e+3}, v{e+6}")
        E0 = e; EL = e + 4; Wv = E
        p.add(self.cfma(EL, L18, E0, EL))
        p.add(self.cmul(Wv, F36, EL))
        p(f"v_permlane32_swap_b32 v{Wv}, v{Wv+2}\nv_permlane32_swap_b32 v{Wv+1}, v{Wv+3}")
        p(f"v_and_b32 v{vS}, 15, v{L}\nv_lshrrev_b32 v{vS+1}, 4, v{L}")
        p(f"v_pk_add_f32 {V2(Wv)}, {V2(Wv)}, {V2(Wv+2)}")
        p(f"v_lshlrev_b32 v{vS}, 4, v{vS}\nv_lshl_add_u32 v{vS+2}, v{vS+1}, 2, v{vS}")
        p(f"v_permlane16_swap_b32 v{Wv}, v{Wv+1}\nv_add_f32 v{Wv}, v{Wv}, v{Wv+1}")
        p(f"buffer_store_dword v{Wv}, v{vS+2}, {S4(sWS)}, s{sCo} offen sc1")
        self.stamp(p, 3)
        p("s_barrier")
        pf += self.c_ops(3)
        body = []
        for b in range(9):
            for hh in range(2):
                for T in range(2):
                    pr, pi = acc(b, 2*T) + 2*hh, acc(b, 2*T+1) + 2*hh
                    s2 = f"op_sel:[{T},0] op_sel_hi:[{T},1]"; s3 = f"op_sel:[{T},0,0] op_sel_hi:[{T},1,1]"
                    t1 = 144 + 4 * T
                    body += [f"v_pk_mul_f32 {V2(t1)}, {V2(COEF)}, {V2(pr)} {s2}", f"v_pk_mul_f32 {V2(t1+2)}, {V2(COEF+2)}, {V2(pr)} {s2}",
                             f"v_pk_fma_f32 {V2(pr)}, {V2(COEF+2)}, {V2(pi)}, {V2(t1)} {s3} neg_lo:[1,0,0] neg_hi:[1,0,0]",
                             f"v_pk_fma_f32 {V2(pi)}, {V2(COEF)}, {V2(pi)}, {V2(t1+2)} {s3}"]
        G0, G1, G2, G3 = 144, 148, 152, 156
        for i in range(4):
            body += [f"v_mov_b32 v{G0+i}, v{EL+i}", f"v_mov_b32 v{G1+i}, v{EL+i}"]
        for i in range(4): body.append(f"v_permlane16_swap_b32 v{G0+i}, v{G1+i}")
        for i in range(4):
            body += [f"v_mov_b32 v{G2+i}, v{G0+i}", f"v_mov_b32 v{G3+i}, v{G1+i}"]
        for i in range(4):
            body += [f"v_permlane32_swap_b32 v{G0+i}, v{G2+i}", f"v_permlane32_swap_b32 v{G1+i}, v{G3+i}"]
        body += self.cfma(G1, L36, G0, G1) + self.cfma(G2, L36, G1, G2)
        PRE = 180
        body += [f"v_mov_b32 v{G3+i}, 0" for i in range(4)]
        body += self.csel(G3, G3, G0, sQ1) + self.csel(G3, G3, G1, sQ2) + self.csel(G3, G3, G2, sQ3)
        body += self.cmul(PRE, COEF, G3)
        E0C = 184
        body += self.cmul(E0C, COEF, E0)
        P72, P108, P144, P288, P432 = 144, 148, 152, 156, 160
        G36, F144, L576 = 236, 240, 188
        body += self.cmul(P72, L36, L36) + self.cmul(P108, P72, L36) + self.cmul(P144, P72, P72) + self.cmul(P288, P144, P144)
        body += self.cmul(P432, P288, P144) + self.cmul(L576, P288, P288)
        body += self.cone(164)
        body += self.csel(F144, P432, P288, sQ1) + self.csel(F144, F144, P144, sQ2) + self.csel(F144, F144, 164, sQ3)
        body += self.csel(164, 164, L36, sQ1) + self.csel(164, 164, P72, sQ2) + self.csel(164, 164, P108, sQ3)
        body += self.cmul(G36, COEF, 164)
        AD = 200; ID = 192; CO = 194
        body += [f"s_mul_i32 s{sA}, s{sRg}, 144", f"v_bfe_u32 v164, v{L}, 2, 2", f"v_mul_u32_u24 v165, 36, v164", f"v_and_b32 v166, 3, v{L}",
                 f"v_add3_u32 v165, v165, v166, s{sA}", f"v_lshlrev_b32 v167, 8, v{vS+1}"]
        for j in range(9):
            body += [f"v_and_b32 v168, 15, v165", f"v_lshrrev_b32 v169, 4, v165", f"v_lshl_add_u32 v168, v168, 4, v167",
                     f"v_lshl_add_u32 v{AD+j}, v169, 10, v168", f"v_add_u32 v165, 4, v165"]
        body += [f"v_and_b32 v168, 1, v{L}", f"v_lshlrev_b32 v168, 4, v168", f"v_mov_b32 v169, 0x3f80", f"v_lshlrev_b32 v168, v168, v169",
                 f"v_cmp_eq_u32 vcc, v164, v{vS+1}", f"v_cndmask_b32 v168, 0, v168, vcc", f"v_cmp_gt_u32 vcc, 2, v166",
                 f"v_cndmask_b32 v{ID}, 0, v168, vcc", f"v_sub_u32 v{ID+1}, v168, v{ID}"]
        body += [f"v_mov_b32 v169, {OOB}", f"v_lshl_add_u32 v168, v{vS+1}, 8, v{vS}", f"s_sub_u32 s{sCo}, s{sCo}, 4096"]
        for n in range(4):
            body += [f"s_sub_u32 s{sB}, {16 - 4*n}, s{sRg}", f"v_cmp_gt_i32 vcc, s{sB}, v{vS+1}", f"v_cndmask_b32 v{CO+n}, v168, v169, vcc"]
        F = {}
        pos = 8
        while pf and pos < len(body) - 90: F[pos] = pf.pop(0); pos += c['s_sh']
        p.add(interleave(body, F))
        CL = 144
        lp = self.lab('lb'); ok = self.lab('lbok')
        p(f"s_mov_b32 s{sSpin}, 0x10000")
        p(f"{lp}:")
        for n in range(4):
            p(f"buffer_load_dwordx4 {V4(CL+4*n)}, v{CO+n}, {S4(sWS)}, s{sCo} offen offset:{1024*n} sc1")
        p("s_waitcnt vmcnt(0)")
        p(f"v_max3_u32 v164, v{CL}, v{CL+1}, v{CL+2}")
        for i in range(3, 15, 2): p(f"v_max3_u32 v164, v164, v{CL+i}, v{CL+i+1}")
        p(f"v_max_u32 v164, v164, v{CL+15}\nv_cmp_eq_u32 vcc, -1, v164")
        p(f"s_sub_u32 s{sSpin}, s{sSpin}, 1\ns_cmp_eq_u32 s{sSpin}, 0\ns_cbranch_scc1 {ok}\ns_cbranch_vccnz {lp}")
        p(f"{ok}:")
        self.stamp(p, 5)
        for n in range(1, 4): p.add(self.cfma(CL + 4*n, L576, CL + 4*(n-1), CL + 4*n))
        p.add(self.cmul(CL, F144, CL + 12))
        for sw in ("v_permlane32_swap_b32", "v_permlane16_swap_b32"):
            p(f"v_mov_b64 {V2(CL+4)}, {V2(CL)}\nv_mov_b64 {V2(CL+6)}, {V2(CL+2)}")
            for i in range(4): p(f"{sw} v{CL+i}, v{CL+4+i}")
            p(f"v_pk_add_f32 {V2(CL)}, {V2(CL)}, {V2(CL+4)}\nv_pk_add_f32 {V2(CL+2)}, {V2(CL+2)}, {V2(CL+6)}")
        p.add(self.cfma(PRE, G36, CL, PRE))
        p.add(self.cfma(E0C, L18, PRE, E0C))
        p(f"v_swap_b32 v{PRE+1}, v{PRE+4}\nv_swap_b32 v{PRE+3}, v{PRE+6}")
        st = {0: (PRE, PRE + 2), 1: (PRE + 4, PRE + 6)}
        PK = 144; MO = 152; SD = 168
        def dsrc(n, t): return (acc(n, t), acc(n, t) + 2) if n < 9 else (acc(n - 9, t) + 1, acc(n - 9, t) + 3)
        def stageA(j):
            o = []
            for t in range(4):
                ng = '-' if t & 1 else ''
                for k in range(2):
                    a, b_ = dsrc(2*j + k, t)
                    o.append(f"v_cvt_pk_bf16_f32 v{PK+2*t+k}, {ng}v{a}, {ng}v{b_}")
            for t in range(4):
                o.append(f"v_mfma_f32_16x16x16_bf16 {V4(MO+4*t)}, {V2(PK+2*t)}, {V2(ID)}, 0")
            return o
        def stageB(j):
            o = []
            for m in range(2):
                for T in range(2):
                    s_ = MO + 4 * (2*T + m)
                    o += [f"v_cvt_pk_bf16_f32 v{SD+4*m+2*T}, v{s_}, v{s_+1}", f"v_cvt_pk_bf16_f32 v{SD+4*m+2*T+1}, v{s_+2}, v{s_+3}"]
                o.append(I(f"buffer_store_dwordx4 {V4(SD+4*m)}, v{AD+j}, {S4(sWS)}, s{sHo if m == 0 else sC} offen sc1", 'hst'))
            return o
        p(f"s_add_u32 s{sC}, s{sHo}, {20*HS}")
        done = {1: [0], 3: [1], 5: [2], 7: [3], 2: [5], 4: [6], 6: [7], 8: [4, 8]}
        pend = None
        for b in range(9):
            for hh in range(2):
                for T in range(2):
                    pr, pi = acc(b, 2*T) + 2*hh, acc(b, 2*T+1) + 2*hh
                    p.add(step(T, pr, pi, st[T][0], st[T][1], pr, pi)); st[T] = (pr, pi)
            for _ in range(c['s_p2']):
                if pf: p.add(pf.pop(0))
            for j in done.get(b, []):
                if pend is not None: p.add(stageB(pend))
                p.add(stageA(j)); pend = j
        p.add(stageB(pend))
        self.stamp(p, 6)
        self.publish(p, pf)

    def flag_offsets(self, p, reg, div, nper, first_sgpr_expr, nl, base):
        m = {140: 1873, 144: 1821}[div]
        p(f"s_lshl_b32 s{sA}, s{sRt}, 6\ns_add_u32 s{sB}, s{sA}, 63\ns_mul_i32 s{sA}, s{sA}, {m}\ns_lshr_b32 s{sA}, s{sA}, 18\ns_mul_i32 s{sB}, s{sB}, {m}\ns_lshr_b32 s{sB}, s{sB}, 18")
        p(f"s_mul_i32 s{sA}, s{sA}, {nper}\ns_mul_i32 s{sB}, s{sB}, {nper}\ns_sub_u32 s{sB}, s{sB}, {nl}")
        p(first_sgpr_expr)
        p(f"v_min_u32 v0, {2*nl-1}, v{vLane}\nv_mov_b32 v1, s{sA}\nv_mov_b32 v2, s{sB}\nv_cmp_gt_u32 vcc, {nl}, v0\nv_cndmask_b32 v1, v2, v1, vcc")
        p(f"v_add3_u32 v0, v0, v1, s{sC}\nv_lshlrev_b32 v0, 6, v0\nv_add_u32 v{reg}, {base}, v0")

    def p2_addr(self, p):
        L = vLane
        self.flag_offsets(p, vFG, 140, 48, f"s_mul_i32 s{sC}, s{sWave}, 12", 12, FLAGG)
        self.flag_offsets(p, vFS, 144, 20, f"s_and_b32 s{sC}, s{sWave}, 1\ns_mul_i32 s{sC}, s{sC}, 10", 10, FLAGS)
        p(f"v_and_b32 v0, 15, v{L}\nv_lshrrev_b32 v1, 4, v{L}\nv_lshrrev_b32 v2, 1, v0\nv_xor_b32 v2, v2, v1\nv_lshlrev_b32 v2, 4, v2")
        p(f"v_lshl_add_u32 v2, v0, 7, v2\nv_add_u32 v{vCpat}, s{sCslot}, v2")
        p(f"v_lshl_add_u32 v2, v1, 2, v0\nv_and_b32 v2, 15, v2\nv_lshlrev_b32 v2, 4, v2\nv_lshl_add_u32 v2, v1, 8, v2\nv_add_u32 v{vWA}, s{sCslot}, v2\nv_add_u32 v{vWA+1}, 81920, v{vWA}")
        p(f"s_lshr_b32 s{sA}, s{sWave}, 1\ns_mul_i32 s{sA}, s{sA}, 40960\ns_and_b32 s{sB}, s{sWave}, 1\ns_mul_i32 s{sB}, s{sB}, 5120\ns_add_u32 s{sA}, s{sA}, s{sB}")
        p(f"v_lshrrev_b32 v0, 2, v{L}\nv_and_b32 v1, 3, v{L}")
        p(f"v_lshl_add_u32 v2, v1, 2, v0\nv_and_b32 v2, 15, v2\nv_lshlrev_b32 v2, 4, v2\nv_lshl_add_u32 v2, v1, 8, v2\nv_add_u32 v{vRA}, s{sA}, v2\nv_add_u32 v{vRA+1}, 81920, v{vRA}")
        p(f"s_lshl_b32 s{sA}, s{sRt}, 6\ns_lshl_b32 s{sB}, s{sWave}, 4\ns_add_u32 s{sA}, s{sA}, s{sB}\ns_mul_i32 s{sB}, s{sCt}, 160\ns_mov_b32 s{sC}, 1280")
        p(f"v_add_u32 v0, s{sA}, v0\nv_lshlrev_b32 v{vBI}, 3, v1\nv_add_u32 v2, s{sB}, v{vBI}\nv_mad_u32_u24 v{vOO}, v0, s{sC}, v2\nv_lshlrev_b32 v{vSR}, 4, v0")
        p(f"v_min_u32 v2, 39, v{L}\nv_lshl_add_u32 v{vDr}, v2, 2, s{sB}")

    def phase2(self, p):
        L = vLane; c = self.c
        AR = 80; NA = 4; C0 = 144
        def cbase(i): return [f"v_add_u32 v{vCR0}, {self.crow(i)}, v{vCpat}", f"v_xor_b32 v{vCR1}, 64, v{vCR0}"]
        p.add(cbase(0)); p.wait('c0')
        for h in range(2):
            for nb in range(5):
                p(f"ds_read_b128 {V4(C0+20*h+4*nb)}, v{vCR1 if h else vCR0} offset:{2048*nb}", tag='c0r')
        c4 = self.c_ops(4)
        if not c['c4loop']:
            p.wait('c0r')
            for g in c4: p.add(g)
        self.stamp(p, 7)
        ldg = f"buffer_load_dword v{vPoll}, v{vFG}, {S4(sWS)}, 0 offen sc1"
        lds_ = f"buffer_load_dword v{vPoll}, v{vFS}, {S4(sWS)}, 0 offen sc1"
        p(ldg)
        fin = [f"global_load_dword v{vDr}, v{vDr}, {S2(pDsk)}", f"buffer_load_dwordx4 {V4(vSR)}, v{vSR}, {S4(sWS)}, 0 offen sc1"]
        fin += [f"buffer_load_dwordx2 {V2(XF+4*n+2)}, v{vOO}, {S4(sX)}, 0 offen offset:{32*n}" for n in range(5)]
        p.add(fin)
        p.add(self.poll_check(ldg, f"s{sTag}", vPoll))
        p.wait('c0r')
        self.stamp(p, 8)
        def aload(i):
            if i == 0:
                pre = [f"s_mov_b32 s{sK2}, s{sRot2}", f"s_mul_i32 s{sD}, s{sWave}, {12*HS}", f"s_lshl_b32 s{sC}, s{sRt}, 12",
                       f"s_add_u32 s{sD}, s{sD}, s{sC}", f"s_add_u32 s{sD}, s{sD}, {H}"]
            elif i == 12:
                pre = [f"s_lshl_b32 s{sK2}, s{sRotC}, 1", f"s_mul_i32 s{sD}, s{sWave}, {10*HS}", f"s_lshl_b32 s{sC}, s{sRt}, 12",
                       f"s_add_u32 s{sD}, s{sD}, s{sC}", f"s_add_u32 s{sD}, s{sD}, {H + 48*HS}"]
            else:
                pre = [f"s_add_u32 s{sK2}, s{sK2}, 1", f"s_cmp_eq_u32 s{sK2}, {12 if i < 12 else 10}", f"s_cselect_b32 s{sK2}, 0, s{sK2}"]
            pre += [f"s_mul_i32 s{sO2}, s{sK2}, {HS}", f"s_add_u32 s{sO2}, s{sO2}, s{sD}"]
            lds = [f"buffer_load_dwordx4 {V4(AR+16*(i % NA)+4*bb)}, v{vL16}, {S4(sWS)}, s{sO2} offen offset:{1024*bb} sc1" for bb in range(4)]
            return pre, lds
        for i in range(NA - 1):
            pre, lds = aload(i); p.add(pre); p.add(lds)
        CW = 80
        mf = []; F = {}
        def put(i, g, items): F.setdefault(i * 20 + g, []).extend(items)
        def wr(ac, bb, nb):
            a = 4 * (bb * 5 + nb)
            return I(f"ds_write_b128 v{vWA + ac}, {A4(a) if ac else V4(a)} offset:{(bb >> 1)*40960 + (bb & 1)*5120 + nb*1024}", 'xw')
        def rdx(ac, n, s_, dst): return f"ds_read_b128 {V4(dst)}, v{vRA + ac} offset:{s_*10240 + n*1024}"
        tq = [f"ds_bpermute_b32 v{TT+4*n+2+k}, v{vBI}, v{vDr} offset:{32*n + 4*k}" for n in range(5) for k in range(2)]
        tq += [f"v_mul_f32 v{vSR+1}, v{vSR}, v{vSR+2}", f"v_lshlrev_b32 v{vOO}, 1, v{vOO}"]
        for n in range(5):
            for R in (XF + 4*n, TT + 4*n):
                tq += [f"v_lshlrev_b32 v{R}, 16, v{R+2}", f"v_and_b32 v{R+1}, 0xffff0000, v{R+2}", f"v_lshlrev_b32 v{R+2}, 16, v{R+3}", f"v_and_b32 v{R+3}, 0xffff0000, v{R+3}"]
            for k in range(4):
                tq += [f"v_fma_f32 v{vT2+k}, v{XF+4*n+k}, v{vSR+2}, -v{vSR+1}"]
            for k in range(4):
                tq += [f"v_mul_f32 v{TT+4*n+k}, v{TT+4*n+k}, v{vT2+k}"]
        dq = []
        for n in range(5):
            r = 16 * n
            for k in range(4): dq += [f"v_add_f32 v{r+k}, v{r+k}, v{r+4+k}", f"v_add_f32 v{r+8+k}, v{r+8+k}, v{r+12+k}"]
            for k in range(4): dq += [f"v_add_f32 v{r+k}, v{r+k}, v{r+8+k}"]
        for i in range(22):
            for bb in range(4):
                for nb in range(5):
                    a = 4 * (bb * 5 + nb); x = V4(AR + 16 * (i % NA) + 4 * bb)
                    if i < 12:
                        w = A4(20 * i + 4 * nb); d = V4(a)
                    else:
                        y = i - 12
                        w = V4(C0 + 20 * y + 4 * nb) if y < 2 else A4(CW + 20 * (y & 1) + 4 * nb); d = A4(a)
                    cc = '0' if i in (0, 12) else d
                    mf.append(f"v_mfma_f32_16x16x32_bf16 {d}, {w}, {x}, {cc}")
            j = i + NA - 1
            if j < 22:
                pre, lds = aload(j)
                if j == 12: put(i, 0, self.poll_check(lds_, f"s{sTag}", vPoll))
                put(i, 0, pre[:3]); put(i, 1, pre[3:])
                for bb in range(4):
                    if not c['x_noa']: put(i, 2 + 5 * bb, [lds[bb]])
            if j == 10: put(i, 18, [lds_])
            if c['c4loop'] and 1 <= i < 11:
                g = c4[i - 1]; put(i, 8, g[:-1][:3]); put(i, 9, g[:-1][3:]); put(i, 10, g[-1:])
            if 1 <= i < 12:
                for gp in (3, 5, 6, 11, 13, 15, 16):
                    k = 1 if (tq and tq[0].startswith('ds_')) else 2
                    put(i, gp, tq[:k]); tq = tq[k:]
            y = i + 1 - 12
            if 2 <= y < 10:
                ch = y >> 1; h = y & 1
                if h == 0: put(i, 3, cbase(ch) + [W(f'c{ch}')])
                for nb in range(5):
                    put(i, 4 + 2 * nb, [f"ds_read_b128 {A4(CW+20*(y & 1)+4*nb)}, v{vCR1 if h else vCR0} offset:{2048*nb}"])
            if 15 <= i < 19:
                for nb in range(5): put(i, 1 + 4 * nb if nb < 4 else 16, [wr(0, i - 15, nb)])
            if i == 19:
                put(i, 1, [W('xw'), "s_barrier"])
                k = 0
                for gp in (2, 3, 5, 7, 9, 11, 13, 14, 15, 16, 17, 18):
                    put(i, gp, [rdx(0, k // 4, k % 4, 4 * k)]); k += 1
                for gp in (0, 1, 2, 3, 5, 7, 9, 11):
                    put(i + 1, gp, [rdx(0, k // 4, k % 4, 4 * k)]); k += 1
            if i == 20:
                for gp in (13, 14, 15, 16, 17, 18): put(i, gp, dq[:2]); dq = dq[2:]
            if i == 21:
                for gp in range(0, 19):
                    if gp in (9, 11, 13, 15, 17): put(i, gp, [wr(1, 0, (gp - 9) // 2)] + dq[:1]); dq = dq[1:]
                    else: put(i, gp, dq[:2]); dq = dq[2:]
        assert not tq
        p.add(interleave(mf, F))
        self.stamp(p, 9)
        body = list(dq)
        p(f"s_mov_b32 s{sA}, {NLOG2E}")
        for n in range(5):
            d = 16 * n; T = d + 4
            body += [f"v_mul_f32 v{T+k}, s{sA}, v{d+k}" for k in range(4)]
            body += [f"v_exp_f32 v{T+k}, v{T+k}" for k in range(4)]
            body += [f"v_pk_add_f32 {V2(T+k)}, {V2(T+k)}, 1.0 op_sel_hi:[1,0]" for k in (0, 2)]
            body += [f"v_rcp_f32 v{T+k}, v{T+k}" for k in range(4)]
            body += [f"v_pk_mul_f32 {V2(d+k)}, {V2(d+k)}, {V2(T+k)}" for k in (0, 2)]
            body += [f"v_pk_fma_f32 {V2(XF+4*n+k)}, {V2(TT+4*n+k)}, {V2(d+k)}, {V2(XF+4*n+k)}" for k in (0, 2)]
        wl = [wr(1, bb, nb) for bb in range(1, 4) for nb in range(5)]
        F = {}
        for k, w_ in enumerate(wl): F.setdefault(k * (len(body) - 12) // len(wl), []).append(w_)
        p.add(interleave(body, F))
        p.wait('xw'); p("s_barrier")
        self.stamp(p, 10)
        YR = 80
        for n in range(5):
            for s_ in range(4): p(rdx(1, n, s_, YR + 16 * n + 4 * s_))
        for n in range(5):
            r = YR + 16 * n; d = 16 * n
            for k in (0, 2): p(f"v_pk_add_f32 {V2(r+k)}, {V2(r+k)}, {V2(r+4+k)}")
            for k in (0, 2): p(f"v_pk_add_f32 {V2(r+8+k)}, {V2(r+8+k)}, {V2(r+12+k)}")
            for k in (0, 2): p(f"v_pk_add_f32 {V2(r+k)}, {V2(r+k)}, {V2(r+8+k)}")
            for k in (0, 2): p(f"v_pk_fma_f32 {V2(XF+4*n+k)}, {V2(r+k)}, {V2(d+k)}, {V2(XF+4*n+k)}")
            p(f"buffer_store_dwordx4 {V4(XF+4*n)}, v{vOO}, {S4(sU)}, 0 offen offset:{64*n} {('', 'nt', 'sc1', 'sc0 sc1')[c['outmode']]}")
        self.stamp(p, 11)
        self.stamp_flush(p)
        if self.c['endspin']:
            l = self.lab('es')
            if self.c['probe'] < 0 and not self.c['chase'] and not self.c['bw']: p("s_mov_b32 s101, 0")
            p(f"s_add_u32 s101, s101, {self.c['endspin']*100}\n{l}:\ns_memrealtime {S2(sSt)}\ns_waitcnt lgkmcnt(0)\ns_sub_u32 s{sSt}, s{sSt}, s100\ns_cmp_lt_u32 s{sSt}, s101\ns_cbranch_scc1 {l}")
        p("s_endpgm")

    def build(self, code_bytes):
        paths = []
        for ssm in (0, 1):
            p = Prog()
            self.entry(p, code_bytes)
            n0 = 'MARK'
            p("L_mark:")
            self.prologue(p, ssm)
            self.mainloop(p, ssm)
            (self.ssm_tail if ssm else self.glu_tail)(p)
            self.phase2(p)
            Lf = finalize(p)
            k = [i for i, x in enumerate(Lf) if x.text == 'L_mark:'][0]
            paths.append((Lf[:k], Lf[k+1:]))
        assert text_of(paths[0][0]) == text_of(paths[1][0])
        body = text_of(paths[0][0]) + text_of(paths[0][1]) + "L_ssm:\n" + text_of(paths[1][1]) + "L_end:\n    s_endpgm\n"
        return body

HEADER = open(os.path.join(os.path.dirname(os.path.abspath(__file__)), "..", "cdna_kernels", NAME + ".s.ref")).read().split("; Override launch")[0] \
    if os.path.exists(os.path.join(os.path.dirname(os.path.abspath(__file__)), "..", "cdna_kernels", NAME + ".s.ref")) else ""

def make(cfg, code_bytes=61440):
    body = Gen(cfg).build(code_bytes)
    return HEADER + f"""; One persistent launch: 256 workgroups x 4 waves, one per CU (generated by gen/k2.py).
; @launch grid=(256,1,1) block=(256,1,1) lds=163840
.amdgcn_target "amdgcn-amd-amdhsa--gfx950"
.text
.globl {KERN}
.p2align 8
.type {KERN},@function
{KERN}:
{body}L_code_end:
.section .rodata,"a"
.p2align 6
.amdhsa_kernel {KERN}
  .amdhsa_next_free_vgpr 512
  .amdhsa_next_free_sgpr 102
  .amdhsa_accum_offset 256
  .amdhsa_group_segment_fixed_size 0
  .amdhsa_kernarg_size 128
  .amdhsa_user_sgpr_count 2
  .amdhsa_user_sgpr_kernarg_segment_ptr 1
  .amdhsa_system_sgpr_workgroup_id_x 1
  .amdhsa_float_denorm_mode_32 3
.end_amdhsa_kernel
"""

def code_size(txt):
    import subprocess, tempfile
    with tempfile.TemporaryDirectory() as d:
        open(d + "/k.s", "w").write(txt)
        r = subprocess.run(["clang", "-x", "assembler", "-target", "amdgcn-amd-amdhsa", "-mcpu=gfx950", "-c", d + "/k.s", "-o", d + "/k.o"], capture_output=True, text=True)
        assert r.returncode == 0, r.stderr[:3000]
        r = subprocess.run(["llvm-readelf", "-S", d + "/k.o"], capture_output=True, text=True)
        for ln in r.stdout.split('\n'):
            if ' .text' in ln:
                f = ln.split(']')[1].split()
                return int(f[4], 16)

if __name__ == "__main__":
    cfg = dict(CFG)
    out = None
    for a in sys.argv[1:]:
        if '=' in a:
            k, v = a.split('='); cfg[k] = int(v)
        else: out = a
    n = code_size(make(cfg))
    txt = make(cfg, n)
    n2 = code_size(txt)
    assert abs(n2 - n) <= 64, (n, n2)
    open(out or "k.s", "w").write(txt)
    print("code bytes", n2, "source bytes", len(txt))
```

```python
import sys, os
sys.path.insert(0, os.path.dirname(os.path.abspath(__file__)))
from fw import *

NAME = "recurrent_scan__ssm_conv_s5__glu_gated_glu__prompt"
KERN = NAME + "_kernel"

CFG = dict(
    rot=4,
    poll_stage=3,
    wd_mid=4,
    wd_late=18,
    g_epi=1,
    s_p1=2,
    s_sh=10,
    s_p2=0, s_al=12, s_gap=30, s_pb=7,
    s_lb=130,
    pub=0,
    c4loop=1,
    x_nobg=0, bw=0, x_nodma=0, x_nobar=0, x_noa=0, cyc=0, map2=0,
    order=0,
    wtouch=0,
    wdlate=0,
    g_post=30, g_rtt=8, snake=0,
    tlb=1, maxbg=10, verbose=0,
    head=3,
    touch=1,
    outmode=1,
    pre1=6,
    stamps=0,
    rot2=0,
    endspin=0,
    probe=-1,
    chase=0,
)

STATG = 0
CSUM = STATG + 2368 * 16
ARR = CSUM + 320 * 16
EPOCH = ARR + 4096
STATS = EPOCH + 256
CARRY = STATS + 18 * 1152 + 128 - ((18 * 1152) % 128)
CARRY = (CARRY + 255) // 256 * 256
FLAGG = CARRY + 320 * 256
FLAGS = FLAGG + 16 * 48 * 64
WD = (FLAGS + 16 * 20 * 64 + 4095) // 4096 * 4096
HS = 140 * 1024
H = WD + 8 * 52 * 5 * 1024
WS_END = H + 88 * HS
STAMP = WS_END
WS_SIZE = WS_END + 1024 * 256
OOB = 0x7ff00000
PADOFF = 0

STG = 51200; XIMG = 18432
SPARE = 3 * STG
L_WDST = SPARE
L_DUMMY = SPARE + 8192
L_STAT = SPARE

pX, pLre, pLim, pBre, pBim, pCre, pCim, pLdt = 4, 6, 8, 10, 12, 14, 16, 18
pDsk, pBx, pWg, pWu, pWd, pOut, pDbg, pWs = 20, 22, 24, 26, 28, 30, 32, 34
sX, sW0, sW1, sWS, sT, sU = 36, 40, 44, 48, 52, 56
sWave, sCg, sRg, sRt, sCt = 60, 61, 62, 63, 64
sOffX, sOffW, sChunk, sM0X, sM0W = 65, 66, 67, 68, 69
sM0H = 70
sA, sB, sC, sD = 73, 74, 75, 76
sK2, sO2, sCo, sSpin = 77, 78, 79, 80
sCslot = 81
sTag = 82
sPar = 83
sMask = 84
sQ1, sQ2, sQ3 = 86, 88, 90
sSt = 92
sHo = 94
sFlag = 95
sRot2 = 96
sRotC = 97
sCw = 3
sK1 = 70
sKC = 67

def S4(r): return f"s[{r}:{r+3}]"
def S2(r): return f"s[{r}:{r+1}]"
def V4(r): return f"v[{r}:{r+3}]"
def V2(r): return f"v[{r}:{r+1}]"
def A4(r): return f"a[{r}:{r+3}]"

def acc(b, t): return 16 * b + 4 * t
XR = 144; NXR = 6
def xr(B): return XR + 4 * (B % NXR)
def wb(par, t): return 168 + 16 * par + 4 * t
vXD = 200; vWDm = 205
vXR0, vXR1, vWR0, vWR1 = 209, 210, 211, 212
vL16, vL16b, vLane = 213, 214, 215
LAM, COEF, L18, L36, F36, CS = 216, 220, 224, 228, 232, 244
GST, GK1, GHA = 216, 234, 244
vJD, vJ0 = 236, 244
XF, TT = 184, 216
vWA, vRA, vT2 = 204, 206, 208
vSR, vDr, vBI, vOO, vCR0, vCR1, vFG, vCpat, vFS = 236, 240, 241, 242, 245, 246, 248, 249, 250
vPoll, vCD0, vCD1, vTmp = 252, 253, 254, 255

LOG2E = 0x3fb8aa3b
NLOG2E = 0xbfb8aa3b
INV2PI = 0x3e22f983
INV640 = 0x3acccccd
EPS = 0x3727c5ac

class Seq:
    def __init__(self): self.items = []
    def __call__(self, text, tag=None): self.items.append([I(x.strip(), tag) for x in text.strip().split('\n')])
    def add(self, l): self.items.append(list(l))

class Gen:
    def __init__(self, cfg):
        self.c = cfg
        self.nlab = 0
        self.nstamp = 0
        self.light = {}

    def lab(self, s):
        self.nlab += 1
        return f"L_{s}_{self.nlab}"

    def stamp(self, p, idx):
        if self.c['probe'] == idx:
            p(f"s_memrealtime {S2(sSt)}\ns_waitcnt lgkmcnt(0)\ns_sub_u32 s101, s{sSt}, s100")
        if not self.c['stamps']: return
        if idx >= 20:
            r = [4, 6, 8, 10, 12, 14, 16, 18, 22, 24, 26, 28, 30, 32, 34][idx - 20]
            i = I(f"{'s_memtime' if self.c['cyc'] else 's_memrealtime'} {S2(r)}"); i.kind = 'ctl'; i.wr = set(); i.rd = set()
            p.L.append(i); self.light[idx] = r
            return
        p(f"{'s_memtime' if (idx >= 20 and self.c['cyc']) else 's_memrealtime'} {S2(sSt)}")
        if idx < 20: p(f"s_memtime s[0:1]")
        p("s_waitcnt lgkmcnt(0)")
        p(f"v_writelane_b32 v251, s{sSt}, {idx}")
        if idx < 20: p(f"v_writelane_b32 v251, s0, {40 + idx}")

    def stamp_flush(self, p):
        if not self.c['stamps']: return
        p(f"s_lshl_b32 s{sA}, s2, 2\ns_add_u32 s{sA}, s{sA}, s{sWave}\ns_lshl_b32 s{sA}, s{sA}, 8\ns_add_u32 s{sA}, s{sA}, {STAMP}")
        p(f"v_writelane_b32 v251, s100, 39")
        p("s_waitcnt lgkmcnt(0)")
        for k_, r_ in self.light.items(): p(f"v_writelane_b32 v251, s{r_}, {k_}")
        p(f"v_lshlrev_b32 v250, 2, v{vLane}")
        p(f"buffer_store_dword v251, v250, {S4(sWS)}, s{sA} offen")

    def cmul(self, d, a, b):
        return [f"v_pk_mul_f32 {V2(d)}, {V2(a)}, {V2(b)}",
                f"v_pk_mul_f32 {V2(d+2)}, {V2(a)}, {V2(b+2)}",
                f"v_pk_fma_f32 {V2(d)}, {V2(a+2)}, {V2(b+2)}, {V2(d)} neg_lo:[1,0,0] neg_hi:[1,0,0]",
                f"v_pk_fma_f32 {V2(d+2)}, {V2(a+2)}, {V2(b)}, {V2(d+2)}"]
    def cfma(self, d, a, b, c):
        return [f"v_pk_fma_f32 {V2(d)}, {V2(a)}, {V2(b)}, {V2(c)}",
                f"v_pk_fma_f32 {V2(d+2)}, {V2(a)}, {V2(b+2)}, {V2(c+2)}",
                f"v_pk_fma_f32 {V2(d)}, {V2(a+2)}, {V2(b+2)}, {V2(d)} neg_lo:[1,0,0] neg_hi:[1,0,0]",
                f"v_pk_fma_f32 {V2(d+2)}, {V2(a+2)}, {V2(b)}, {V2(d+2)}"]
    def csel(self, d, f, t, mask):
        return [f"v_cndmask_b32 v{d+i}, v{f+i}, v{t+i}, {S2(mask)}" for i in range(4)]
    def cone(self, d):
        return [f"v_mov_b32 v{d}, 1.0", f"v_mov_b32 v{d+1}, 1.0", f"v_mov_b32 v{d+2}, 0", f"v_mov_b32 v{d+3}, 0"]
    def bfr(self, d, a):
        return [f"v_cvt_pk_bf16_f32 v{d}, v{a}, v{a}", f"v_lshlrev_b32 v{d}, 16, v{d}"]

    def entry(self, p, code_bytes):
        if self.c['endspin'] or self.c['stamps']: p("s_memrealtime s[100:101]")
        p(f"s_cmp_ge_u32 s2, 256\ns_cbranch_scc1 L_end")
        p(f"s_load_dwordx16 s[4:19], s[0:1], 0\ns_load_dwordx16 s[20:35], s[0:1], 64")
        per = (code_bytes + 32 * 128 - 1) // (32 * 128)
        assert per <= 64
        p(f"s_getpc_b64 {S2(sMask)}")
        p(f"s_lshr_b32 s{sB}, s2, 3\ns_mul_i32 s{sA}, s{sB}, {per*128}")
        p(f"v_min_u32 v1, {per-1}, v0\nv_lshl_add_u32 v1, v1, 7, s{sA}")
        p(f"v_min_u32 v1, {max(0, code_bytes - 256)}, v1")
        p(f"v_lshrrev_b32 v2, 6, v0\nv_and_b32 v{vLane}, 63, v0")
        p(f"global_load_dword a240, v1, {S2(sMask)}")
        p(f"v_readfirstlane_b32 s{sWave}, v2")
        if self.c['stamps']: p("v_mov_b32 v251, 0")
        p(f"s_and_b32 s{sA}, s2, 7\ns_lshl_b32 s{sA}, s{sA}, 5\ns_add_u32 s{sA}, s{sA}, s{sB}")
        p(f"s_and_b32 s{sCt}, s{sA}, 7\ns_lshr_b32 s{sRt}, s{sA}, 3")
        p(f"s_sub_u32 s{sB}, s{sA}, 136\ns_mul_i32 s{sC}, s{sB}, 147\ns_lshr_b32 s{sC}, s{sC}, 10")
        p(f"s_mul_i32 s{sD}, s{sC}, 7\ns_sub_u32 s{sB}, s{sB}, s{sD}\ns_add_u32 s{sB}, s{sB}, 8\ns_sub_u32 s{sC}, 16, s{sC}")
        p(f"s_cmp_ge_u32 s{sA}, 136\ns_cselect_b32 s{sCg}, s{sC}, s{sRt}\ns_cselect_b32 s{sRg}, s{sB}, s{sCt}")
        p(f"s_cmp_eq_u32 s{sA}, 255\ns_cselect_b32 s{sCg}, 0, s{sCg}\ns_cselect_b32 s{sRg}, 15, s{sRg}")
        if self.c['map2']:
            p(f"s_lshr_b32 s{sRt}, s{sA}, 6\ns_lshl_b32 s{sRt}, s{sRt}, 3\ns_bfe_u32 s{sB}, s{sA}, 0x30002\ns_add_u32 s{sRt}, s{sRt}, s{sB}")
            p(f"s_bfe_u32 s{sB}, s{sA}, 0x10005\ns_lshl_b32 s{sB}, s{sB}, 2\ns_and_b32 s{sCt}, s{sA}, 3\ns_add_u32 s{sCt}, s{sCt}, s{sB}")
        r = self.c['rot']
        if r == 1:
            p(f"s_mul_i32 s{sPar}, s{sCg}, 3\ns_add_u32 s{sPar}, s{sPar}, s{sRg}")
            p(f"s_mul_i32 s{sA}, s{sPar}, 205\ns_lshr_b32 s{sA}, s{sA}, 11\ns_mul_i32 s{sA}, s{sA}, 10\ns_sub_u32 s{sPar}, s{sPar}, s{sA}")
        elif r == 2:
            p(f"s_add_u32 s{sPar}, s{sCg}, s{sRg}\ns_and_b32 s{sPar}, s{sPar}, 1")
        elif r == 3:
            p(f"s_lshl_b32 s{sPar}, s{sCg}, 1\ns_add_u32 s{sPar}, s{sPar}, s{sRg}")
            p(f"s_mul_i32 s{sA}, s{sPar}, 205\ns_lshr_b32 s{sA}, s{sA}, 10\ns_mul_i32 s{sA}, s{sA}, 5\ns_sub_u32 s{sPar}, s{sPar}, s{sA}")
        elif r == 4:
            p(f"s_add_u32 s{sPar}, s{sCg}, s{sRg}\ns_and_b32 s{sPar}, s{sPar}, 3")
        p(f"s_and_b32 s{sA}, s{sCg}, 3\ns_lshr_b32 s{sB}, s{sCg}, 2\ns_cmp_eq_u32 s{sCg}, 16\ns_cselect_b32 s{sA}, 3, s{sA}")
        p(f"s_sub_u32 s{sC}, s{sCg}, s{sB}\ns_cmp_eq_u32 s{sA}, 3\ns_cselect_b32 s{sCg}, s{sB}, s{sC}")
        p("s_cbranch_scc1 L_ssm")

    def chunk_ops(self, s, ssm):
        r = self.c['rot']; ws = 128 if ssm else 196608
        if r == 0: return [f"s_mov_b32 s{sOffX}, {s*128}", f"s_mov_b32 s{sOffW}, {s*ws}"]
        if r in (1, 3):
            n = 10 if r == 1 else 5
            o = [] if s == 0 else [f"s_add_u32 s{sPar}, s{sPar}, 1", f"s_cmp_eq_u32 s{sPar}, {n}", f"s_cselect_b32 s{sPar}, 0, s{sPar}"]
            k = sPar
            if r == 3 and s >= 5: o.append(f"s_add_u32 s{sChunk}, s{sPar}, 5"); k = sChunk
        elif r == 2:
            o = [f"s_xor_b32 s{sChunk}, s{sPar}, {s}"]; k = sChunk
        else:
            if s < 2: o = [f"s_and_b32 s{sChunk}, s{sPar}, 1", f"s_xor_b32 s{sChunk}, s{sChunk}, {s}"]
            else: o = [f"s_xor_b32 s{sChunk}, s{sPar}, {s-2}", f"s_add_u32 s{sChunk}, s{sChunk}, 2"]
            k = sChunk
        return o + [f"s_lshl_b32 s{sOffX}, s{k}, 7", f"s_mul_i32 s{sOffW}, s{k}, {ws}"]

    def prologue(self, p, ssm):
        L = vLane; c = self.c
        t0, t1, t2, t3, t4, t5 = 0, 1, 2, 3, 4, 5
        p(f"s_mov_b32 s{sD}, 1280\ns_lshl_b32 s{sA}, s2, 3\ns_lshl_b32 s{sB}, s{sWave}, 2\ns_add_u32 s{sA}, s{sA}, s{sB}\ns_lshl_b32 s{sB}, s2, 2")
        p(f"s_cmp_ge_u32 s{sWave}, 2\ns_cselect_b32 s{sA}, s{sB}, s{sA}\ns_cselect_b32 s{sT+2}, 0, {2621440-819200}\ns_add_u32 s{sT+2}, s{sT+2}, 819200")
        p(f"v_lshlrev_b32 v{vL16}, 4, v{L}\nv_lshrrev_b32 v7, 4, v{L}\nv_add_u32 v7, s{sA}, v7\nv_and_b32 v{t0}, 0xff, v{vL16}\nv_mad_u32_u24 v6, v7, s{sD}, v{t0}")
        p(f"s_mul_i32 s{sK2}, s2, 205\ns_lshr_b32 s{sK2}, s{sK2}, 10\ns_mul_i32 s{sB}, s{sK2}, 5\ns_sub_u32 s{sO2}, s2, s{sB}")
        p(f"s_mul_i32 s{sA}, s{sK2}, {32*1280}\ns_lshl_b32 s{sB}, s{sO2}, 8\ns_add_u32 s{sA}, s{sA}, s{sB}\ns_lshl_b32 s{sB}, s{sWave}, 6\ns_add_u32 s{sA}, s{sA}, s{sB}")
        p(f"v_lshrrev_b32 v{t0}, 2, v{L}\nv_and_b32 v{t2}, 48, v{vL16}\nv_mad_u32_u24 v8, v{t0}, s{sD}, v{t2}\nv_add_u32 v{vJ0}, s{sA}, v8")
        p(f"v_add_u32 v{vJ0+1}, {16*1280-1024}, v{vJ0}\nv_mov_b32 v11, {EPOCH}")
        p(f"s_lshl_b32 s{sCw}, s{sCg}, 2\ns_add_u32 s{sCw}, s{sCw}, s{sWave}")
        if ssm:
            p(f"s_lshl_b32 s{sA}, s{sCw}, 5")
            p(f"v_bfe_u32 v{t0}, v{L}, 2, 2\nv_and_b32 v{t2}, 3, v{L}\nv_lshl_add_u32 v{t0}, v{t0}, 3, v{t2}\nv_add_lshl_u32 v10, v{t0}, s{sA}, 1")
        for r_, n in ((sX, 2621440), (sW0, 819200 if ssm else 1966080), (sW1, 819200 if ssm else 1966080), (sWS, WS_SIZE), (sU, 1966080)):
            p(f"s_mov_b32 s{r_+2}, {n}\ns_mov_b32 s{r_+3}, 0x20000")
        p(f"s_mov_b32 s{sT+3}, 0x20000")
        NS = 36 if ssm else 35
        p(f"s_mul_i32 s{sA}, s{sWave}, {NS}\ns_mul_i32 s{sB}, s{sRg}, {144 if ssm else 140}")
        p(f"v_lshrrev_b32 v{t0}, 3, v{L}\nv_and_b32 v{t1}, 7, v{L}\nv_add_u32 v{t0}, s{sA}, v{t0}")
        if not ssm: p(f"s_movk_i32 s{sC}, 2016")
        for n in ((0, 1, 4) if ssm else range(5)):
            if n: p(f"v_add_u32 v{t0}, {(8 if n == 1 else NS - 16) if ssm else (8 if n < 4 else 3)}, v{t0}")
            p(f"v_bfe_u32 v{t2}, v{t0}, 1, 3\nv_xor_b32 v{t2}, v{t2}, v{t1}")
            if ssm:
                p(f"v_bfe_u32 v{t3}, v{t0}, 2, 2\nv_mul_u32_u24 v{t3}, 36, v{t3}")
                p(f"v_and_b32 v{t4}, 1, v{t0}\nv_mad_u32_u24 v{t3}, v{t4}, 18, v{t3}")
                p(f"v_lshrrev_b32 v{t4}, 4, v{t0}\nv_lshl_add_u32 v{t3}, v{t4}, 1, v{t3}")
                p(f"v_bfe_u32 v{t4}, v{t0}, 1, 1\nv_add3_u32 v{t3}, v{t3}, v{t4}, s{sB}")
            else:
                p(f"v_add_u32 v{t3}, s{sB}, v{t0}\nv_lshrrev_b32 v{t4}, 4, v{t3}\nv_mul_u32_u24 v{t5}, 57, v{t4}\nv_lshrrev_b32 v{t5}, 9, v{t5}")
                p(f"v_cmp_gt_u32 vcc, s{sC}, v{t3}\nv_mad_i32_i24 v{t4}, v{t5}, -9, v{t4}\nv_and_b32 v{t5}, 12, v{t3}\nv_lshlrev_b32 v{t5}, 3, v{t5}")
                p(f"v_mad_i32_i24 v{t4}, v{t4}, -12, v{t5}\nv_cndmask_b32 v{t4}, 0, v{t4}, vcc\nv_add_u32 v{t3}, v{t3}, v{t4}")
            p(f"v_lshlrev_b32 v{t2}, 4, v{t2}\nv_mad_u32_u24 v{vXD+n}, v{t3}, s{sD}, v{t2}")
            if n and not ssm: p(f"v_subrev_u32 v{vXD+n}, {1024*n if n < 4 else 27*128}, v{vXD+n}")
        if ssm:
            p(f"v_subrev_u32 v{vXD+1}, 1024, v{vXD+1}\nv_add_u32 v{vXD+2}, 512, v{vXD}\nv_add_u32 v{vXD+3}, 512, v{vXD+1}\nv_subrev_u32 v{vXD+4}, {28*128}, v{vXD+4}")
        if ssm:
            p(f"s_lshl_b32 s{sA}, s{sCw}, 5")
            p(f"v_lshrrev_b32 v{t0}, 5, v{L}\nv_lshlrev_b32 v{t0}, 3, v{t0}\nv_bfe_u32 v{t2}, v{L}, 3, 2\nv_add3_u32 v{t0}, v{t0}, v{t2}, s{sA}")
            p(f"v_lshrrev_b32 v{t2}, 4, v{L}\nv_xor_b32 v{t2}, v{t2}, v{t1}\nv_lshlrev_b32 v{t2}, 4, v{t2}")
            p(f"v_mad_u32_u24 v{vWDm}, v{t0}, s{sD}, v{t2}")
            p(f"v_xor_b32 v{t2}, 64, v{vWDm}\nv_add_u32 v{vWDm+1}, {16*1280-1024}, v{t2}")
            p(f"v_add_u32 v{vWDm+2}, {4*1280-2048}, v{vWDm}\nv_add_u32 v{vWDm+3}, {4*1280-2048}, v{vWDm+1}")
            p(f"s_mul_i32 s{sM0W}, s{sWave}, 8192")
        else:
            p(f"s_mul_i32 s{sA}, s{sWave}, {16*3072}\ns_lshl_b32 s{sB}, s{sCg}, 8\ns_add_u32 s{sA}, s{sA}, s{sB}\ns_mov_b32 s{sC}, 3072")
            p(f"v_lshrrev_b32 v{t0}, 4, v{L}\nv_and_b32 v{t2}, 15, v{L}\nv_lshlrev_b32 v{t3}, 1, v{t0}\nv_xor_b32 v{t2}, v{t2}, v{t3}\nv_lshlrev_b32 v{t2}, 4, v{t2}")
            p(f"v_mad_u32_u24 v{t2}, v{t0}, s{sC}, v{t2}\nv_add_u32 v{vWDm}, s{sA}, v{t2}")
            p(f"v_add_u32 v{vWDm+1}, {4*3072-1024}, v{vWDm}")
            p(f"v_xor_b32 v{t2}, 128, v{vWDm}\nv_add_u32 v{vWDm+2}, {8*3072-2048}, v{t2}\nv_add_u32 v{vWDm+3}, {12*3072-3072}, v{t2}")
            p(f"s_mul_i32 s{sM0W}, s{sWave}, 4096")
        p(f"s_add_u32 s{sM0W}, s{sM0W}, {XIMG}\ns_mul_i32 s{sM0X}, s{sWave}, {NS*128}")
        p("s_waitcnt lgkmcnt(0)")
        self.stamp(p, 0)
        if c['bw']:
            p(f"s_lshl_b32 s{sA}, s2, 2\ns_add_u32 s{sA}, s{sA}, s{sWave}")
            p(f"s_waitcnt vmcnt(0)\ns_memrealtime {S2(sQ1)}\ns_waitcnt lgkmcnt(0)")
            k = 0
            for ptr, nbytes in ((pX, 2621440), (pWg, 1966080), (pWu, 1966080), (pWd, 1966080), (pBre, 819200), (pBim, 819200), (pCre, 819200), (pCim, 819200))[:c['bw']]:
                per = nbytes // 1024
                p(f"s_mul_i32 s{sB}, s{sA}, {per}")
                for o in range(0, per, 1024):
                    p(f"v_add_u32 v12, {o}, v{vL16}\nv_min_u32 v12, {per-16}, v12\nv_add_u32 v12, s{sB}, v12\nglobal_load_dwordx4 a[{4*k}:{4*k+3}], v12, {S2(ptr)}"); k += 1
            p(f"s_waitcnt vmcnt(0)\ns_memrealtime {S2(sSt)}\ns_waitcnt lgkmcnt(0)\ns_sub_u32 s101, s{sSt}, s{sQ1}")
            self.stamp(p, 12)
        if c['chase']:
            ptr = c['chase']
            p(f"s_lshl_b32 s{sA}, s2, 2\ns_add_u32 s{sA}, s{sA}, s{sWave}\ns_lshl_b32 s{sA}, s{sA}, 11\nv_mov_b32 v14, s{sA}")
            p(f"s_waitcnt vmcnt(0)\ns_memrealtime {S2(sQ1)}\ns_waitcnt lgkmcnt(0)")
            for i in range(16):
                p(f"global_load_dword v12, v14, {S2(ptr)} offset:{128*i}\ns_waitcnt vmcnt(0)")
            p(f"s_memrealtime {S2(sSt)}\ns_waitcnt lgkmcnt(0)\ns_sub_u32 s101, s{sSt}, s{sQ1}")
        p(f"s_cmp_eq_u32 s{sWave}, 2\ns_cselect_b64 {S2(sT)}, {S2(pBre)}, {S2(pBim)}\ns_cmp_lt_u32 s{sWave}, 2\ns_cselect_b64 {S2(sT)}, {S2(pX)}, {S2(sT)}")
        side = []
        for j in range(5):
            side.append(f"buffer_load_dwordx4 {V4(16+4*j)}, v6, {S4(sT)}, 0 offen offset:{256*j}")
        wdd = self.wd_job()[0]
        if not c['wdlate']: side += wdd
        if c['wtouch']:
            p(f"s_lshl_b32 s{sA}, s2, 2\ns_add_u32 s{sA}, s{sA}, s{sWave}\ns_mul_i32 s{sA}, s{sA}, 1920\nv_min_u32 v12, 14, v{L}\nv_lshl_add_u32 v12, v12, 7, s{sA}")
            side = [f"global_load_dword a244, v12, {S2(pWg)}", f"global_load_dword a245, v12, {S2(pWu)}"] + side
        side.append(f"buffer_load_dword v15, v11, {S4(sWS)}, 0 offen sc1")
        if c['tlb']:
            p(f"v_min_u32 v13, 15, v{L}\nv_lshlrev_b32 v13, 20, v13\nv_add_u32 v13, {PADOFF}, v13\nv_and_b32 v14, 0x300000, v13")
            side += [f"global_load_dword a246, v13, {S2(pWs)}", f"global_load_dword a247, v14, {S2(pOut)}"]
            side += [f"global_load_dword a{248+i}, v{vL16}, {S2(ptr)}" for i, ptr in enumerate((pCre, pCim, pWd, pDsk))]
        p(f"s_mov_b64 {S2(sU)}, {S2(pWd)}\ns_mov_b64 {S2(sX)}, {S2(pX)}\ns_mov_b64 {S2(sWS)}, {S2(pWs)}")
        p(f"s_mov_b64 {S2(sW0)}, {S2(pBre if ssm else pWg)}\ns_mov_b64 {S2(sW1)}, {S2(pBim if ssm else pWu)}")
        if ssm:
            for i, ptr in enumerate((pLre, pLim, pLdt)):
                p(f"global_load_ushort v{100+2*i}, v10, {S2(ptr)}\nglobal_load_ushort v{101+2*i}, v10, {S2(ptr)} offset:8")
        st0 = self.dma_stage(0, ssm); st1 = self.dma_stage(1, ssm)
        if c['order'] == 1:
            p.add(st0[0][:-2]); st0[0] = st0[0][-2:]
            for g in st0[5:]: p.add(g)
            st0 = st0[:5]
        elif c['order'] == 2:
            for g in st0: p.add(g)
            st0 = []
        p.add(side)
        dq = st0 + st1[:c['pre1']]
        self.dq_rest = st1[c['pre1']:] + (wdd if c['wdlate'] else [])
        q = Seq()
        q(f"v_add_u32 v{vL16b}, 0x1000, v{vL16}")
        q(f"v_and_b32 v{t0}, 15, v{L}\nv_lshrrev_b32 v{t1}, 4, v{L}\nv_lshrrev_b32 v{t2}, 1, v{t0}\nv_xor_b32 v{t2}, v{t2}, v{t1}\nv_lshlrev_b32 v{t2}, 4, v{t2}")
        q(f"v_lshl_add_u32 v{vXR0}, v{t0}, 7, v{t2}\nv_xor_b32 v{vXR1}, 64, v{vXR0}")
        if ssm:
            q(f"v_add_u32 v{vWR0}, s{sM0W}, v{vXR0}\nv_add_u32 v{vWR1}, s{sM0W}, v{vXR1}")
        else:
            q(f"v_bfe_u32 v{t0}, v{L}, 2, 3\ns_lshl_b32 s{sA}, s{sWave}, 1\nv_xor_b32 v{t0}, s{sA}, v{t0}\nv_lshlrev_b32 v{t0}, 5, v{t0}")
            q(f"v_and_b32 v{t2}, 3, v{L}\nv_lshl_add_u32 v{t0}, v{t2}, 3, v{t0}")
            q(f"v_bfe_u32 v{t2}, v{L}, 2, 2\nv_lshl_add_u32 v{t2}, v{t1}, 3, v{t2}\nv_lshl_add_u32 v{t0}, v{t2}, 8, v{t0}")
            q(f"v_add_u32 v{vWR0}, {XIMG}, v{t0}\nv_xor_b32 v{vWR1}, 32, v{vWR0}")
            q(f"v_mov_b32 v12, 0x3f803f80\nv_mov_b32 v13, 0x3f803f80\nv_lshlrev_b32 v{t0}, 3, v{L}\nv_add_u32 v{t2}, {STG}, v{t0}\nv_add_u32 v{t3}, {2*STG}, v{t0}")
            for r_ in (t0, t2, t3): q(f"ds_write_b64 v{r_}, v[12:13] offset:{140*128}", tag='ones')
        q(f"s_mul_i32 s{sA}, s{sCt}, {80*1280}")
        q(f"v_lshrrev_b32 v{t0}, 3, v{L}\nv_and_b32 v{t2}, 7, v{L}\nv_lshrrev_b32 v{t3}, 4, v{L}\nv_xor_b32 v{t2}, v{t2}, v{t3}\nv_lshlrev_b32 v{t2}, 4, v{t2}")
        q(f"v_mad_u32_u24 v{t0}, v{t0}, s{sD}, v{t2}\nv_add_u32 v{vCD0}, s{sA}, v{t0}\nv_xor_b32 v{t0}, 64, v{vCD0}\nv_add_u32 v{vCD1}, {8*1280-1024}, v{t0}")
        q(f"s_mul_i32 s{sCslot}, s{sWave}, 10240\nv_add_u32 v{vCpat}, s{sCslot}, v{vXR0}")
        self.flag_offsets(q, vFG, 140, 48, f"s_mul_i32 s{sC}, s{sWave}, 12", 12, FLAGG)
        self.flag_offsets(q, vFS, 144, 20, f"s_and_b32 s{sC}, s{sWave}, 1\ns_mul_i32 s{sC}, s{sC}, 10", 10, FLAGS)
        if c['rot2'] and c['map2']:
            q(f"s_and_b32 s{sA}, s{sCt}, 3\ns_and_b32 s{sC}, s{sRt}, 7\ns_mul_i32 s{sRot2}, s{sC}, 3\ns_lshr_b32 s{sRot2}, s{sRot2}, 1\ns_mul_i32 s{sB}, s{sA}, 3\ns_add_u32 s{sRot2}, s{sRot2}, s{sB}")
            q(f"s_cmp_ge_u32 s{sRot2}, 12\ns_cselect_b32 s{sB}, 12, 0\ns_sub_u32 s{sRot2}, s{sRot2}, s{sB}")
            q(f"s_mul_i32 s{sRotC}, s{sC}, 5\ns_lshr_b32 s{sRotC}, s{sRotC}, 3\ns_add_u32 s{sRotC}, s{sRotC}, s{sA}")
            q(f"s_cmp_ge_u32 s{sRotC}, 5\ns_cselect_b32 s{sB}, 5, 0\ns_sub_u32 s{sRotC}, s{sRotC}, s{sB}")
        elif c['rot2']:
            q(f"s_and_b32 s{sA}, s{sRt}, 3\ns_mul_i32 s{sRot2}, s{sCt}, 3\ns_lshr_b32 s{sRot2}, s{sRot2}, 1\ns_mul_i32 s{sB}, s{sA}, 3\ns_add_u32 s{sRot2}, s{sRot2}, s{sB}")
            q(f"s_cmp_ge_u32 s{sRot2}, 12\ns_cselect_b32 s{sB}, 12, 0\ns_sub_u32 s{sRot2}, s{sRot2}, s{sB}")
            q(f"s_mul_i32 s{sRotC}, s{sCt}, 5\ns_lshr_b32 s{sRotC}, s{sRotC}, 3\ns_add_u32 s{sRotC}, s{sRotC}, s{sA}")
            q(f"s_cmp_ge_u32 s{sRotC}, 5\ns_cselect_b32 s{sB}, 5, 0\ns_sub_u32 s{sRotC}, s{sRotC}, s{sB}")
        else:
            q(f"s_mov_b32 s{sRot2}, 0\ns_mov_b32 s{sRotC}, 0")
        q(f"s_mul_i32 s{sB}, s{sRg}, {20 if ssm else 48}\ns_add_u32 s{sB}, s{sB}, s{sCw}\ns_lshl_b32 s{sB}, s{sB}, 6\ns_add_u32 s{sFlag}, s{sB}, {FLAGS if ssm else FLAGG}")
        q(f"s_mul_i32 s{sHo}, s{sCw}, {HS}\ns_add_u32 s{sHo}, s{sHo}, {H + (48*HS if ssm else 0)}")
        self.side_addr(q)
        nfree = len(q.items)
        if ssm: self.ssm_consts(q)
        self.side_stats(q)
        q(f"v_readfirstlane_b32 s{sTag}, v15\ns_nop 1\ns_mul_i32 s{sTag}, s{sTag}, 1664525\ns_add_u32 s{sTag}, s{sTag}, 1013904223")
        items = q.items; nh = c['head']
        for g in dq[:nh]: p.add(g)
        dq = dq[nh:]
        tot = sum(len(x) for x in items); k = 0; cnt = 0
        for it in items:
            p.add(it); cnt += len(it)
            while k < len(dq) and cnt * len(dq) >= (k + 1) * tot: p.add(dq[k]); k += 1
        while k < len(dq): p.add(dq[k]); k += 1
        self.side_store(p, ssm)
        p(f"s_cmp_lt_u32 s{sWave}, 2\ns_cselect_b64 {S2(sT)}, {S2(pCre)}, {S2(pCim)}\ns_mov_b32 s{sT+2}, 819200")

    def wd_job(self):
        d = [[f"s_lshl_b32 s{sC}, s{sWave}, 11", f"s_add_u32 m0, s{sC}, {L_WDST}", I(f"buffer_load_dwordx4 v{vJ0}, {S4(sU)}, 0 offen lds", 'wdst')],
             [I(f"buffer_load_dwordx4 v{vJ0+1}, {S4(sU)}, 0 offen offset:1024 lds", 'wdst')]]
        r = [f"ds_read_b64_tr_b16 {V2(vJD+4*nbl+2*t)}, v{vJ0+2} offset:{t*1024 + nbl*32}" for nbl in range(2) for t in range(2)]
        st = [[I(f"buffer_store_dwordx4 {V4(vJD+4*nbl)}, v{vL16}, {S4(sWS)}, s{98+nbl} offen sc1", 'side')] for nbl in range(2)]
        st[0] = [f"s_mov_b64 {S2(sU)}, {S2(pOut)}", f"s_mov_b32 s{sU+2}, 5242880"] + st[0]
        return d, r, st

    def side_addr(self, q):
        L = vLane
        q(f"s_cmp_lt_u32 s{sWave}, 2\ns_cselect_b32 s{sB}, 0, 1408\ns_cselect_b32 s{sC}, 0, 2048\ns_cselect_b32 s{sA}, 0, {OOB}\n"
          f"v_mov_b32 v40, s{sA}\nv_add_u32 v44, s{sB}, v7\nv_cmp_gt_u32 {S2(sMask)}, s{sC}, v44")
        q(f"s_mov_b32 s{sA}, 1821\nv_mul_u32_u24 v1, s{sA}, v44\nv_lshrrev_b32 v1, 18, v1")
        q(f"v_mul_u32_u24 v2, 144, v1\nv_sub_u32 v2, v44, v2\nv_mul_u32_u24 v3, 57, v2\nv_lshrrev_b32 v3, 10, v3")
        q(f"v_mul_u32_u24 v4, 18, v3\nv_sub_u32 v4, v2, v4")
        q(f"v_lshrrev_b32 v5, 1, v3\nv_cmp_gt_u32 vcc, 14, v1\nv_mul_u32_u24 v0, 36, v5\nv_sub_u32 v0, v2, v0\nv_and_b32 v0, 60, v0\nv_mul_u32_u24 v0, 3, v0\n"
          f"v_lshlrev_b32 v2, 5, v5\nv_sub_u32 v0, v0, v2\nv_cndmask_b32 v0, 0, v0, vcc\nv_add_u32 v0, v0, v44\nv_lshl_add_u32 v40, v0, 4, v40")
        q(f"v_lshl_add_u32 v1, v1, 2, v5\nv_mul_u32_u24 v1, 72, v1")
        q(f"v_and_b32 v3, 1, v3\nv_lshl_add_u32 v3, v4, 1, v3\nv_add_lshl_u32 v1, v1, v3, 2\nv_add_u32 v1, {STATS}, v1")
        q(f"v_lshrrev_b32 v2, 3, v7\nv_and_b32 v3, 3, v7\nv_lshl_add_u32 v2, v2, 2, v3\nv_and_b32 v3, 4, v7\nv_lshl_add_u32 v2, v2, 4, v3")
        q(f"s_lshl_b32 s{sA}, s{sWave}, 3\ns_add_u32 s{sA}, s{sA}, {CSUM - 16}\nv_add_u32 v2, s{sA}, v2\nv_mov_b32 v3, {OOB}")
        q(f"v_cndmask_b32 v41, v1, v2, {S2(sMask)}\nv_cndmask_b32 v42, v1, v3, {S2(sMask)}")
        q(f"s_lshl_b32 s{sA}, s{sWave}, 11\ns_add_u32 s{sA}, s{sA}, {L_WDST}\n"
          f"v_lshrrev_b32 v0, 2, v{L}\nv_and_b32 v1, 3, v{L}\nv_lshlrev_b32 v1, 3, v1\nv_lshl_add_u32 v0, v0, 6, v1\nv_add_u32 v{vJ0+2}, s{sA}, v0")
        for nbl in range(2):
            q(f"s_lshl_b32 s{sA}, s{sO2}, 3\ns_lshl_b32 s{sB}, s{sWave}, 1\ns_add_u32 s{sA}, s{sA}, s{sB}\ns_add_u32 s{sA}, s{sA}, {nbl}")
            q(f"s_mul_i32 s{sB}, s{sA}, 205\ns_lshr_b32 s{sB}, s{sB}, 10\ns_mul_i32 s{sB}, s{sB}, 255\ns_add_u32 s{sA}, s{sA}, s{sB}")
            q(f"s_mul_i32 s{sB}, s{sK2}, 5\ns_add_u32 s{sA}, s{sA}, s{sB}\ns_lshl_b32 s{sA}, s{sA}, 10\ns_add_u32 s{98+nbl}, s{sA}, {WD}")

    def side_stats(self, q):
        q("v_mov_b32 v45, 0x3f803f80")
        for j in range(20):
            a = 46 + (j & 1); b = 48 + (j & 1)
            q(f"v_dot2_f32_bf16 v{a}, v{16+j}, v45, {'0' if j < 2 else 'v%d' % a}\nv_dot2_f32_bf16 v{b}, v{16+j}, v{16+j}, {'0' if j < 2 else 'v%d' % b}")
        if not self.c['wdlate']:
            q.items.append([W('wdst')])
            for x in self.wd_job()[1]: q(x)
        q("v_add_f32 v55, v46, v47\nv_add_f32 v48, v48, v49")
        for r in (8, 4, 2, 1):
            q(f"v_add_f32_dpp v55, v55, v55 row_ror:{r} row_mask:0xf bank_mask:0xf\nv_add_f32_dpp v48, v48, v48 row_ror:{r} row_mask:0xf bank_mask:0xf")
        q(f"v_mul_f32 v46, {INV640}, v55\nv_mul_f32 v48, {INV640}, v48\nv_fma_f32 v48, -v46, v46, v48\nv_max_f32 v48, 0, v48")
        q.add(self.bfr(48, 48)); q(f"v_add_f32 v48, {EPS}, v48"); q.add(self.bfr(48, 48))
        q("v_sqrt_f32 v48, v48"); q.add(self.bfr(52, 46)); q.add(self.bfr(53, 48)); q("v_rcp_f32 v54, v53")
        q(f"v_mul_f32 v50, v52, v54\nv_cndmask_b32 v51, v54, v55, {S2(sMask)}")

    def side_store(self, p, ssm):
        if not self.c['wdlate']:
            for g in self.wd_job()[2]: p.add(g)
        if ssm:
            p(f"s_lshl_b32 s{sB}, s{sCw}, 4\ns_add_u32 s{sB}, s{sB}, s{sRg}\ns_lshl_b32 s{sB}, s{sB}, 8\ns_add_u32 s{sCo}, s{sB}, {CARRY}")
            p(f"v_mov_b32 v13, -1\nv_lshlrev_b32 v14, 2, v{vLane}")
            p(f"buffer_store_dword v13, v14, {S4(sWS)}, s{sCo} offen sc1", tag='side')
        p(f"s_mov_b32 exec_lo, 0x00010001\ns_mov_b32 exec_hi, 0x00010001")
        p(f"buffer_store_dwordx4 v[52:55], v40, {S4(sWS)}, 0 offen sc1", tag='side')
        p(f"buffer_store_dword v51, v41, {S4(sWS)}, 0 offen sc1", tag='side')
        p(f"buffer_store_dword v50, v42, {S4(sWS)}, 0 offen offset:144 sc1", tag='side')
        p("s_mov_b64 exec, -1")

    def ssm_consts(self, p):
        for i in range(100, 106): p(f"v_lshlrev_b32 v{i}, 16, v{i}")
        for i in (0, 1):
            p(f"v_mul_f32 v{104+i}, {LOG2E}, v{104+i}\nv_exp_f32 v{104+i}, v{104+i}")
        for i in (0, 1): p.add(self.bfr(104+i, 104+i))
        p("v_pk_mul_f32 v[106:107], v[104:105], v[100:101]\nv_pk_mul_f32 v[108:109], v[104:105], v[102:103]")
        for i in (0, 1):
            p(f"v_mul_f32 v{106+i}, {LOG2E}, v{106+i}\nv_exp_f32 v{106+i}, v{106+i}")
            p(f"v_mul_f32 v{108+i}, {INV2PI}, v{108+i}\nv_rndne_f32 v110, v{108+i}\nv_sub_f32 v{108+i}, v{108+i}, v110")
            p(f"v_cos_f32 v{112+i}, v{108+i}\nv_sin_f32 v{114+i}, v{108+i}")
        p(f"v_pk_mul_f32 {V2(LAM)}, v[106:107], v[112:113]\nv_pk_mul_f32 {V2(LAM+2)}, v[106:107], v[114:115]")
        p(f"v_pk_mul_f32 v[106:107], v[100:101], v[100:101]\nv_pk_fma_f32 v[106:107], v[102:103], v[102:103], v[106:107]")
        p("v_rcp_f32 v106, v106\nv_rcp_f32 v107, v107")
        p(f"v_add_f32 v112, -1.0, v{LAM}\nv_add_f32 v113, -1.0, v{LAM+1}\nv_mov_b32 v114, v{LAM+2}\nv_mov_b32 v115, v{LAM+3}")
        p("v_add_f32 v106, v106, v106\nv_add_f32 v107, v107, v107")
        p("v_pk_mul_f32 v[100:101], v[100:101], v[106:107]\nv_pk_mul_f32 v[102:103], v[102:103], v[106:107] neg_lo:[1,0] neg_hi:[1,0]")
        p.add(self.cmul(COEF, 112, 100))
        p.add(self.cmul(100, LAM, LAM))
        p.add(self.cmul(104, 100, 100))
        p.add(self.cmul(108, 104, 104))
        p.add(self.cmul(104, 108, 108))
        p.add(self.cmul(L18, 104, 100))
        p.add(self.cmul(L36, L18, L18))
        p.add(self.cmul(100, L36, L36))
        p.add(self.cmul(104, 100, L36))
        p(f"v_cmp_le_u32 {S2(sQ1)}, 16, v{vLane}\nv_cmp_le_u32 {S2(sQ2)}, 32, v{vLane}\nv_cmp_le_u32 {S2(sQ3)}, 48, v{vLane}")
        p.add(self.cone(108))
        p.add(self.csel(F36, 104, 100, sQ1)); p.add(self.csel(F36, F36, L36, sQ2)); p.add(self.csel(F36, F36, 108, sQ3))

    def dma_stage(self, s, ssm):
        buf = (s % 3) * STG; tag = f'st{s}'
        g = []
        for n in range(4):
            pre = self.chunk_ops(s, ssm) + [f"s_add_u32 m0, s{sM0X}, {buf}"] if n == 0 else []
            g.append(pre + [I(f"buffer_load_dwordx4 v{vXD+n}, {S4(sX)}, s{sOffX} offen offset:{1024*n} lds", tag)])
        g.append([I(f"buffer_load_dwordx4 v{vXD+4}, {S4(sX)}, s{sOffX} offen offset:{(28 if ssm else 27)*128} lds", tag)])
        for m in range(2):
            for n in range(4):
                pre = [f"s_add_u32 m0, s{sM0W}, {buf + m * (4096 if ssm else 16384)}"] if n == 0 else []
                g.append(pre + [I(f"buffer_load_dwordx4 v{vWDm+n}, {S4(sW1 if m else sW0)}, s{sOffW} offen offset:{1024*n} lds", tag)])
        return g

    def xread(self, B):
        h = (B // 9) & 1; b = B % 9
        return f"ds_read_b128 {V4(xr(B))}, v{vXR1 if h else vXR0} offset:{b*2048}"
    def wreads(self, K, ssm):
        h = K & 1; out = []
        for t in range(4):
            d = wb(K & 1, t)
            if ssm:
                out.append(f"ds_read_b128 {V4(d)}, v{vWR1 if h else vWR0} offset:{(t & 1)*4096 + (t >> 1)*2048}")
            else:
                for tt in range(2):
                    out.append(f"ds_read_b64_tr_b16 {V2(d+2*tt)}, v{vWR1 if (t >> 1) else vWR0} offset:{(t & 1)*16384 + (32*h + 4*tt)*256}")
        return out

    def wd_ops(self):
        ops = []
        for i in range(12):
            if i == 0:
                pre = [f"s_mov_b32 s{sK2}, s{sRot2}", f"s_mul_i32 s{sD}, s{sCt}, 52", f"s_mul_i32 s{sC}, s{sWave}, 12", f"s_add_u32 s{sD}, s{sD}, s{sC}",
                       f"s_mul_i32 s{sD}, s{sD}, 5120", f"s_add_u32 s{sD}, s{sD}, {WD}"]
            else:
                pre = [f"s_add_u32 s{sK2}, s{sK2}, 1", f"s_cmp_eq_u32 s{sK2}, 12", f"s_cselect_b32 s{sK2}, 0, s{sK2}"]
            pre += [f"s_mul_i32 s{sO2}, s{sK2}, 5120", f"s_add_u32 s{sO2}, s{sO2}, s{sD}"]
            for nb in range(5):
                a = 20 * i + 4 * nb
                ld = (f"buffer_load_dwordx4 {A4(a)}, v{vL16}, {S4(sWS)}, s{sO2} offen offset:{1024*nb} sc1" if nb < 4 else
                      f"buffer_load_dwordx4 {A4(a)}, v{vL16b}, {S4(sWS)}, s{sO2} offen sc1")
                ops.append((pre if nb == 0 else []) + [ld])
        return ops
    def crow(self, i): return (2, 0, 1, 3, 2)[i] * 40960
    def c_ops(self, i):
        ops = []
        for j in range(10):
            pre = []
            if j == 0:
                if i: pre = [f"s_add_u32 s{sKC}, s{sKC}, 1", f"s_cmp_eq_u32 s{sKC}, 5", f"s_cselect_b32 s{sKC}, 0, s{sKC}"]
                else: pre = [f"s_mov_b32 s{sKC}, s{sRotC}", f"s_and_b32 s99, s{sWave}, 1", f"s_mul_i32 s99, s99, 640"]
                pre += [f"s_lshl_b32 s98, s{sKC}, 7", f"s_add_u32 s98, s98, s99"]
            elif j % 2 == 0:
                pre = [f"s_add_u32 s98, s98, {16*1280}"]
            if j % 2 == 0: pre += [f"s_add_u32 m0, s{sCslot}, {self.crow(i) + j * 1024}"]
            ops.append(pre + [I(f"buffer_load_dwordx4 v{vCD1 if j & 1 else vCD0}, {S4(sT)}, s98 offen offset:{1024*(j & 1)} lds", f'c{i}')])
        return ops

    def poll_check(self, load, cmpc, reg):
        ok = self.lab('ok'); lp = self.lab('spin')
        out = [f"v_cmp_ne_u32 vcc, {cmpc}, v{reg}", f"s_cbranch_vccz {ok}"]
        slow = [f"s_mov_b32 s{sSpin}, 0x10000", f"{lp}:", "s_sleep 2", load, "s_waitcnt vmcnt(0)",
                f"v_cmp_ne_u32 vcc, {cmpc}, v{reg}", f"s_sub_u32 s{sSpin}, s{sSpin}, 1", f"s_cmp_eq_u32 s{sSpin}, 0",
                f"s_cbranch_scc1 {ok}", f"s_cbranch_vccnz {lp}"]
        out += [self.optI(x) for x in slow] + [f"{ok}:"]
        return out
    def optI(self, x):
        i = I(x, opt=True)
        if i.kind == 'vmem': i.kind = 'ctl'; i.wr = set(); i.rd = set()
        return i

    def mainloop(self, p, ssm):
        c = self.c; L = vLane
        mf = []
        for K in range(20):
            for b in range(9):
                B = K * 9 + b
                for t in (range(4) if not (c['snake'] and b & 1) else range(3, -1, -1)):
                    a = acc(b, t); w = wb(K & 1, t); x = xr(B)
                    cc = '0' if K == 0 else V4(a)
                    if ssm: mf.append(f"v_mfma_f32_16x16x32_bf16 {V4(a)}, {V4(x)}, {V4(w)}, {cc}")
                    else: mf.append(f"v_mfma_f32_16x16x32_bf16 {V4(a)}, {V4(w)}, {V4(x)}, {cc}")
        F = {}
        def put(B, g, items): F.setdefault(B * 4 + g, []).extend(items if isinstance(items, list) else [items])
        def place(groups, b0, b1):
            n = len(groups); nb = b1 - b0
            blocks = [b0 + (i * nb) // n for i in range(n)]
            for i, g in enumerate(groups):
                two = i + 1 < n and blocks[i + 1] == blocks[i]
                assert not (two and i > 0 and blocks[i - 1] == blocks[i])
                put(blocks[i], 0 if two else (3 if blocks[i] % 9 == 0 else 2), list(g))
        p.wait('st0', 'ones'); p("s_barrier")
        self.stamp(p, 1)
        wr = self.wreads(0, ssm); k = len(wr) // 4
        p.add(wr[:k]); p(self.xread(0)); p.add(wr[k:])
        for B in range(1, 5): p(self.xread(B))
        BB = 5
        pf = self.wd_ops() + self.c_ops(0)
        ps = c['poll_stage']; sa = 2 if c['wdlate'] else 0
        assert ps > sa
        ld = f"buffer_load_dword v{vPoll}, v{vL16}, {S4(sWS)}, s{sA} offen sc1"
        for s in range(10):
            B0 = s * 18
            for B in range(B0 + 5, B0 + 18): put(B - 5, 0, self.xread(B))
            w1 = self.wreads(2 * s + 1, ssm)
            for i, r in enumerate(w1): put(B0 + 1 + (i * 6) // len(w1), 1 if i % 2 == 0 or ssm else 3, r)
            Bb = B0 + 9 + BB
            tags = [f'st{s+1}', 'ALLLG'] + (['side'] if s == sa else []) + (['sstat'] if s >= ps + 2 else [])
            bar = [W(*tags), "s_barrier"]
            if c['x_nobar'] and s not in (0, ps, 9): bar = [W(*tags)]
            if s == ps: put(Bb - 1, 1, self.poll_check(ld, f"s{sTag}", vPoll))
            if s < 9:
                d = STG if (s + 1) % 3 else -2 * STG
                op = "v_add_u32" if d > 0 else "v_subrev_u32"
                upd = [f"{op} v{r}, {abs(d)}, v{r}" for r in (vWR0, vXR0, vWR1, vXR1)]
                put(Bb - 2, 1, upd[:2]); put(Bb - 1, 0, upd[2:])
            if c['stamps'] == 2:
                q = Prog(); self.stamp(q, 20 + s); bar += q.L
            put(Bb - 1, 3, bar)
            if s < 9:
                w0 = self.wreads(2 * s + 2, ssm); k = len(w0) // 4
                seq = w0[:k] + [self.xread(B0 + 18)] + w0[k:2*k] + [self.xread(B0 + 19)] + w0[2*k:]
                seq += [self.xread(B0 + 20), self.xread(B0 + 21), self.xread(B0 + 22)]
                if ssm: spots = [(0, 0), (0, 1), (0, 3), (1, 0), (1, 1), (1, 3), (2, 0), (2, 1), (3, 0)]
                else: spots = [(0, 0), (0, 1), (0, 2), (0, 3), (1, 0), (1, 1), (1, 3), (2, 0), (2, 1), (2, 3), (3, 0), (3, 1), (3, 3)]
                for (db, g), r in zip(spots, seq): put(Bb + db, g, r)
            if s == sa or s == ps:
                arr = self.lab('arr')
                cond = [f"s_cmp_lg_u32 s{sWave}, 0"] if s == sa else [f"s_or_b32 s{sB}, s{sWave}, s2"]
                adr = [f"s_lshl_b32 s{sB}, s2, 4", f"s_add_u32 s{sB}, s{sB}, {ARR}"] if s == sa else [f"s_mov_b32 s{sB}, {EPOCH}"]
                put(Bb, 0, cond + [f"s_cbranch_scc1 {arr}"] +
                    [I(x, opt=True) for x in adr + [f"v_mov_b32 v{vPoll}, s{sTag}", "s_mov_b64 exec, 1",
                                              f"buffer_store_dword v{vPoll}, v{vL16}, {S4(sWS)}, s{sB} offen sc1", "s_mov_b64 exec, -1"]] + [f"{arr}:"])
            early = []; late = []
            if s == ps: early.append([f"s_lshl_b32 s{sA}, s{sWave}, 10", f"s_add_u32 s{sA}, s{sA}, {ARR}", ld])
            if s == 0: early += self.dq_rest
            if s + 2 < 10 and not (c['x_nodma'] and s > 0): early += self.dma_stage(s + 2, ssm)
            if s == 1 and c['wdlate']:
                _, rr, ss = self.wd_job()
                put(B0 + 7, 1, [W('wdst'), rr[0]]); put(B0 + 8, 1, [rr[1]]); put(B0 + 10, 1, [rr[2]]); put(B0 + 11, 1, [rr[3]])
                late += ss
            if s == 1 and c['touch']:
                late.append([f"s_mul_i32 s{sA}, s2, 25", f"s_and_b32 s{sB}, s{sWave}, 1", f"s_mul_i32 s{sB}, s{sB}, 13", f"s_add_u32 s{sA}, s{sA}, s{sB}", f"s_lshl_b32 s{sA}, s{sA}, 7",
                             f"v_min_u32 v{vTmp}, 12, v{L}", f"v_lshlrev_b32 v{vTmp}, 7, v{vTmp}", f"buffer_load_dword a241, v{vTmp}, {S4(sT)}, s{sA} offen"])
            if s == 2 and c['touch'] > 1:
                late.append([f"s_mov_b32 s{sA}, {2*HS}", f"s_mov_b32 s{sC}, {H + 139*1024}", f"v_min_u32 v{vTmp}, 43, v{L}", f"v_mul_u32_u24 v{vTmp}, s{sA}, v{vTmp}",
                             f"buffer_load_dword a242, v{vTmp}, {S4(sWS)}, s{sC} offen"])
                late.append([f"s_mul_i32 s{sA}, s{sRt}, {64*2560}", f"v_mov_b32 v{vTmp}, 0", f"buffer_load_dword a243, v{vTmp}, {S4(sU)}, s{sA} offen"])
            if s == ps: late += self.stat_loads(ssm)
            if s >= ps:
                n = c['wd_late'] if s >= 8 else (c['wd_mid'] - len(late))
                n = max(0, min(n, len(pf) - (10 if s < 9 else 0)))
                ops, pf = pf[:n], pf[n:]
                if s >= 8: early += ops
                else: late += ops
            if s == 0 or s >= 8:
                if early + late: place(early + late, B0, B0 + 18)
            else:
                if early: place(early, B0, B0 + max(13, len(early)))
                if late: place(late, B0 + 14, B0 + 18)
            if s == 9 and not ssm:
                put(B0, 1, [f"v_and_b32 v{vTmp}, 0xff, v{vL16}"]); put(B0, 3, [f"v_add_u32 v{vTmp}, {L_STAT}, v{vTmp}"])
                for b in range(9):
                    put(B0 + 1 + b, 3, [f"ds_read_b64 {V2(GST+2*b)}, v{vTmp} offset:{256*b}"])
                    if b < 9: put(B0 + 6 + b, 1, [f"v_rcp_f32 v{GK1+b}, v{GST+2*b+1}"]); put(B0 + 7 + b, 3, [f"v_mul_f32 v{GK1+b}, {NLOG2E}, v{GK1+b}"])
            if s == 9 and ssm:
                put(B0 + 10, 1, [f"v_lshrrev_b32 v{vTmp}, 4, v{L}", f"v_mul_u32_u24 v{vTmp}, 288, v{vTmp}"]); put(B0 + 11, 1, [f"v_add_u32 v{vTmp}, {L_STAT}, v{vTmp}"])
                for i, x in enumerate(self.rsrd(0) + self.rsrd(1)): put(B0 + 14 + i // 2, i % 2, [x])
            if s == 8 and not ssm:
                T = 245
                seq = [f"s_mul_i32 s{sA}, s{sRg}, 140", f"v_and_b32 v{T}, 15, v{L}", f"v_add_u32 v{T}, s{sA}, v{T}", f"v_lshrrev_b32 v{T+1}, 4, v{T}",
                       f"v_and_b32 v{T}, 15, v{T}", f"v_lshlrev_b32 v{T}, 4, v{T}", f"v_lshl_add_u32 v{T}, v{T+1}, 10, v{T}",
                       f"v_lshrrev_b32 v{T+1}, 4, v{L}", f"v_lshl_add_u32 v{GHA}, v{T+1}, 8, v{T}"]
                for i, x in enumerate(seq): put(B0 + 2 + i, 3, [x])
        p.add(interleave(mf, F))
        self.pf_rest = pf

    def rsreg(self, b): return (176, 236)[b] if b < 2 else 144 + 8 * (b & 1)
    def rsrd(self, b): return [f"ds_read_b128 {V4(self.rsreg(b))}, v{vTmp} offset:{16*b}", f"ds_read_b128 {V4(self.rsreg(b)+4)}, v{vTmp} offset:{144+16*b}"]

    def stat_loads(self, ssm):
        n = 288 if ssm else 576
        pre = [f"s_mul_i32 s{sA}, s{sRg}, {1152 if ssm else 2240}", f"s_mul_i32 s{sC}, s{sWave}, {n}", f"s_add_u32 s{sA}, s{sA}, s{sC}",
               f"s_add_u32 s{sA}, s{sA}, {STATS if ssm else STATG}", f"s_add_u32 m0, s{sC}, {L_STAT}"]
        g = [pre + [I(f"buffer_load_dwordx4 v{vL16}, {S4(sWS)}, s{sA} offen sc1 lds", 'sstat')]]
        if ssm:
            g.append([f"s_lshl_b32 s{sA}, s{sCw}, 8", f"s_add_u32 s{sA}, s{sA}, {CSUM}", f"v_and_b32 v{vTmp}, 0xff, v{vL16}",
                      f"buffer_load_dwordx4 {V4(CS)}, v{vTmp}, {S4(sWS)}, s{sA} offen sc1"])
        return g

    def glu_tail(self, p):
        L = vLane; c = self.c
        pf = self.pf_rest + self.c_ops(1) + self.c_ops(2) + self.c_ops(3)
        CSR = 144
        T = 172
        self.stamp(p, 2)
        for i in range(16): p(f"v_mov_b32_dpp v{CSR+i}, v{acc(8,0)+i} row_newbcast:12 row_mask:0xf bank_mask:0xf")
        for b in range(9):
            ms = V2(GST + 2 * b); k1 = V2(GK1 + (b & ~1)); ks = b & 1
            pairs = [(acc(b, 2*pr) + 2*hh, acc(b, 2*pr+1) + 2*hh, CSR + 8*pr + 2*hh, CSR + 8*pr + 4 + 2*hh) for pr in range(2) for hh in range(2)]
            body = []
            for (g, u, cg, cu) in pairs:
                body.append(f"v_pk_fma_f32 {V2(g)}, {V2(cg)}, {ms}, {V2(g)} op_sel_hi:[1,0,1] neg_lo:[0,1,0] neg_hi:[0,1,0]")
            for (g, u, cg, cu) in pairs:
                body.append(f"v_pk_mul_f32 {V2(g)}, {V2(g)}, {k1} op_sel:[0,{ks}] op_sel_hi:[1,{ks}]")
            for (g, u, cg, cu) in pairs:
                body += [f"v_exp_f32 v{g}, v{g}", f"v_exp_f32 v{g+1}, v{g+1}",
                         f"v_pk_fma_f32 {V2(u)}, {V2(cu)}, {ms}, {V2(u)} op_sel_hi:[1,0,1] neg_lo:[0,1,0] neg_hi:[0,1,0]"]
            for (g, u, cg, cu) in pairs:
                body.append(f"v_pk_fma_f32 {V2(g)}, {V2(g)}, {ms}, {ms} op_sel:[0,1,1] op_sel_hi:[1,1,1]")
            for (g, u, cg, cu) in pairs:
                body += [f"v_rcp_f32 v{g}, v{g}", f"v_rcp_f32 v{g+1}, v{g+1}"]
            for (g, u, cg, cu) in pairs:
                body.append(f"v_pk_mul_f32 {V2(u)}, {V2(u)}, {V2(g)}")
            D = T + 4 * (b & 1)
            for i, (g, u, cg, cu) in enumerate(pairs):
                body.append(f"v_cvt_pk_bf16_f32 v{D+i}, v{u}, v{u+1}")
            F = {}
            n = c['g_epi']
            for i in range(n):
                if pf: F[(i + 1) * 40 // (n + 1)] = pf.pop(0)
            p.add(interleave(body, F))
            if b in (4, 8): p(f"s_add_u32 s{sHo}, s{sHo}, 4096")
            if b == 8: p("s_mov_b32 exec_lo, 0x0fff0fff\ns_mov_b32 exec_hi, 0x0fff0fff")
            p(f"buffer_store_dwordx4 {V4(D)}, v{GHA}, {S4(sWS)}, s{sHo} offen offset:{1024*(b & 3)} sc1", tag='hst')
            if b == 8: p("s_mov_b64 exec, -1")
        self.stamp(p, 3)
        self.publish(p, pf)

    def flag_store(self):
        return [f"v_mov_b32 v{vTmp}, s{sTag}", W('hst'), "s_mov_b64 exec, 1",
                f"buffer_store_dword v{vTmp}, v{vL16}, {S4(sWS)}, s{sFlag} offen sc1", "s_mov_b64 exec, -1"]
    def ldg(self): return f"buffer_load_dword v{vPoll}, v{vFG}, {S4(sWS)}, 0 offen sc1"

    def publish(self, p, pf):
        c = self.c
        def ops(n):
            for i in range(n):
                if pf: p.add(pf.pop(0))
        ops(c['pub'])
        p.add(self.flag_store())
        self.stamp(p, 4)
        ops(c['g_post'])
        self.stamp(p, 7)
        p(self.ldg())
        ops(c['g_rtt'])
        self.pf_rest = pf; self.late_flag = False

    def ssm_tail(self, p):
        L = vLane
        c = self.c
        pf = self.pf_rest + self.c_ops(1) + self.c_ops(2)
        self.stamp(p, 2)
        csr = lambda t: (V2(CS + 2 * (t & 1)), t >> 1)
        E = 160
        vS = 176
        rd = self.rsrd
        def step(T, n_re, n_im, e_re, e_im, p_re, p_im):
            sel = f"op_sel:[{T},0,0] op_sel_hi:[{T},1,1]"
            return [f"v_pk_fma_f32 {V2(n_re)}, {V2(LAM)}, {V2(e_re)}, {V2(p_re)} {sel}",
                    f"v_pk_fma_f32 {V2(n_im)}, {V2(LAM)}, {V2(e_im)}, {V2(p_im)} {sel}",
                    f"v_pk_fma_f32 {V2(n_re)}, {V2(LAM+2)}, {V2(e_im)}, {V2(n_re)} {sel} neg_lo:[1,0,0] neg_hi:[1,0,0]",
                    f"v_pk_fma_f32 {V2(n_im)}, {V2(LAM+2)}, {V2(e_re)}, {V2(n_im)} {sel}"]
        st = {}
        for b in range(9):
            body = []
            for hh in range(2):
                rs = self.rsreg(b) + 2 * hh; u = rs + 4
                for t in range(4):
                    a = acc(b, t) + 2 * hh
                    body.append(f"v_pk_mul_f32 {V2(a)}, {V2(a)}, {V2(rs)}")
                for t in range(4):
                    a = acc(b, t) + 2 * hh; cr, w = csr(t)
                    body.append(f"v_pk_fma_f32 {V2(a)}, {V2(u)}, {cr}, {V2(a)} op_sel:[0,{w},0] op_sel_hi:[1,{w},1] neg_lo:[0,1,0] neg_hi:[0,1,0]")
            if b + 2 < 9: body += rd(b + 2)
            for hh in range(2):
                j = 2 * b + hh
                for T in range(2):
                    pr, pi = acc(b, 2*T) + 2*hh, acc(b, 2*T+1) + 2*hh
                    if j == 0: st[T] = (pr, pi); continue
                    n = E + 8 * (j & 1) + 4 * T
                    body += step(T, n, n + 2, st[T][0], st[T][1], pr, pi); st[T] = (n, n + 2)
            F = {}
            for pos in (4, 20, 12)[:c['s_p1']]:
                if pf: F[pos] = pf.pop(0)
            p.add(interleave(body, F))
        e = E + 8
        p(f"v_swap_b32 v{e+1}, v{e+4}\nv_swap_b32 v{e+3}, v{e+6}")
        E0 = e; EL = e + 4; Wv = E
        p.add(self.cfma(EL, L18, E0, EL))
        p.add(self.cmul(Wv, F36, EL))
        p(f"v_permlane32_swap_b32 v{Wv}, v{Wv+2}\nv_permlane32_swap_b32 v{Wv+1}, v{Wv+3}")
        p(f"v_and_b32 v{vS}, 15, v{L}\nv_lshrrev_b32 v{vS+1}, 4, v{L}")
        p(f"v_pk_add_f32 {V2(Wv)}, {V2(Wv)}, {V2(Wv+2)}")
        p(f"v_lshlrev_b32 v{vS}, 4, v{vS}\nv_lshl_add_u32 v{vS+2}, v{vS+1}, 2, v{vS}")
        p(f"v_permlane16_swap_b32 v{Wv}, v{Wv+1}\nv_add_f32 v{Wv}, v{Wv}, v{Wv+1}")
        p(f"buffer_store_dword v{Wv}, v{vS+2}, {S4(sWS)}, s{sCo} offen sc1")
        self.stamp(p, 3)
        p("s_barrier")
        pf += self.c_ops(3)
        CO = 194
        body = [f"v_mov_b32 v{CO+4}, {OOB}", f"v_lshl_add_u32 v{CO+5}, v{vS+1}, 8, v{vS}", f"s_sub_u32 s{sCo}, s{sCo}, 4096", f"s_movk_i32 s{sK1}, 1024"]
        for n in range(4):
            body += [[f"s_sub_u32 s{sB}, {16 - 4*n}, s{sRg}", f"v_cmp_gt_i32 vcc, s{sB}, v{vS+1}", f"v_cndmask_b32 v{CO+n}, v{CO+5}, v{CO+4}, vcc"]]
        coefp = []
        for b in range(9):
            for hh in range(2):
                for T in range(2):
                    pr, pi = acc(b, 2*T) + 2*hh, acc(b, 2*T+1) + 2*hh
                    s2 = f"op_sel:[{T},0] op_sel_hi:[{T},1]"; s3 = f"op_sel:[{T},0,0] op_sel_hi:[{T},1,1]"
                    t1 = 160 + 4 * T
                    coefp += [f"v_pk_mul_f32 {V2(t1)}, {V2(COEF)}, {V2(pr)} {s2}", f"v_pk_mul_f32 {V2(t1+2)}, {V2(COEF+2)}, {V2(pr)} {s2}",
                             f"v_pk_fma_f32 {V2(pr)}, {V2(COEF+2)}, {V2(pi)}, {V2(t1)} {s3} neg_lo:[1,0,0] neg_hi:[1,0,0]",
                             f"v_pk_fma_f32 {V2(pi)}, {V2(COEF)}, {V2(pi)}, {V2(t1+2)} {s3}"]
        G0, G1, G2, G3 = 144, 148, 152, 156
        for i in range(4):
            body += [f"v_mov_b32 v{G0+i}, v{EL+i}", f"v_mov_b32 v{G1+i}, v{EL+i}"]
        for i in range(4): body.append(f"v_permlane16_swap_b32 v{G0+i}, v{G1+i}")
        for i in range(4):
            body += [f"v_mov_b32 v{G2+i}, v{G0+i}", f"v_mov_b32 v{G3+i}, v{G1+i}"]
        for i in range(4):
            body += [f"v_permlane32_swap_b32 v{G0+i}, v{G2+i}", f"v_permlane32_swap_b32 v{G1+i}, v{G3+i}"]
        body += self.cfma(G1, L36, G0, G1) + self.cfma(G2, L36, G1, G2)
        PRE = 180
        body += [f"v_mov_b32 v{G3+i}, 0" for i in range(4)]
        body += self.csel(G3, G3, G0, sQ1) + self.csel(G3, G3, G1, sQ2) + self.csel(G3, G3, G2, sQ3)
        body += self.cmul(PRE, COEF, G3)
        E0C = 184
        body += self.cmul(E0C, COEF, E0)
        P72, P108, P144, P288, P432 = 144, 148, 152, 156, 160
        G36, F144, L576 = 236, 240, 188
        body += self.cmul(P72, L36, L36) + self.cmul(P108, P72, L36) + self.cmul(P144, P72, P72) + self.cmul(P288, P144, P144)
        body += self.cmul(P432, P288, P144) + self.cmul(L576, P288, P288)
        body += self.cone(164)
        body += self.csel(F144, P432, P288, sQ1) + self.csel(F144, F144, P144, sQ2) + self.csel(F144, F144, 164, sQ3)
        body += self.csel(164, 164, L36, sQ1) + self.csel(164, 164, P72, sQ2) + self.csel(164, 164, P108, sQ3)
        body += self.cmul(G36, COEF, 164)
        AD = 200; ID = 192
        body += [f"v_bfe_u32 v164, v{L}, 2, 2", f"v_and_b32 v166, 3, v{L}", f"v_mov_b32 v169, {OOB}",
                 [f"s_mul_i32 s{sA}, s{sRg}, 9216", f"s_cmp_eq_u32 s{sRg}, 14", f"s_cselect_b32 s{sB}, 0, 4", f"v_cmp_lt_u32 vcc, s{sB}, v164",
                  f"v_add_u32 v165, s{sA}, v{vL16}", f"v_cndmask_b32 v{AD}, v165, v169, vcc"]]
        for j in range(1, 9):
            body += [[f"s_cmp_eq_u32 s{sRg}, 14", f"s_cselect_b32 s{sA}, {64 if j & 3 else 1024 - 192}, s{sK1}", f"v_add_u32 v{AD+j}, s{sA}, v{AD+j-1}"]]
        body += [f"v_and_b32 v168, 1, v{L}", f"v_lshlrev_b32 v168, 4, v168", f"v_mov_b32 v169, 0x3f80", f"v_lshlrev_b32 v168, v168, v169",
                 f"v_cmp_eq_u32 vcc, v164, v{vS+1}", f"v_cndmask_b32 v168, 0, v168, vcc", f"v_cmp_gt_u32 vcc, 2, v166",
                 f"v_cndmask_b32 v{ID}, 0, v168, vcc", f"v_sub_u32 v{ID+1}, v168, v{ID}"]
        body += coefp
        CL = 144
        lb = [f"buffer_load_dwordx4 {V4(CL+4*n)}, v{CO+n}, {S4(sWS)}, s{sCo} offen offset:{1024*n} sc1" for n in range(4)]
        F = {}
        pos = 4; cut = len(body) - c['s_lb']
        while pf and pos < cut - c['s_gap']: F[pos] = pf.pop(0); pos += c['s_sh']
        F[cut - 1] = lb
        for i in range(c['s_al']):
            if pf: F[cut + 6 + i * (c['s_lb'] - 10) // c['s_al']] = pf.pop(0)
        p.add(interleave(body, F))
        lp = self.lab('lb'); ok = self.lab('lbok')
        chk = [f"v_max3_u32 v164, v{CL}, v{CL+1}, v{CL+2}"] + [f"v_max3_u32 v164, v164, v{CL+i}, v{CL+i+1}" for i in range(3, 15, 2)]
        chk += [f"v_max_u32 v164, v164, v{CL+15}", "v_cmp_eq_u32 vcc, -1, v164"]
        p.add(chk); p(f"s_cbranch_vccz {ok}")
        slow = [f"s_mov_b32 s{sSpin}, 0x10000", f"{lp}:"] + lb + ["s_waitcnt vmcnt(0)"] + chk + \
               [f"s_sub_u32 s{sSpin}, s{sSpin}, 1", f"s_cmp_eq_u32 s{sSpin}, 0", f"s_cbranch_scc1 {ok}", f"s_cbranch_vccnz {lp}"]
        p.add([self.optI(x) for x in slow])
        p(f"{ok}:")
        self.stamp(p, 5)
        for n in range(1, 4): p.add(self.cfma(CL + 4*n, L576, CL + 4*(n-1), CL + 4*n))
        p.add(self.cmul(CL, F144, CL + 12))
        for sw in ("v_permlane32_swap_b32", "v_permlane16_swap_b32"):
            p(f"v_mov_b64 {V2(CL+4)}, {V2(CL)}\nv_mov_b64 {V2(CL+6)}, {V2(CL+2)}")
            for i in range(4): p(f"{sw} v{CL+i}, v{CL+4+i}")
            p(f"v_pk_add_f32 {V2(CL)}, {V2(CL)}, {V2(CL+4)}\nv_pk_add_f32 {V2(CL+2)}, {V2(CL+2)}, {V2(CL+6)}")
        p.add(self.cfma(PRE, G36, CL, PRE))
        p.add(self.cfma(E0C, L18, PRE, E0C))
        p(f"v_swap_b32 v{PRE+1}, v{PRE+4}\nv_swap_b32 v{PRE+3}, v{PRE+6}")
        st = {0: (PRE, PRE + 2), 1: (PRE + 4, PRE + 6)}
        PK = 144; MO = 152; SD = 168
        def dsrc(n, t): return (acc(n, t), acc(n, t) + 2) if n < 9 else (acc(n - 9, t) + 1, acc(n - 9, t) + 3)
        def stageA(j):
            o = []
            for t in range(4):
                ng = '-' if t & 1 else ''
                for k in range(2):
                    a, b_ = dsrc(2*j + k, t)
                    o.append(f"v_cvt_pk_bf16_f32 v{PK+2*t+k}, {ng}v{a}, {ng}v{b_}")
            for t in range(4):
                o.append(f"v_mfma_f32_16x16x16_bf16 {V4(MO+4*t)}, {V2(PK+2*t)}, {V2(ID)}, 0")
            return o
        def stageB(j):
            o = []
            for m in range(2):
                for T in range(2):
                    s_ = MO + 4 * (2*T + m)
                    o += [f"v_cvt_pk_bf16_f32 v{SD+4*m+2*T}, v{s_}, v{s_+1}", f"v_cvt_pk_bf16_f32 v{SD+4*m+2*T+1}, v{s_+2}, v{s_+3}"]
                o.append(I(f"buffer_store_dwordx4 {V4(SD+4*m)}, v{AD+j}, {S4(sWS)}, s{sHo if m == 0 else sC} offen sc1", 'hst'))
            return o
        p(f"s_add_u32 s{sC}, s{sHo}, {20*HS}")
        done = {1: [0], 3: [1], 5: [2], 7: [3], 2: [5], 4: [6], 6: [7], 8: [4, 8]}
        pend = None
        for b in range(9):
            for hh in range(2):
                for T in range(2):
                    pr, pi = acc(b, 2*T) + 2*hh, acc(b, 2*T+1) + 2*hh
                    p.add(step(T, pr, pi, st[T][0], st[T][1], pr, pi)); st[T] = (pr, pi)
            for _ in range(c['s_p2']):
                if pf: p.add(pf.pop(0))
            if b == c['s_pb']: p(self.ldg())
            for j in done.get(b, []):
                if pend is not None: p.add(stageB(pend))
                p.add(stageA(j)); pend = j
        p.add(stageB(pend))
        self.stamp(p, 6)
        self.pf_rest = pf; self.late_flag = True

    def flag_offsets(self, p, reg, div, nper, first_sgpr_expr, nl, base):
        m = {140: 1873, 144: 1821}[div]
        p(f"s_lshl_b32 s{sA}, s{sRt}, 6\ns_add_u32 s{sB}, s{sA}, 63\ns_mul_i32 s{sA}, s{sA}, {m}\ns_lshr_b32 s{sA}, s{sA}, 18\ns_mul_i32 s{sB}, s{sB}, {m}\ns_lshr_b32 s{sB}, s{sB}, 18")
        p(f"s_mul_i32 s{sA}, s{sA}, {nper}\ns_mul_i32 s{sB}, s{sB}, {nper}\ns_sub_u32 s{sB}, s{sB}, {nl}")
        p(first_sgpr_expr)
        p(f"v_min_u32 v0, {2*nl-1}, v{vLane}\nv_mov_b32 v1, s{sA}\nv_mov_b32 v2, s{sB}\nv_cmp_gt_u32 vcc, {nl}, v0\nv_cndmask_b32 v1, v2, v1, vcc")
        p(f"v_add3_u32 v0, v0, v1, s{sC}\nv_lshlrev_b32 v0, 6, v0\nv_add_u32 v{reg}, {base}, v0")

    def p2_addr(self):
        L = vLane; a, b_, d = vT2, vT2 + 1, vT2 + 2
        o = [f"s_lshl_b32 s{sA}, s{sRt}, 2", f"s_add_u32 s{sA}, s{sA}, s{sWave}", f"s_mul_i32 s{sB}, s{sA}, 57", f"s_lshr_b32 s{sB}, s{sB}, 9",
             f"s_mul_i32 s{sB}, s{sB}, 9", f"s_sub_u32 s{sB}, s{sA}, s{sB}", f"s_mul_i32 s{sB}, s{sB}, 12",
             [f"s_cmp_lt_u32 s{sA}, 126", f"s_cselect_b32 s{sB}, s{sB}, 0", f"s_cselect_b32 s71, 32, 0"],
             f"s_lshl_b32 s{sA}, s{sA}, 4", f"s_movk_i32 s72, 1280",
             f"v_lshrrev_b32 v{a}, 2, v{L}", f"v_and_b32 v{b_}, 3, v{L}", f"v_add_u32 v{d}, s{sA}, v{a}", f"v_lshlrev_b32 v{vSR}, 4, v{d}",
             f"v_lshrrev_b32 v{vOO}, 4, v{L}", f"v_mad_u32_u24 v{d}, v{vOO}, s71, v{d}", f"v_subrev_u32 v{d}, s{sB}, v{d}",
             f"s_mul_i32 s{sB}, s{sCt}, 160", f"v_lshlrev_b32 v{vBI}, 3, v{b_}", f"v_add_u32 v{vOO}, s{sB}, v{vBI}", f"v_mad_u32_u24 v{vOO}, v{d}, s72, v{vOO}",
             f"v_min_u32 v{d}, 39, v{L}", f"v_lshl_add_u32 v{vDr}, v{d}, 2, s{sB}"]
        n1 = len(o)
        o += [f"s_lshr_b32 s{sA}, s{sWave}, 1", f"s_mul_i32 s{sA}, s{sA}, 40960", f"s_and_b32 s{sB}, s{sWave}, 1", f"s_mul_i32 s{sB}, s{sB}, 5120", f"s_add_u32 s{sA}, s{sA}, s{sB}",
              f"v_lshl_add_u32 v{d}, v{b_}, 2, v{a}", f"v_and_b32 v{d}, 15, v{d}", f"v_lshlrev_b32 v{d}, 4, v{d}", f"v_lshl_add_u32 v{d}, v{b_}, 8, v{d}",
              f"v_add_u32 v{vRA}, s{sA}, v{d}", f"v_add_u32 v{vRA+1}, 81920, v{vRA}",
              f"v_and_b32 v{a}, 15, v{L}", f"v_lshrrev_b32 v{b_}, 4, v{L}",
              f"v_lshl_add_u32 v{d}, v{b_}, 2, v{a}", f"v_and_b32 v{d}, 15, v{d}", f"v_lshlrev_b32 v{d}, 4, v{d}", f"v_lshl_add_u32 v{d}, v{b_}, 8, v{d}",
              f"v_add_u32 v{vWA}, s{sCslot}, v{d}", f"v_add_u32 v{vWA+1}, 81920, v{vWA}"]
        return o[:n1], o[n1:]

    def phase2(self, p):
        L = vLane; c = self.c
        AR = 80; NA = 4; C0 = 144
        def cbase(i): return [f"v_add_u32 v{vCR0}, {self.crow(i)}, v{vCpat}", f"v_xor_b32 v{vCR1}, 64, v{vCR0}"]
        lds_ = f"buffer_load_dword v{vPoll}, v{vFS}, {S4(sWS)}, 0 offen sc1"
        fin = [f"global_load_dword v{vDr}, v{vDr}, {S2(pDsk)}", f"buffer_load_dwordx4 {V4(vSR)}, v{vSR}, {S4(sWS)}, 0 offen sc1"]
        fin += [f"buffer_load_dwordx2 {V2(XF+4*n+2)}, v{vOO}, {S4(sX)}, 0 offen offset:{32*n}" for n in range(5)]
        pf = self.pf_rest
        if c['verbose']: print("ssm" if self.late_flag else "glu", "prefetch ops left at phase-2 entry:", len(pf))
        while pf and not isinstance(pf[0][-1], I): p.add(pf.pop(0))
        while pf and (pf[0][-1].tag == 'c0' or len(pf) > c['maxbg']): p.add(pf.pop(0))
        if c['verbose']: print("left for the loop:", len(pf))
        p.add(self.poll_check(self.ldg(), f"s{sTag}", vPoll))
        self.stamp(p, 8)
        def aload(i):
            if i == 0:
                pre = [f"s_mov_b32 s{sK2}, s{sRot2}", f"s_mul_i32 s{sD}, s{sWave}, {12*HS}", f"s_lshl_b32 s{sC}, s{sRt}, 12",
                       f"s_add_u32 s{sD}, s{sD}, s{sC}", f"s_add_u32 s{sD}, s{sD}, {H}"]
            elif i == 12:
                pre = [f"s_lshl_b32 s{sK2}, s{sRotC}, 1", f"s_mul_i32 s{sD}, s{sWave}, {10*HS}", f"s_lshl_b32 s{sC}, s{sRt}, 12",
                       f"s_add_u32 s{sD}, s{sD}, s{sC}", f"s_add_u32 s{sD}, s{sD}, {H + 48*HS}"]
            else:
                pre = [f"s_add_u32 s{sK2}, s{sK2}, 1", f"s_cmp_eq_u32 s{sK2}, {12 if i < 12 else 10}", f"s_cselect_b32 s{sK2}, 0, s{sK2}"]
            pre += [f"s_mul_i32 s{sO2}, s{sK2}, {HS}", f"s_add_u32 s{sO2}, s{sO2}, s{sD}"]
            lds = [f"buffer_load_dwordx4 {V4(AR+16*(i % NA)+4*bb)}, v{vL16}, {S4(sWS)}, s{sO2} offen offset:{1024*bb} sc1" for bb in range(4)]
            return pre, lds
        for i in range(NA - 1):
            pre, lds = aload(i); p.add(pre); p.add(lds)
        ad1, ad2 = self.p2_addr()
        p.add(ad1); p.add(ad2); p.add(cbase(0))
        if self.late_flag: p.add(self.flag_store())
        p.wait('c0')
        for h in range(2):
            for nb in range(5):
                p(f"ds_read_b128 {V4(C0+20*h+4*nb)}, v{vCR1 if h else vCR0} offset:{2048*nb}", tag='c0r')
        c4 = self.c_ops(4); c4[0] = [W('c0r')] + c4[0]
        bg = [[x] for x in fin] + pf + c4
        if c['x_nobg']: bg = []
        nbg = len(bg); assert nbg <= 3 * 14, nbg
        CW = 80
        mf = []; F = {}
        def put(i, g, items): F.setdefault(i * 20 + g, []).extend(items)
        def wr(ac, bb, nb):
            a = 4 * (bb * 5 + nb)
            return I(f"ds_write_b128 v{vWA + ac}, {A4(a) if ac else V4(a)} offset:{(bb >> 1)*40960 + (bb & 1)*5120 + nb*1024}", 'xw')
        def rdx(ac, n, s_, dst): return f"ds_read_b128 {V4(dst)}, v{vRA + ac} offset:{s_*10240 + n*1024}"
        tq = [f"ds_bpermute_b32 v{TT+4*n+2+k}, v{vBI}, v{vDr} offset:{32*n + 4*k}" for n in range(5) for k in range(2)]
        tq += [f"v_mul_f32 v{vSR+1}, v{vSR}, v{vSR+2}", f"v_lshlrev_b32 v{vOO}, 1, v{vOO}"]
        for n in range(5):
            for R in (XF + 4*n, TT + 4*n):
                tq += [f"v_lshlrev_b32 v{R}, 16, v{R+2}", f"v_and_b32 v{R+1}, 0xffff0000, v{R+2}", f"v_lshlrev_b32 v{R+2}, 16, v{R+3}", f"v_and_b32 v{R+3}, 0xffff0000, v{R+3}"]
            for k in range(4):
                tq += [f"v_fma_f32 v{vT2+k}, v{XF+4*n+k}, v{vSR+2}, -v{vSR+1}"]
            for k in range(4):
                tq += [f"v_mul_f32 v{TT+4*n+k}, v{TT+4*n+k}, v{vT2+k}"]
        dq = []
        for n in range(5):
            r = 16 * n
            for k in range(4): dq += [f"v_add_f32 v{r+k}, v{r+k}, v{r+4+k}", f"v_add_f32 v{r+8+k}, v{r+8+k}, v{r+12+k}"]
            for k in range(4): dq += [f"v_add_f32 v{r+k}, v{r+k}, v{r+8+k}"]
        for i in range(22):
            for bb in range(4):
                for nb in range(5):
                    a = 4 * (bb * 5 + nb); x = V4(AR + 16 * (i % NA) + 4 * bb)
                    if i < 12:
                        w = A4(20 * i + 4 * nb); d = V4(a)
                    else:
                        y = i - 12
                        w = V4(C0 + 20 * y + 4 * nb) if y < 2 else A4(CW + 20 * (y & 1) + 4 * nb); d = A4(a)
                    cc = '0' if i in (0, 12) else d
                    mf.append(f"v_mfma_f32_16x16x32_bf16 {d}, {w}, {x}, {cc}")
            if c['stamps'] == 3 and i % 2 == 0 and i <= 18:
                q = Prog(); self.stamp(q, 20 + i // 2); put(i, 0, q.L)
            j = i + NA - 1
            if j < 22:
                pre, lds = aload(j)
                if j == 12: put(i, 0, self.poll_check(lds_, f"s{sTag}", vPoll))
                put(i, 0, pre[:3]); put(i, 1, pre[3:])
                for bb in range(4):
                    if not c['x_noa']: put(i, 2 + 5 * bb, [lds[bb]])
            if j == 10: put(i, 0, [lds_])
            if i < 14:
                k = max((nbg * (i + 1) + 13) // 14 - (nbg - len(bg)), min(2, len(bg)) if i < 4 else 0)
                for gp in (10, 15, 5)[:k] if k < 3 else (5, 10, 15):
                    put(i, gp, bg.pop(0))
            if 5 <= i < 12:
                for gp in (1, 3, 6, 8, 11, 13, 16, 18):
                    k = 1 if (tq and tq[0].startswith('ds_')) else 2
                    put(i, gp, tq[:k]); tq = tq[k:]
            y = i + 1 - 12
            if 2 <= y < 10:
                ch = y >> 1; h = y & 1
                if h == 0: put(i, 3, cbase(ch) + [W(f'c{ch}')])
                for nb in range(5):
                    put(i, 4 + 2 * nb, [f"ds_read_b128 {A4(CW+20*(y & 1)+4*nb)}, v{vCR1 if h else vCR0} offset:{2048*nb}"])
            if 15 <= i < 19:
                for nb in range(5): put(i, 1 + 4 * nb if nb < 4 else 16, [wr(0, i - 15, nb)])
            if i == 19:
                put(i, 1, [W('xw'), "s_barrier"])
                k = 0
                for gp in (2, 3, 5, 7, 9, 11, 13, 14, 15, 16, 17, 18):
                    put(i, gp, [rdx(0, k // 4, k % 4, 4 * k)]); k += 1
                for gp in (0, 1, 2, 3, 5, 7, 9, 11):
                    put(i + 1, gp, [rdx(0, k // 4, k % 4, 4 * k)]); k += 1
            if i == 20:
                for gp in (13, 14, 15, 16, 17, 18): put(i, gp, dq[:2]); dq = dq[2:]
            if i == 21:
                for gp in range(0, 19):
                    if gp in (9, 11, 13, 15, 17): put(i, gp, [wr(1, 0, (gp - 9) // 2)] + dq[:1]); dq = dq[1:]
                    else: put(i, gp, dq[:2]); dq = dq[2:]
        assert not tq
        p.add(interleave(mf, F))
        self.stamp(p, 9)
        body = list(dq)
        p(f"s_mov_b32 s{sA}, {NLOG2E}")
        for n in range(5):
            d = 16 * n; T = d + 4
            body += [f"v_mul_f32 v{T+k}, s{sA}, v{d+k}" for k in range(4)]
            body += [f"v_exp_f32 v{T+k}, v{T+k}" for k in range(4)]
            body += [f"v_pk_add_f32 {V2(T+k)}, {V2(T+k)}, 1.0 op_sel_hi:[1,0]" for k in (0, 2)]
            body += [f"v_rcp_f32 v{T+k}, v{T+k}" for k in range(4)]
            body += [f"v_pk_mul_f32 {V2(d+k)}, {V2(d+k)}, {V2(T+k)}" for k in (0, 2)]
            body += [f"v_pk_fma_f32 {V2(XF+4*n+k)}, {V2(TT+4*n+k)}, {V2(d+k)}, {V2(XF+4*n+k)}" for k in (0, 2)]
        wl = [wr(1, bb, nb) for bb in range(1, 4) for nb in range(5)]
        F = {}
        for k, w_ in enumerate(wl): F.setdefault(k * (len(body) - 12) // len(wl), []).append(w_)
        p.add(interleave(body, F))
        p.wait('xw'); p("s_barrier")
        self.stamp(p, 10)
        YR = 80
        for n in range(5):
            for s_ in range(4): p(rdx(1, n, s_, YR + 16 * n + 4 * s_))
        for n in range(5):
            r = YR + 16 * n; d = 16 * n
            for k in (0, 2): p(f"v_pk_add_f32 {V2(r+k)}, {V2(r+k)}, {V2(r+4+k)}")
            for k in (0, 2): p(f"v_pk_add_f32 {V2(r+8+k)}, {V2(r+8+k)}, {V2(r+12+k)}")
            for k in (0, 2): p(f"v_pk_add_f32 {V2(r+k)}, {V2(r+k)}, {V2(r+8+k)}")
            for k in (0, 2): p(f"v_pk_fma_f32 {V2(XF+4*n+k)}, {V2(r+k)}, {V2(d+k)}, {V2(XF+4*n+k)}")
            p(f"buffer_store_dwordx4 {V4(XF+4*n)}, v{vOO}, {S4(sU)}, 0 offen offset:{64*n} {('', 'nt', 'sc1', 'sc0 sc1')[c['outmode']]}")
        self.stamp(p, 11)
        self.stamp_flush(p)
        if self.c['endspin']:
            l = self.lab('es')
            if self.c['probe'] < 0 and not self.c['chase'] and not self.c['bw']: p("s_mov_b32 s101, 0")
            p(f"s_add_u32 s101, s101, {self.c['endspin']*100}\n{l}:\ns_memrealtime {S2(sSt)}\ns_waitcnt lgkmcnt(0)\ns_sub_u32 s{sSt}, s{sSt}, s100\ns_cmp_lt_u32 s{sSt}, s101\ns_cbranch_scc1 {l}")
        p("s_endpgm")

    def build(self, code_bytes):
        paths = []
        for ssm in (0, 1):
            p = Prog()
            self.entry(p, code_bytes)
            n0 = 'MARK'
            p("L_mark:")
            self.prologue(p, ssm)
            self.mainloop(p, ssm)
            (self.ssm_tail if ssm else self.glu_tail)(p)
            self.phase2(p)
            Lf = finalize(p)
            k = [i for i, x in enumerate(Lf) if x.text == 'L_mark:'][0]
            paths.append((Lf[:k], Lf[k+1:]))
        assert text_of(paths[0][0]) == text_of(paths[1][0])
        body = text_of(paths[0][0]) + text_of(paths[0][1]) + "L_ssm:\n" + text_of(paths[1][1]) + "L_end:\n    s_endpgm\n"
        return body

HEADER = open(os.path.join(os.path.dirname(os.path.abspath(__file__)), "..", "cdna_kernels", NAME + ".s.ref")).read().split("; Override launch")[0] \
    if os.path.exists(os.path.join(os.path.dirname(os.path.abspath(__file__)), "..", "cdna_kernels", NAME + ".s.ref")) else ""

def make(cfg, code_bytes=61440):
    body = Gen(cfg).build(code_bytes)
    return HEADER + f"""; One persistent launch: 256 workgroups x 4 waves, one per CU (generated by gen/k3.py).
; @launch grid=(256,1,1) block=(256,1,1) lds=163840
.amdgcn_target "amdgcn-amd-amdhsa--gfx950"
.text
.globl {KERN}
.p2align 8
.type {KERN},@function
{KERN}:
{body}L_code_end:
.section .rodata,"a"
.p2align 6
.amdhsa_kernel {KERN}
  .amdhsa_next_free_vgpr 512
  .amdhsa_next_free_sgpr 102
  .amdhsa_accum_offset 256
  .amdhsa_group_segment_fixed_size 0
  .amdhsa_kernarg_size 128
  .amdhsa_user_sgpr_count 2
  .amdhsa_user_sgpr_kernarg_segment_ptr 1
  .amdhsa_system_sgpr_workgroup_id_x 1
  .amdhsa_float_denorm_mode_32 3
.end_amdhsa_kernel
"""

def code_size(txt):
    import subprocess, tempfile
    with tempfile.TemporaryDirectory() as d:
        open(d + "/k.s", "w").write(txt)
        r = subprocess.run(["clang", "-x", "assembler", "-target", "amdgcn-amd-amdhsa", "-mcpu=gfx950", "-c", d + "/k.s", "-o", d + "/k.o"], capture_output=True, text=True)
        assert r.returncode == 0, r.stderr[:3000]
        r = subprocess.run(["llvm-readelf", "-S", d + "/k.o"], capture_output=True, text=True)
        for ln in r.stdout.split('\n'):
            if ' .text' in ln:
                f = ln.split(']')[1].split()
                return int(f[4], 16)

if __name__ == "__main__":
    cfg = dict(CFG)
    out = None
    for a in sys.argv[1:]:
        if '=' in a:
            k, v = a.split('='); cfg[k] = int(v)
        else: out = a
    n = code_size(make(cfg))
    txt = make(cfg, n)
    n2 = code_size(txt)
    assert abs(n2 - n) <= 64, (n, n2)
    open(out or "k.s", "w").write(txt)
    print("code bytes", n2, "source bytes", len(txt))
```

```python
import re

REG = re.compile(r'(?<![\w.])([vas])(?:(\d+)|\[(\d+):(\d+)\])(?![\w])')
TRANS = ('v_exp_f32', 'v_log_f32', 'v_rcp_f32', 'v_rsq_f32', 'v_sqrt_f32', 'v_sin_f32', 'v_cos_f32')

def regs_of(op):
    out = []
    for m in REG.finditer(op):
        k = m.group(1)
        if m.group(2) is not None: out.append((k, int(m.group(2))))
        else: out += [(k, i) for i in range(int(m.group(3)), int(m.group(4)) + 1)]
    if re.search(r'\bvcc\b', op): out += [('s', 'vcc')]
    if re.search(r'\bm0\b', op): out += [('s', 'm0')]
    if re.search(r'\bexec(_lo|_hi)?\b', op): out += [('s', 'exec')]
    return out

def split_ops(s):
    ops, depth, cur = [], 0, ''
    for ch in s:
        if ch == '[': depth += 1
        if ch == ']': depth -= 1
        if ch == ',' and depth == 0: ops.append(cur.strip()); cur = ''
        else: cur += ch
    if cur.strip(): ops.append(cur.strip())
    return ops

class I:
    __slots__ = ('text', 'mn', 'kind', 'rd', 'wr', 'tag', 'opt', 'srcc', 'ab', 'data', 'passes')
    def __init__(self, text, tag=None, opt=False):
        self.text = text; self.tag = tag; self.opt = opt
        self.srcc = set(); self.ab = set(); self.data = set(); self.passes = 0
        t = text.split(';')[0].strip()
        if t.endswith(':') or t.startswith('.') or not t:
            self.mn = ''; self.kind = 'label'; self.rd = set(); self.wr = set(); return
        p = t.split(None, 1); mn = p[0]; self.mn = mn
        ops = split_ops(p[1]) if len(p) > 1 else []
        R = [regs_of(o) for o in ops]
        flat = lambda l: set(x for r in l for x in r)
        rd, wr = set(), set()
        if mn.startswith('v_mfma'):
            k = 'mfma'; wr = set(R[0]); rd = flat(R[1:]); self.srcc = set(R[3]); self.ab = flat(R[1:3])
            self.passes = 8 if '32x32' in mn else 4
        elif mn.startswith('v_'):
            k = 'trans' if mn.replace('_e32', '').replace('_e64', '') in TRANS else 'valu'
            if mn.startswith(('v_swap', 'v_permlane')): wr = flat(R[:2]); rd = flat(R[:2])
            elif mn.startswith(('v_add_co', 'v_addc_co', 'v_sub_co')): wr = flat(R[:2]); rd = flat(R[2:])
            elif mn == 'v_nop': pass
            else:
                wr = set(R[0]); rd = flat(R[1:])
                if mn.startswith(('v_fmac', 'v_writelane')) or '_dpp' in mn: rd |= set(R[0])
        elif mn.startswith('ds_'):
            k = 'ds'
            if mn.startswith(('ds_read', 'ds_bpermute', 'ds_permute', 'ds_swizzle')): wr = set(R[0]); rd = flat(R[1:])
            else: rd = flat(R)
        elif mn.startswith(('buffer_', 'global_')):
            k = 'vmem'
            islds = bool(re.search(r'\blds\b', t)) or '_lds_' in mn
            if '_load' in mn and not islds: wr = set(R[0]); rd = flat(R[1:])
            else: rd = flat(R)
            if '_d16' in mn: rd |= set(R[0])
            if islds: rd |= {('s', 'm0')}
            if '_store' in mn and ('x4' in mn or 'x3' in mn):
                self.data = set(R[0]) if mn.startswith('buffer_') else set(R[1])
        elif mn.startswith(('s_load', 's_memtime', 's_memrealtime')):
            k = 'smem'; wr = set(R[0]); rd = flat(R[1:])
        elif mn in ('s_waitcnt', 's_barrier', 's_nop', 's_endpgm', 's_setprio', 's_sleep') or mn.startswith(('s_cbranch', 's_branch')):
            k = 'ctl'
            if 'vcc' in mn: rd = {('s', 'vcc')}
        elif mn.startswith('s_cmp') or mn.startswith('s_bitcmp'):
            k = 'salu'; rd = flat(R)
        elif mn.startswith('s_'):
            k = 'salu'; wr = set(R[0]); rd = flat(R[1:])
            if 'saveexec' in mn: wr |= {('s', 'exec')}
        elif mn == 'WAIT':
            k = 'wait'
        else:
            raise ValueError(text)
        self.kind = k; self.rd = rd; self.wr = wr

class Prog:
    def __init__(self): self.L = []
    def __call__(self, text, tag=None, opt=False):
        for ln in text.strip().split('\n'):
            ln = ln.strip()
            if ln: self.L.append(I(ln, tag, opt))
    def add(self, items):
        for x in items:
            if isinstance(x, I): self.L.append(x)
            elif isinstance(x, (list, tuple)): self.add(x)
            else: self(x)
    def wait(self, *tags): self.L.append(W(*tags))

def W(*tags):
    i = I('WAIT'); i.tag = tags; return i

def resolve_waits(L):
    out = []; vm = []; lg = []
    def need(q, pred):
        for j in range(len(q) - 1, -1, -1):
            if pred(q[j]): return j
        return None
    def emit_wait(jv, jl):
        parts = []
        nonlocal vm, lg
        if jv is not None:
            n = min(63, sum(1 for x in vm[jv + 1:] if not x.opt)); parts.append(f'vmcnt({n})')
            vm = vm[jv + 1:]
        if jl is not None:
            if any(x.kind == 'smem' for x in lg): n = 0; lg = []
            else:
                n = min(15, sum(1 for x in lg[jl + 1:] if not x.opt)); lg = lg[jl + 1:]
            parts.append(f'lgkmcnt({n})')
        if parts: out.append(I('s_waitcnt ' + ' '.join(parts)))
    for ins in L:
        if ins.kind == 'wait':
            tags = set(ins.tag)
            if 'ALLVM' in tags: jv = len(vm) - 1 if vm else None
            else: jv = need(vm, lambda x: x.tag in tags)
            if 'ALLLG' in tags: jl = len(lg) - 1 if lg else None
            else: jl = need(lg, lambda x: x.tag in tags)
            emit_wait(jv, jl); continue
        touch = ins.rd | ins.wr
        if touch:
            jv = need(vm, lambda x: x.wr & (ins.rd if ins.kind == 'vmem' else touch))
            jl = need(lg, lambda x: x.wr & (ins.rd if (ins.kind == 'ds' and x.kind == 'ds') else touch))
            emit_wait(jv, jl)
        if ins.mn == 's_waitcnt':
            m = re.search(r'vmcnt\((\d+)\)', ins.text)
            if m and int(m.group(1)) == 0 and not ins.opt: vm = []
            m = re.search(r'lgkmcnt\((\d+)\)', ins.text)
            if m and int(m.group(1)) == 0 and not ins.opt: lg = []
        out.append(ins)
        if ins.kind == 'vmem': vm.append(ins)
        if ins.kind in ('ds', 'smem'): lg.append(ins)
    return out

def states(i):
    if i.kind == 'label': return 0
    if i.mn == 's_nop': return int(i.text.split()[1]) + 1
    return 1

def vonly(s): return set(x for x in s if x[0] in 'va')
def sonly(s): return set(x for x in s if x[0] == 's')

def required(p, c):
    r = 0
    pv = p.kind in ('valu', 'trans'); cv = c.kind in ('valu', 'trans')
    if pv:
        w = vonly(p.wr)
        if c.kind == 'mfma' and w & c.rd: r = max(r, 2)
        if cv and w & c.rd:
            if c.mn.startswith('v_permlane') or '_dpp' in c.mn: r = max(r, 2)
            if c.mn.startswith(('v_readfirstlane', 'v_readlane')): r = max(r, 1)
            if p.kind == 'trans' and c.kind == 'valu': r = max(r, 1)
        if p.kind == 'trans' and c.kind in ('vmem', 'ds') and w & c.rd: r = max(r, 1)
        if p.mn.startswith('v_dot') and c.mn != p.mn and w & (c.rd | c.wr): r = max(r, 3)
        ws = sonly(p.wr)
        if ws & c.rd:
            if cv: r = max(r, 4 if c.mn.startswith(('v_readlane', 'v_writelane')) else 2)
            elif c.kind == 'vmem': r = max(r, 5)
            else: r = max(r, 2)
    if p.kind == 'mfma':
        big = {4: 8, 8: 12}[p.passes]
        if c.kind == 'mfma':
            if p.wr & c.ab: r = max(r, big)
            elif p.wr & c.srcc and not (p.wr == c.srcc and p.passes == c.passes): r = max(r, big - 2)
            elif p.wr & c.wr and not (p.wr == c.srcc): r = max(r, big - 2)
        elif c.kind in ('valu', 'trans', 'vmem', 'ds'):
            if p.wr & (c.rd | c.wr): r = max(r, big)
            if cv and p.srcc & c.wr: r = max(r, {4: 3, 8: 7}[p.passes])
    if p.kind == 'salu' and ('s', 'm0') in p.wr and c.kind == 'vmem' and ('s', 'm0') in c.rd: r = max(r, 1)
    if p.data and p.data & c.wr: r = max(r, 2 if cv else 1)
    return r

def insert_nops(L):
    out = []
    for c in L:
        if c.kind not in ('label',):
            dist = 0; pad = 0
            for p in reversed(out):
                if dist >= 12: break
                if p.kind != 'label':
                    r = required(p, c)
                    if r - dist > pad: pad = r - dist
                    if not p.opt: dist += states(p)
            if pad > 0: out.append(I(f's_nop {pad - 1}'))
        out.append(c)
    return out

def gap_time(g):
    t = 4; prev = None; sw = set()
    for i in g:
        if i.kind == 'label' or i.opt: continue
        if i.kind in ('salu', 'ctl', 'smem'):
            t += 4 * states(i); sw |= i.wr
        else:
            t = max(t, 8)
            if i.kind == 'vmem':
                if sw & i.rd: t += 4
                if prev is not None and prev.kind in ('valu', 'trans'): t += 4
                t += 20 if i.data else 4 if (prev is not None and prev.kind == 'ds') else 8
            else:
                if prev is not None and prev.kind == 'ds' and i.kind == 'ds': t += 4
                t += 8 if i.kind == 'trans' else 20 if i.mn == 'ds_write_b128' else 12 if i.mn == 'ds_write_b64' else 4
        prev = i
    return t

def hoist_salu(L, reach=6):
    gaps = [[]]; mf = []
    for i in L:
        if i.kind == 'mfma': mf.append(i); gaps.append([])
        else: gaps[-1].append(i)
    def fixed(i): return i.kind == 'label' or i.opt or i.mn.startswith(('s_cbranch', 's_branch'))
    def movable(i): return i.kind == 'salu' and not i.opt and ('s', 'exec') not in i.wr
    def conflict(a, b): return bool(a.wr & (b.rd | b.wr)) or bool(a.rd & b.wr)
    def front(g):
        for k in range(1, len(g)):
            if g[k].mn == 's_waitcnt' and not g[k].opt:
                j = k; vmo = 'lgkm' not in g[k].text; lgo = 'vmcnt' not in g[k].text
                while j > 0 and not g[j-1].opt and (g[j-1].kind in ('valu', 'trans') or (vmo and g[j-1].kind == 'ds') or (lgo and g[j-1].kind == 'vmem')):
                    g[j-1], g[j] = g[j], g[j-1]; j -= 1
        for k in range(1, len(g)):
            if movable(g[k]):
                j = k
                while j > 0 and (g[j-1].kind in ('ds', 'vmem', 'valu', 'trans') or g[j-1].mn == 's_waitcnt') and not g[j-1].opt and not conflict(g[j], g[j-1]):
                    g[j-1], g[j] = g[j], g[j-1]; j -= 1
    def push(n, depth):
        g = gaps[n]
        if not g or not movable(g[0]) or n <= 1 or depth > reach or len(gaps[n-1]) > 8: return False
        x = g[0]; e = gaps[n-1]
        if e and fixed(e[-1]) and e[-1].kind != 'label': return False
        old = gap_time(e)
        e.append(x); g.pop(0); front(e)
        while gap_time(e) > max(16, old):
            if not push(n - 1, depth + 1):
                if x in e: e.remove(x); g.insert(0, x); return False
                return True
        return True
    for n in range(1, len(gaps) - 1):
        if len(gaps[n]) > 12: continue
        front(gaps[n])
        while gap_time(gaps[n]) > 16:
            t = gap_time(gaps[n])
            if gap_time(gaps[n][1:]) >= t and not (len(gaps[n]) > 1 and movable(gaps[n][1])): break
            if not push(n, 0): break
    out = list(gaps[0])
    for m, g in zip(mf, gaps[1:]): out.append(m); out += g
    return out

def finalize(prog):
    L = insert_nops(hoist_salu(resolve_waits(prog.L)))
    return L

def text_of(L):
    return '\n'.join((i.text if i.kind == 'label' else '    ' + i.text) for i in L) + '\n'

def interleave(main, fills):
    out = []
    for i, m in enumerate(main):
        out.append(m)
        out += fills.get(i, [])
    return out


class Filler:
    def __init__(self, n, reserved=()):
        self.n = n; self.F = {}; self.res = set(reserved)
    def norm(self, items):
        out = []
        for x in (items if isinstance(items, (list, tuple)) else [items]):
            if isinstance(x, (list, tuple)): out += self.norm(x)
            else: out.append(x if isinstance(x, I) else I(x))
        return out
    def time(self, g, extra=()):
        l = [x for x in self.F.get(g, []) + list(extra)]
        w = [I('s_nop 0') for x in l if x.kind == 'wait']
        l = w + [x for x in l if x.kind not in ('salu', 'wait')]
        if g in self.res: l = [I('s_nop 0')] + l
        return gap_time(l)
    def at(self, g, items):
        self.F.setdefault(g, []).extend(self.norm(items)); return g
    def fit(self, items, lo, hi=None):
        items = self.norm(items); hi = min(self.n - 1, hi if hi is not None else self.n - 1); lo = min(lo, hi)
        core = [x for x in items if x.kind not in ('salu', 'wait')]
        best = None
        for g in range(lo, hi + 1):
            cost = max(16, self.time(g, core)) - max(16, self.time(g))
            if best is None or cost < best[0]: best = (cost, g)
            if cost <= max(0, gap_time(core) - 16): break
        return self.at(best[1], items)
    def stream(self, seq, lo, hi=None, step=0):
        g = lo
        for k, x in enumerate(seq):
            left = len(seq) - 1 - k
            h = None if hi is None else max(g, hi - left // 2)
            g = self.fit(x, g, h); g2 = g; g += step
        return g2 if seq else lo
    def dag(self, chains, lo, hi, window=8):
        import copy
        for limit, m in ((16, 1), (20, 8), (20, 6), (20, 4), (20, 3), (20, 2), (20, 1), (24, 1), (28, 1), (40, 1)):
            F0 = {k: list(v) for k, v in self.F.items()}
            pos = [0] * len(chains); end = [lo - 1] * len(chains); g = lo
            while g <= hi and any(pos[i] < len(chains[i]) for i in range(len(chains))):
                base = max(limit if g % m == 0 else 16, self.time(g)); live = [i for i in range(len(chains)) if pos[i] < len(chains[i])][:window]
                live.sort(key=lambda i: 0 if I(chains[i][pos[i]]).kind == 'trans' else 1)
                for i in live:
                    x = self.norm(chains[i][pos[i]])
                    if end[i] < g and self.time(g, x) <= base:
                        self.at(g, x); pos[i] += 1; end[i] = g
                g += 1
            if all(pos[i] == len(chains[i]) for i in range(len(chains))): return end
            self.F = F0
        raise ValueError("dag does not fit")
```

```python
import sys, os, re
sys.path.insert(0, os.path.dirname(os.path.abspath(__file__)))
from fw import *

NAME = "recurrent_scan__ssm_conv_s5__glu_gated_glu__prompt"
KERN = NAME + "_kernel"

CFG = dict(
    rot=4,
    poll_stage=3,
    wd_mid=4,
    wd_late=18,
    g_epi=1,
    s_p1=2,
    s_sh=10,
    s_p2=0, s_al=14, s_gap=30, s_pb=7,
    s_lb=144,
    pub=0,
    c4loop=1,
    x_nofin=0, x_nobg=0, aflag=1, bw=0, x_nodma=0, x_nobar=0, x_noa=0, cyc=0, map2=0,
    order=0,
    wtouch=0,
    wdlate=0,
    g_post=30, g_rtt=8, snake=0,
    tlb=0, rot3=0, rotc=0, x_plans=0, cfirst=0, wpipe=0, wp0=0, wp1=0, wp2=2, wp3=4, cstage=2, x_noside=0, imap=1, sfirst=1, w64=1, lead_bg=4, sfrom=68, pads=1, look=12, spoll=9, maxbg=10, verbose=0,
    head=3,
    touch=1,
    outmode=1,
    pre1=6,
    stamps=0,
    rot2=0,
    endspin=0,
    probe=-1,
    chase=0,
)

STATG = 0
CSUM = STATG + 2368 * 16
ARR = CSUM + 320 * 16
EPOCH = ARR + 4096
STATS = EPOCH + 256
CARRY = STATS + 18 * 1152 + 128 - ((18 * 1152) % 128)
CARRY = (CARRY + 255) // 256 * 256
FLAGG = CARRY + 320 * 256
FLAGS = FLAGG + 16 * 48 * 64
WD = (FLAGS + 16 * 20 * 64 + 4095) // 4096 * 4096
HS = 140 * 1024
H = WD + 8 * 52 * 5 * 1024
WS_END = H + 88 * HS
STAMP = WS_END
WS_SIZE = WS_END + 1024 * 256
OOB = 0x7ff00000
PADOFF = 0

STG = 51200; XIMG = 18432
SPARE = 3 * STG
L_WDST = SPARE
L_DUMMY = SPARE + 8192
L_STAT = SPARE

pX, pLre, pLim, pBre, pBim, pCre, pCim, pLdt = 4, 6, 8, 10, 12, 14, 16, 18
pDsk, pBx, pWg, pWu, pWd, pOut, pDbg, pWs = 20, 22, 24, 26, 28, 30, 32, 34
sX, sW0, sW1, sWS, sT, sU = 36, 40, 44, 48, 52, 56
sWave, sCg, sRg, sRt, sCt = 60, 61, 62, 63, 64
sOffX, sOffW, sChunk, sM0X, sM0W = 65, 66, 67, 68, 69
sM0H = 70
sA, sB, sC, sD = 73, 74, 75, 76
sK2, sO2, sCo, sSpin = 77, 78, 79, 80
sCslot = 81
sTag = 82
sPar = 83
sMask = 84
sQ1, sQ2, sQ3 = 86, 88, 90
sSt = 92
sHo = 94
sFlag = 95
sRot2 = 96
sRotC = 97
sCw = 3
sK1 = 70
sI = 71
sKC = 67

def S4(r): return f"s[{r}:{r+3}]"
def S2(r): return f"s[{r}:{r+1}]"
def V4(r): return f"v[{r}:{r+3}]"
def V2(r): return f"v[{r}:{r+1}]"
def A4(r): return f"a[{r}:{r+3}]"

def acc(b, t): return 16 * b + 4 * t
XR = 144; NXR = 6
def xr(B): return XR + 4 * (B % NXR)
def wb(par, t): return 168 + 16 * par + 4 * t
vXD = 200; vWDm = 205
vXR0, vXR1, vWR0, vWR1 = 209, 210, 211, 212
vL16, vL16b, vLane = 213, 214, 215
LAM, COEF, L18, L36, F36, CS = 216, 220, 224, 228, 232, 244
GST, GK1, GHA = 216, 234, 244
vWT = 243
vJ0 = 244
vWA, vOO, vBI, vDr, vCR0, vCR1 = 204, 207, 208, 209, 210, 211
vRA = (205, 206, 212, 214)
vT2, vSR, vFG, vCpat, vFS = 236, 244, 248, 249, 250
vPoll, vCD0, vCD1, vTmp = 252, 253, 254, 255

LOG2E = 0x3fb8aa3b
NLOG2E = 0xbfb8aa3b
INV2PI = 0x3e22f983
INV640 = 0x3acccccd
EPS = 0x3727c5ac

class Seq:
    def __init__(self): self.items = []
    def __call__(self, text, tag=None): self.items.append([I(x.strip(), tag) for x in text.strip().split('\n')])
    def add(self, l): self.items.append(list(l))

class Gen:
    def __init__(self, cfg):
        self.c = cfg
        self.nlab = 0
        self.nstamp = 0
        self.light = {}

    def lab(self, s):
        self.nlab += 1
        return f"L_{s}_{self.nlab}"

    def stamp(self, p, idx):
        if self.c['probe'] == idx:
            p(f"s_memrealtime {S2(sSt)}\ns_waitcnt lgkmcnt(0)\ns_sub_u32 s101, s{sSt}, s100")
        if not self.c['stamps']: return
        if idx >= 20:
            r = [4, 6, 8, 10, 12, 14, 16, 18, 22, 24, 26, 28, 30, 32, 34][idx - 20]
            i = I(f"{'s_memtime' if self.c['cyc'] else 's_memrealtime'} {S2(r)}"); i.kind = 'ctl'; i.wr = set(); i.rd = set()
            p.L.append(i); self.light[idx] = r
            return
        p(f"{'s_memtime' if (idx >= 20 and self.c['cyc']) else 's_memrealtime'} {S2(sSt)}")
        if idx < 20: p(f"s_memtime s[34:35]" if idx else "s_memtime s[90:91]")
        p("s_waitcnt lgkmcnt(0)")
        p(f"v_writelane_b32 v251, s{sSt}, {idx}")
        if idx < 20: p(f"v_writelane_b32 v251, {'s34' if idx else 's90'}, {40 + idx}")

    def stamp_flush(self, p):
        if not self.c['stamps']: return
        p(f"s_lshl_b32 s{sA}, s2, 2\ns_add_u32 s{sA}, s{sA}, s{sWave}\ns_lshl_b32 s{sA}, s{sA}, 8\ns_add_u32 s{sA}, s{sA}, {STAMP}")
        p(f"v_writelane_b32 v251, s100, 39")
        p("s_waitcnt lgkmcnt(0)")
        for k_, r_ in self.light.items(): p(f"v_writelane_b32 v251, s{r_}, {k_}")
        p(f"v_lshlrev_b32 v250, 2, v{vLane}")
        p(f"buffer_store_dword v251, v250, {S4(sWS)}, s{sA} offen")

    def cmul(self, d, a, b):
        return [f"v_pk_mul_f32 {V2(d)}, {V2(a)}, {V2(b)}",
                f"v_pk_mul_f32 {V2(d+2)}, {V2(a)}, {V2(b+2)}",
                f"v_pk_fma_f32 {V2(d)}, {V2(a+2)}, {V2(b+2)}, {V2(d)} neg_lo:[1,0,0] neg_hi:[1,0,0]",
                f"v_pk_fma_f32 {V2(d+2)}, {V2(a+2)}, {V2(b)}, {V2(d+2)}"]
    def cfma(self, d, a, b, c):
        return [f"v_pk_fma_f32 {V2(d)}, {V2(a)}, {V2(b)}, {V2(c)}",
                f"v_pk_fma_f32 {V2(d+2)}, {V2(a)}, {V2(b+2)}, {V2(c+2)}",
                f"v_pk_fma_f32 {V2(d)}, {V2(a+2)}, {V2(b+2)}, {V2(d)} neg_lo:[1,0,0] neg_hi:[1,0,0]",
                f"v_pk_fma_f32 {V2(d+2)}, {V2(a+2)}, {V2(b)}, {V2(d+2)}"]
    def csel(self, d, f, t, mask):
        return [f"v_cndmask_b32 v{d+i}, v{f+i}, v{t+i}, {S2(mask)}" for i in range(4)]
    def cone(self, d):
        return [f"v_mov_b32 v{d}, 1.0", f"v_mov_b32 v{d+1}, 1.0", f"v_mov_b32 v{d+2}, 0", f"v_mov_b32 v{d+3}, 0"]
    def bfr(self, d, a):
        return [f"v_cvt_pk_bf16_f32 v{d}, v{a}, v{a}", f"v_lshlrev_b32 v{d}, 16, v{d}"]

    def entry(self, p, code_bytes):
        if self.c['endspin'] or self.c['stamps']: p("s_memrealtime s[100:101]")
        p(f"s_cmp_ge_u32 s2, 256\ns_cbranch_scc1 L_end")
        p(f"s_load_dwordx16 s[4:19], s[0:1], 0\ns_load_dwordx16 s[20:35], s[0:1], 64")
        per = (code_bytes + 32 * 128 - 1) // (32 * 128)
        assert per <= 64
        p(f"s_getpc_b64 {S2(sMask)}\nL_pc:")
        p(f"s_lshr_b32 s{sB}, s2, 3\ns_mul_i32 s{sA}, s{sB}, {per*128}")
        p(f"v_min_u32 v1, {per-1}, v0\nv_lshl_add_u32 v1, v1, 7, s{sA}")
        p(f"v_min_u32 v1, L_code_end-L_pc-4, v1")
        p(f"v_lshrrev_b32 v2, 6, v0\nv_and_b32 v{vLane}, 63, v0")
        p(f"global_load_dword a240, v1, {S2(sMask)}")
        p(f"v_readfirstlane_b32 s{sWave}, v2")
        if self.c['stamps']: p("v_mov_b32 v251, 0")
        p(f"s_and_b32 s{sA}, s2, 7\ns_lshl_b32 s{sA}, s{sA}, 5\ns_add_u32 s{sA}, s{sA}, s{sB}")
        p(f"s_and_b32 s{sCt}, s{sA}, 7\ns_lshr_b32 s{sRt}, s{sA}, 3\ns_mov_b32 s{sI}, s{sA if self.c['imap'] else 2}")
        p(f"s_sub_u32 s{sB}, s{sA}, 136\ns_mul_i32 s{sC}, s{sB}, 147\ns_lshr_b32 s{sC}, s{sC}, 10")
        p(f"s_mul_i32 s{sD}, s{sC}, 7\ns_sub_u32 s{sB}, s{sB}, s{sD}\ns_add_u32 s{sB}, s{sB}, 8\ns_sub_u32 s{sC}, 16, s{sC}")
        p(f"s_cmp_ge_u32 s{sA}, 136\ns_cselect_b32 s{sCg}, s{sC}, s{sRt}\ns_cselect_b32 s{sRg}, s{sB}, s{sCt}")
        p(f"s_cmp_eq_u32 s{sA}, 255\ns_cselect_b32 s{sCg}, 0, s{sCg}\ns_cselect_b32 s{sRg}, 15, s{sRg}")
        if self.c['map2']:
            p(f"s_lshr_b32 s{sRt}, s{sA}, 6\ns_lshl_b32 s{sRt}, s{sRt}, 3\ns_bfe_u32 s{sB}, s{sA}, 0x30002\ns_add_u32 s{sRt}, s{sRt}, s{sB}")
            p(f"s_bfe_u32 s{sB}, s{sA}, 0x10005\ns_lshl_b32 s{sB}, s{sB}, 2\ns_and_b32 s{sCt}, s{sA}, 3\ns_add_u32 s{sCt}, s{sCt}, s{sB}")
        r = self.c['rot']
        if r == 1:
            p(f"s_mul_i32 s{sPar}, s{sCg}, 3\ns_add_u32 s{sPar}, s{sPar}, s{sRg}")
            p(f"s_mul_i32 s{sA}, s{sPar}, 205\ns_lshr_b32 s{sA}, s{sA}, 11\ns_mul_i32 s{sA}, s{sA}, 10\ns_sub_u32 s{sPar}, s{sPar}, s{sA}")
        elif r == 2:
            p(f"s_add_u32 s{sPar}, s{sCg}, s{sRg}\ns_and_b32 s{sPar}, s{sPar}, 1")
        elif r == 3:
            p(f"s_lshl_b32 s{sPar}, s{sCg}, 1\ns_add_u32 s{sPar}, s{sPar}, s{sRg}")
            p(f"s_mul_i32 s{sA}, s{sPar}, 205\ns_lshr_b32 s{sA}, s{sA}, 10\ns_mul_i32 s{sA}, s{sA}, 5\ns_sub_u32 s{sPar}, s{sPar}, s{sA}")
        elif r == 4:
            p(f"s_add_u32 s{sPar}, s{sCg}, s{sRg}\ns_and_b32 s{sPar}, s{sPar}, 3")
        p(f"s_and_b32 s{sA}, s{sCg}, 3\ns_lshr_b32 s{sB}, s{sCg}, 2\ns_cmp_eq_u32 s{sCg}, 16\ns_cselect_b32 s{sA}, 3, s{sA}")
        p(f"s_sub_u32 s{sC}, s{sCg}, s{sB}\ns_cmp_eq_u32 s{sA}, 3\ns_cselect_b32 s{sCg}, s{sB}, s{sC}")
        p("s_cbranch_scc0 L_second" if self.c['sfirst'] else "s_cbranch_scc1 L_second")

    def chunk_ops(self, s, ssm):
        r = self.c['rot']; ws = 128 if ssm else 196608
        if r == 0: return [f"s_mov_b32 s{sOffX}, {s*128}", f"s_mov_b32 s{sOffW}, {s*ws}"]
        if r in (1, 3):
            n = 10 if r == 1 else 5
            o = [] if s == 0 else [f"s_add_u32 s{sPar}, s{sPar}, 1", f"s_cmp_eq_u32 s{sPar}, {n}", f"s_cselect_b32 s{sPar}, 0, s{sPar}"]
            k = sPar
            if r == 3 and s >= 5: o.append(f"s_add_u32 s{sChunk}, s{sPar}, 5"); k = sChunk
        elif r == 2:
            o = [f"s_xor_b32 s{sChunk}, s{sPar}, {s}"]; k = sChunk
        else:
            if s < 2: o = [f"s_and_b32 s{sChunk}, s{sPar}, 1", f"s_xor_b32 s{sChunk}, s{sChunk}, {s}"]
            else: o = [f"s_xor_b32 s{sChunk}, s{sPar}, {s-2}", f"s_add_u32 s{sChunk}, s{sChunk}, 2"]
            k = sChunk
        return o + [f"s_lshl_b32 s{sOffX}, s{k}, 7", f"s_mul_i32 s{sOffW}, s{k}, {ws}"]

    def prologue(self, p, ssm):
        L = vLane; c = self.c
        t0, t1, t2, t3, t4, t5 = 0, 1, 2, 3, 4, 5
        p(f"s_mov_b32 s{sD}, 1280\ns_lshl_b32 s{sA}, s{sI}, 3\ns_lshl_b32 s{sB}, s{sWave}, 2\ns_add_u32 s{sA}, s{sA}, s{sB}\ns_lshl_b32 s{sB}, s{sI}, 2")
        p(f"s_cmp_ge_u32 s{sWave}, 2\ns_cselect_b32 s{sA}, s{sB}, s{sA}\ns_cselect_b32 s{sT+2}, 0, {2621440-819200}\ns_add_u32 s{sT+2}, s{sT+2}, 819200")
        p(f"v_lshlrev_b32 v{vL16}, 4, v{L}\nv_lshrrev_b32 v7, 4, v{L}\nv_add_u32 v7, s{sA}, v7\nv_and_b32 v{t0}, 0xff, v{vL16}\nv_mad_u32_u24 v6, v7, s{sD}, v{t0}")
        p(f"s_mul_i32 s{sK2}, s2, 205\ns_lshr_b32 s{sK2}, s{sK2}, 10\ns_mul_i32 s{sB}, s{sK2}, 5\ns_sub_u32 s{sO2}, s2, s{sB}")
        p(f"s_mul_i32 s{sA}, s{sK2}, {32*1280}\ns_lshl_b32 s{sB}, s{sO2}, 8\ns_add_u32 s{sA}, s{sA}, s{sB}\ns_lshl_b32 s{sB}, s{sWave}, 6\ns_add_u32 s{sA}, s{sA}, s{sB}")
        p(f"v_lshrrev_b32 v{t0}, 2, v{L}\nv_and_b32 v{t2}, 48, v{vL16}\nv_mad_u32_u24 v8, v{t0}, s{sD}, v{t2}\nv_add_u32 v{vJ0}, s{sA}, v8")
        p(f"v_add_u32 v{vJ0+1}, {16*1280-1024}, v{vJ0}\nv_mov_b32 v11, {EPOCH}")
        p(f"s_lshl_b32 s{sCw}, s{sCg}, 2\ns_add_u32 s{sCw}, s{sCw}, s{sWave}")
        if ssm:
            p(f"s_lshl_b32 s{sA}, s{sCw}, 5")
            p(f"v_bfe_u32 v{t0}, v{L}, 2, 2\nv_and_b32 v{t2}, 3, v{L}\nv_lshl_add_u32 v{t0}, v{t0}, 3, v{t2}\nv_add_lshl_u32 v10, v{t0}, s{sA}, 1")
        for r_, n in ((sX, 2621440), (sW0, 819200 if ssm else 1966080), (sW1, 819200 if ssm else 1966080), (sWS, WS_SIZE), (sU, 1966080)):
            p(f"s_mov_b32 s{r_+2}, {n}\ns_mov_b32 s{r_+3}, 0x20000")
        p(f"s_mov_b32 s{sT+3}, 0x20000")
        NS = 36 if ssm else 35
        p(f"s_mul_i32 s{sA}, s{sWave}, {NS}\ns_mul_i32 s{sB}, s{sRg}, {144 if ssm else 140}")
        p(f"v_lshrrev_b32 v{t0}, 3, v{L}\nv_and_b32 v{t1}, 7, v{L}\nv_add_u32 v{t0}, s{sA}, v{t0}")
        if not ssm: p(f"s_movk_i32 s{sC}, 2016")
        for n in ((0, 1, 4) if ssm else range(5)):
            if n: p(f"v_add_u32 v{t0}, {(8 if n == 1 else NS - 16) if ssm else (8 if n < 4 else 3)}, v{t0}")
            p(f"v_bfe_u32 v{t2}, v{t0}, 1, 3\nv_xor_b32 v{t2}, v{t2}, v{t1}")
            if ssm:
                p(f"v_bfe_u32 v{t3}, v{t0}, 2, 2\nv_mul_u32_u24 v{t3}, 36, v{t3}")
                p(f"v_and_b32 v{t4}, 1, v{t0}\nv_mad_u32_u24 v{t3}, v{t4}, 18, v{t3}")
                p(f"v_lshrrev_b32 v{t4}, 4, v{t0}\nv_lshl_add_u32 v{t3}, v{t4}, 1, v{t3}")
                p(f"v_bfe_u32 v{t4}, v{t0}, 1, 1\nv_add3_u32 v{t3}, v{t3}, v{t4}, s{sB}")
            else:
                p(f"v_add_u32 v{t3}, s{sB}, v{t0}\nv_lshrrev_b32 v{t4}, 4, v{t3}\nv_mul_u32_u24 v{t5}, 57, v{t4}\nv_lshrrev_b32 v{t5}, 9, v{t5}")
                p(f"v_cmp_gt_u32 vcc, s{sC}, v{t3}\nv_mad_i32_i24 v{t4}, v{t5}, -9, v{t4}\nv_and_b32 v{t5}, 12, v{t3}\nv_lshlrev_b32 v{t5}, 3, v{t5}")
                p(f"v_mad_i32_i24 v{t4}, v{t4}, -12, v{t5}\nv_cndmask_b32 v{t4}, 0, v{t4}, vcc\nv_add_u32 v{t3}, v{t3}, v{t4}")
            p(f"v_lshlrev_b32 v{t2}, 4, v{t2}\nv_mad_u32_u24 v{vXD+n}, v{t3}, s{sD}, v{t2}")
            if n and not ssm: p(f"v_subrev_u32 v{vXD+n}, {1024*n if n < 4 else 27*128}, v{vXD+n}")
        if ssm:
            p(f"v_subrev_u32 v{vXD+1}, 1024, v{vXD+1}\nv_add_u32 v{vXD+2}, 512, v{vXD}\nv_add_u32 v{vXD+3}, 512, v{vXD+1}\nv_subrev_u32 v{vXD+4}, {28*128}, v{vXD+4}")
        if ssm:
            p(f"s_lshl_b32 s{sA}, s{sCw}, 5")
            p(f"v_lshrrev_b32 v{t0}, 5, v{L}\nv_lshlrev_b32 v{t0}, 3, v{t0}\nv_bfe_u32 v{t2}, v{L}, 3, 2\nv_add3_u32 v{t0}, v{t0}, v{t2}, s{sA}")
            p(f"v_lshrrev_b32 v{t2}, 4, v{L}\nv_xor_b32 v{t2}, v{t2}, v{t1}\nv_lshlrev_b32 v{t2}, 4, v{t2}")
            p(f"v_mad_u32_u24 v{vWDm}, v{t0}, s{sD}, v{t2}")
            p(f"v_xor_b32 v{t2}, 64, v{vWDm}\nv_add_u32 v{vWDm+1}, {16*1280-1024}, v{t2}")
            p(f"v_add_u32 v{vWDm+2}, {4*1280-2048}, v{vWDm}\nv_add_u32 v{vWDm+3}, {4*1280-2048}, v{vWDm+1}")
            p(f"s_mul_i32 s{sM0W}, s{sWave}, 8192")
        else:
            p(f"s_mul_i32 s{sA}, s{sWave}, {16*3072}\ns_lshl_b32 s{sB}, s{sCg}, 8\ns_add_u32 s{sA}, s{sA}, s{sB}\ns_mov_b32 s{sC}, 3072")
            p(f"v_lshrrev_b32 v{t0}, 4, v{L}\nv_and_b32 v{t2}, 15, v{L}\nv_lshlrev_b32 v{t3}, 1, v{t0}\nv_xor_b32 v{t2}, v{t2}, v{t3}\nv_lshlrev_b32 v{t2}, 4, v{t2}")
            p(f"v_mad_u32_u24 v{t2}, v{t0}, s{sC}, v{t2}\nv_add_u32 v{vWDm}, s{sA}, v{t2}")
            p(f"v_add_u32 v{vWDm+1}, {4*3072-1024}, v{vWDm}")
            p(f"v_xor_b32 v{t2}, 128, v{vWDm}\nv_add_u32 v{vWDm+2}, {8*3072-2048}, v{t2}\nv_add_u32 v{vWDm+3}, {12*3072-3072}, v{t2}")
            p(f"s_mul_i32 s{sM0W}, s{sWave}, 4096")
        p(f"s_add_u32 s{sM0W}, s{sM0W}, {XIMG}\ns_mul_i32 s{sM0X}, s{sWave}, {NS*128}")
        p("s_waitcnt lgkmcnt(0)")
        self.stamp(p, 0)
        if c['bw']:
            p(f"s_lshl_b32 s{sA}, s2, 2\ns_add_u32 s{sA}, s{sA}, s{sWave}")
            p(f"s_waitcnt vmcnt(0)\ns_memrealtime {S2(sQ1)}\ns_waitcnt lgkmcnt(0)")
            k = 0
            for ptr, nbytes in ((pX, 2621440), (pWg, 1966080), (pWu, 1966080), (pWd, 1966080), (pBre, 819200), (pBim, 819200), (pCre, 819200), (pCim, 819200))[:c['bw']]:
                per = nbytes // 1024
                p(f"s_mul_i32 s{sB}, s{sA}, {per}")
                for o in range(0, per, 1024):
                    p(f"v_add_u32 v12, {o}, v{vL16}\nv_min_u32 v12, {per-16}, v12\nv_add_u32 v12, s{sB}, v12\nglobal_load_dwordx4 a[{4*k}:{4*k+3}], v12, {S2(ptr)}"); k += 1
            p(f"s_waitcnt vmcnt(0)\ns_memrealtime {S2(sSt)}\ns_waitcnt lgkmcnt(0)\ns_sub_u32 s101, s{sSt}, s{sQ1}")
            self.stamp(p, 12)
        if c['chase']:
            ptr = c['chase']
            p(f"s_lshl_b32 s{sA}, s2, 2\ns_add_u32 s{sA}, s{sA}, s{sWave}\ns_lshl_b32 s{sA}, s{sA}, 11\nv_mov_b32 v14, s{sA}")
            p(f"s_waitcnt vmcnt(0)\ns_memrealtime {S2(sQ1)}\ns_waitcnt lgkmcnt(0)")
            for i in range(16):
                p(f"global_load_dword v12, v14, {S2(ptr)} offset:{128*i}\ns_waitcnt vmcnt(0)")
            p(f"s_memrealtime {S2(sSt)}\ns_waitcnt lgkmcnt(0)\ns_sub_u32 s101, s{sSt}, s{sQ1}")
        p(f"s_cmp_eq_u32 s{sWave}, 2\ns_cselect_b64 {S2(sT)}, {S2(pBre)}, {S2(pBim)}\ns_cmp_lt_u32 s{sWave}, 2\ns_cselect_b64 {S2(sT)}, {S2(pX)}, {S2(sT)}")
        side = []
        for j in range(5):
            side.append(f"buffer_load_dwordx4 {V4(16+4*j)}, v6, {S4(sT)}, 0 offen offset:{256*j}")
        wdd = self.wd_job()[0]
        ct = []
        if c['cfirst'] or c['x_plans']:
            p(f"s_cmp_lt_u32 s{sWave}, 2\ns_cselect_b64 s[0:1], {S2(pCre)}, {S2(pCim)}\ns_mul_i32 s{sA}, s2, 25\ns_and_b32 s{sB}, s{sWave}, 1\ns_mul_i32 s{sB}, s{sB}, 12\ns_add_u32 s{sA}, s{sA}, s{sB}\ns_lshl_b32 s{sA}, s{sA}, 7")
            p(f"v_min_u32 v12, 12, v{L}\nv_lshl_add_u32 v{vWT}, v12, 7, s{sA}")
            ct = [[f"global_load_dword a241, v{vWT}, s[0:1]"]]
            assert not c['wpipe'] and not c['touch']
            if c['cfirst'] == 1: side = side + ct
        if c['x_plans']:
            p(f"v_mov_b32 v242, v6")
            dummy = [[f"buffer_load_dwordx4 a[{200+4*j}:{203+4*j}], v242, {S4(sT)}, 0 offen offset:{256*j}"] for j in range(5)]
            dummy[4] = [dummy[4] + [f"s_cmp_lt_u32 s{sWave}, 2", f"s_cselect_b64 {S2(sT)}, {S2(pCre)}, {S2(pCim)}", f"s_mov_b32 s{sT+2}, 819200"]]
        if c['x_noside'] & 1: side = []
        if not c['wdlate'] and not c['x_noside'] & 2: side += wdd
        if c['wtouch']:
            p(f"s_lshl_b32 s{sA}, s2, 2\ns_add_u32 s{sA}, s{sA}, s{sWave}\ns_mul_i32 s{sA}, s{sA}, 1920\nv_min_u32 v12, 14, v{L}\nv_lshl_add_u32 v{vTmp}, v12, 7, s{sA}")
            wt = [[f"global_load_dword a244, v{vTmp}, {S2(pWg)}"], [f"global_load_dword a245, v{vTmp}, {S2(pWu)}"]]
            if c['wtouch'] == 1: side = wt + side
        side.append(f"buffer_load_dword v15, v11, {S4(sWS)}, 0 offen sc1")
        if c['tlb']:
            p(f"v_min_u32 v13, 15, v{L}\nv_lshlrev_b32 v13, 20, v13\nv_add_u32 v13, {PADOFF}, v13\nv_and_b32 v14, 0x300000, v13")
            side += [f"global_load_dword a246, v13, {S2(pWs)}", f"global_load_dword a247, v14, {S2(pOut)}"]
            side += [f"global_load_dword a{248+i}, v{vL16}, {S2(ptr)}" for i, ptr in enumerate((pCre, pCim, pWd, pDsk))]
        p(f"s_mov_b64 {S2(sU)}, {S2(pWd)}\ns_mov_b64 {S2(sX)}, {S2(pX)}\ns_mov_b64 {S2(sWS)}, {S2(pWs)}")
        p(f"s_mov_b64 {S2(sW0)}, {S2(pBre if ssm else pWg)}\ns_mov_b64 {S2(sW1)}, {S2(pBim if ssm else pWu)}")
        if ssm:
            for i, ptr in enumerate((pLre, pLim, pLdt)):
                p(f"global_load_ushort v{100+2*i}, v10, {S2(ptr)}\nglobal_load_ushort v{101+2*i}, v10, {S2(ptr)} offset:8")
        if c['wpipe']:
            p(f"s_bitcmp1_b32 s{sWave}, 0\ns_cselect_b64 s[0:1], {S2(pWu)}, {S2(pWg)}\ns_lshr_b32 s{sA}, s{sWave}, 1\ns_add_u32 s{sA}, s{sA}, 2\ns_mul_i32 s{sA}, s{sA}, 196608")
            p(f"s_mul_i32 s{sB}, s2, 768\ns_add_u32 s{sA}, s{sA}, s{sB}\nv_min_u32 v12, 5, v{L}\nv_lshl_add_u32 v{vWT}, v12, 7, s{sA}")
            if c['wp0'] == 0: side = side + self.wtouch_op(0)
        st0 = self.dma_stage(0, ssm); st1 = self.dma_stage(1, ssm)
        if c['wpipe'] and c['wp0'] == 1: st0 = st0 + [self.wtouch_op(0)]
        if c['order'] == 1:
            p.add(st0[0][:-2]); st0[0] = st0[0][-2:]
            for g in st0[5:]: p.add(g)
            st0 = st0[:5]
        elif c['order'] == 2:
            for g in st0: p.add(g)
            st0 = []
        p.add(side)
        dq = st0 + (wt if c['wtouch'] == 2 else []) + st1[:c['pre1']]
        if c['cfirst'] == 2: dq = dq + ct
        self.dq_rest = st1[c['pre1']:] + (wt if c['wtouch'] == 3 else []) + (dummy + ct if c['x_plans'] else []) + (wdd if c['wdlate'] else [])
        q = Seq()
        q(f"v_add_u32 v{vL16b}, 0x1000, v{vL16}")
        q(f"v_and_b32 v{t0}, 15, v{L}\nv_lshrrev_b32 v{t1}, 4, v{L}\nv_lshrrev_b32 v{t2}, 1, v{t0}\nv_xor_b32 v{t2}, v{t2}, v{t1}\nv_lshlrev_b32 v{t2}, 4, v{t2}")
        q(f"v_lshl_add_u32 v{vXR0}, v{t0}, 7, v{t2}\nv_xor_b32 v{vXR1}, 64, v{vXR0}")
        if ssm:
            q(f"v_add_u32 v{vWR0}, s{sM0W}, v{vXR0}\nv_add_u32 v{vWR1}, s{sM0W}, v{vXR1}")
        else:
            q(f"v_bfe_u32 v{t0}, v{L}, 2, 3\ns_lshl_b32 s{sA}, s{sWave}, 1\nv_xor_b32 v{t0}, s{sA}, v{t0}\nv_lshlrev_b32 v{t0}, 5, v{t0}")
            q(f"v_and_b32 v{t2}, 3, v{L}\nv_lshl_add_u32 v{t0}, v{t2}, 3, v{t0}")
            q(f"v_bfe_u32 v{t2}, v{L}, 2, 2\nv_lshl_add_u32 v{t2}, v{t1}, 3, v{t2}\nv_lshl_add_u32 v{t0}, v{t2}, 8, v{t0}")
            q(f"v_add_u32 v{vWR0}, {XIMG}, v{t0}\nv_xor_b32 v{vWR1}, 32, v{vWR0}")
            q(f"v_mov_b32 v12, 0x3f803f80\nv_mov_b32 v13, 0x3f803f80\nv_lshlrev_b32 v{t0}, 3, v{L}\nv_add_u32 v{t2}, {STG}, v{t0}\nv_add_u32 v{t3}, {2*STG}, v{t0}")
            for r_ in (t0, t2, t3): q(f"ds_write_b64 v{r_}, v[12:13] offset:{140*128}", tag='ones')
        q(f"s_mul_i32 s{sA}, s{sCt}, {80*1280}")
        q(f"v_lshrrev_b32 v{t0}, 3, v{L}\nv_and_b32 v{t2}, 7, v{L}\nv_lshrrev_b32 v{t3}, 4, v{L}\nv_xor_b32 v{t2}, v{t2}, v{t3}\nv_lshlrev_b32 v{t2}, 4, v{t2}")
        q(f"v_mad_u32_u24 v{t0}, v{t0}, s{sD}, v{t2}\nv_add_u32 v{vCD0}, s{sA}, v{t0}\nv_xor_b32 v{t0}, 64, v{vCD0}\nv_add_u32 v{vCD1}, {8*1280-1024}, v{t0}")
        q(f"s_mul_i32 s{sCslot}, s{sWave}, 10240\nv_add_u32 v{vCpat}, s{sCslot}, v{vXR0}")
        self.flag_offsets(q, vFG, 140, 48, f"s_mul_i32 s{sC}, s{sWave}, 12", 12, FLAGG)
        self.flag_offsets(q, vFS, 144, 20, f"s_and_b32 s{sC}, s{sWave}, 1\ns_mul_i32 s{sC}, s{sC}, 10", 10, FLAGS)
        q(f"s_and_b32 s{sRot2}, s{sWave}, 1\ns_mul_i32 s{sRot2}, s{sRot2}, 640\ns_add_u32 s{sRotC}, s{sRt}, 1\ns_and_b32 s{sRotC}, s{sRotC}, 3")
        q(f"s_mul_i32 s{sB}, s{sRg}, {20 if ssm else 48}\ns_add_u32 s{sB}, s{sB}, s{sCw}\ns_lshl_b32 s{sB}, s{sB}, 6\ns_add_u32 s{sFlag}, s{sB}, {FLAGS if ssm else FLAGG}")
        q(f"s_mul_i32 s{sHo}, s{sCw}, {HS}\ns_add_u32 s{sHo}, s{sHo}, {H + (48*HS if ssm else 0)}")
        self.side_addr(q)
        nfree = len(q.items)
        if ssm: self.ssm_consts(q)
        if not c['x_noside'] & 1: self.side_stats(q)
        elif not c['wdlate']:
            q.items.append([W('wdst')])
            for x in self.wd_job()[1]: q(x)
        q(f"v_readfirstlane_b32 s{sTag}, v15\ns_nop 1\ns_mul_i32 s{sTag}, s{sTag}, 1664525\ns_add_u32 s{sTag}, s{sTag}, 1013904223")
        items = q.items; nh = c['head']
        for g in dq[:nh]: p.add(g)
        if c['pads']:
            nm = 'S' if ssm else 'G'
            p("s_mov_b64 exec, 0")
            for w_ in range(3): p(f"s_cmp_eq_u32 s{sWave}, {w_}\ns_cbranch_scc1 L_pad{nm}{w_}")
            p(f"s_branch L_pad{nm}3\nL_ret{nm}:\ns_mov_b64 exec, -1")
        dq = dq[nh:]
        tot = sum(len(x) for x in items); k = 0; cnt = 0
        for it in items:
            p.add(it); cnt += len(it)
            while k < len(dq) and cnt * len(dq) >= (k + 1) * tot: p.add(dq[k]); k += 1
        while k < len(dq): p.add(dq[k]); k += 1
        self.side_store(p, ssm)
        if not c['x_plans']: p(f"s_cmp_lt_u32 s{sWave}, 2\ns_cselect_b64 {S2(sT)}, {S2(pCre)}, {S2(pCim)}\ns_mov_b32 s{sT+2}, 819200")

    def wtouch_op(self, k):
        return ([f"v_add_u32 v{vWT}, {2*196608}, v{vWT}"] if k else []) + [f"global_load_dword a{244 + (k & 1)}, v{vWT}, s[0:1]"]

    def wd_job(self):
        assert not (self.c['wdlate'] and self.c['wpipe'])
        vJD = 236 if self.c['wdlate'] else 60
        d = [[f"s_lshl_b32 s{sC}, s{sWave}, 11", f"s_add_u32 m0, s{sC}, {L_WDST}", I(f"buffer_load_dwordx4 v{vJ0}, {S4(sU)}, 0 offen lds", 'wdst')],
             [I(f"buffer_load_dwordx4 v{vJ0+1}, {S4(sU)}, 0 offen offset:1024 lds", 'wdst')]]
        r = [f"ds_read_b64_tr_b16 {V2(vJD+4*nbl+2*t)}, v{vJ0+2} offset:{t*1024 + nbl*32}" for nbl in range(2) for t in range(2)]
        st = [[I(f"buffer_store_dwordx4 {V4(vJD+4*nbl)}, v{vL16}, {S4(sWS)}, s{98+nbl} offen sc1", 'side')] for nbl in range(2)]
        st[0] = [f"s_mov_b64 {S2(sU)}, {S2(pOut)}", f"s_mov_b32 s{sU+2}, 5242880"] + st[0]
        return d, r, st

    def side_addr(self, q):
        L = vLane
        q(f"s_cmp_lt_u32 s{sWave}, 2\ns_cselect_b32 s{sB}, 0, 1408\ns_cselect_b32 s{sC}, 0, 2048\ns_cselect_b32 s{sA}, 0, {OOB}\n"
          f"v_mov_b32 v40, s{sA}\nv_add_u32 v44, s{sB}, v7\nv_cmp_gt_u32 {S2(sMask)}, s{sC}, v44")
        q(f"s_mov_b32 s{sA}, 1821\nv_mul_u32_u24 v1, s{sA}, v44\nv_lshrrev_b32 v1, 18, v1")
        q(f"v_mul_u32_u24 v2, 144, v1\nv_sub_u32 v2, v44, v2\nv_mul_u32_u24 v3, 57, v2\nv_lshrrev_b32 v3, 10, v3")
        q(f"v_mul_u32_u24 v4, 18, v3\nv_sub_u32 v4, v2, v4")
        q(f"v_lshrrev_b32 v5, 1, v3\nv_cmp_gt_u32 vcc, 14, v1\nv_mul_u32_u24 v0, 36, v5\nv_sub_u32 v0, v2, v0\nv_and_b32 v0, 60, v0\nv_mul_u32_u24 v0, 3, v0\n"
          f"v_lshlrev_b32 v2, 5, v5\nv_sub_u32 v0, v0, v2\nv_cndmask_b32 v0, 0, v0, vcc\nv_add_u32 v0, v0, v44\nv_lshl_add_u32 v40, v0, 4, v40")
        q(f"v_lshl_add_u32 v1, v1, 2, v5\nv_mul_u32_u24 v1, 72, v1")
        q(f"v_and_b32 v3, 1, v3\nv_lshl_add_u32 v3, v4, 1, v3\nv_add_lshl_u32 v1, v1, v3, 2\nv_add_u32 v1, {STATS}, v1")
        q(f"v_lshrrev_b32 v2, 3, v7\nv_and_b32 v3, 3, v7\nv_lshl_add_u32 v2, v2, 2, v3\nv_and_b32 v3, 4, v7\nv_lshl_add_u32 v2, v2, 4, v3")
        q(f"s_lshl_b32 s{sA}, s{sWave}, 3\ns_add_u32 s{sA}, s{sA}, {CSUM - 16}\nv_add_u32 v2, s{sA}, v2\nv_mov_b32 v3, {OOB}")
        q(f"v_cndmask_b32 v41, v1, v2, {S2(sMask)}\nv_cndmask_b32 v42, v1, v3, {S2(sMask)}")
        q(f"s_lshl_b32 s{sA}, s{sWave}, 11\ns_add_u32 s{sA}, s{sA}, {L_WDST}\n"
          f"v_lshrrev_b32 v0, 2, v{L}\nv_and_b32 v1, 3, v{L}\nv_lshlrev_b32 v1, 3, v1\nv_lshl_add_u32 v0, v0, 6, v1\nv_add_u32 v{vJ0+2}, s{sA}, v0")
        for nbl in range(2):
            q(f"s_lshl_b32 s{sA}, s{sO2}, 3\ns_lshl_b32 s{sB}, s{sWave}, 1\ns_add_u32 s{sA}, s{sA}, s{sB}\ns_add_u32 s{sA}, s{sA}, {nbl}")
            q(f"s_mul_i32 s{sB}, s{sA}, 205\ns_lshr_b32 s{sB}, s{sB}, 10\ns_mul_i32 s{sB}, s{sB}, 255\ns_add_u32 s{sA}, s{sA}, s{sB}")
            q(f"s_mul_i32 s{sB}, s{sK2}, 5\ns_add_u32 s{sA}, s{sA}, s{sB}\ns_lshl_b32 s{sA}, s{sA}, 10\ns_add_u32 s{98+nbl}, s{sA}, {WD}")

    def side_stats(self, q):
        q("v_mov_b32 v45, 0x3f803f80")
        for j in range(20):
            a = 46 + (j & 1); b = 48 + (j & 1)
            q(f"v_dot2_f32_bf16 v{a}, v{16+j}, v45, {'0' if j < 2 else 'v%d' % a}\nv_dot2_f32_bf16 v{b}, v{16+j}, v{16+j}, {'0' if j < 2 else 'v%d' % b}")
        if not self.c['wdlate']:
            q.items.append([W('wdst')])
            for x in self.wd_job()[1]: q(x)
        q("v_add_f32 v55, v46, v47\nv_add_f32 v48, v48, v49")
        for r in (8, 4, 2, 1):
            q(f"v_add_f32_dpp v55, v55, v55 row_ror:{r} row_mask:0xf bank_mask:0xf\nv_add_f32_dpp v48, v48, v48 row_ror:{r} row_mask:0xf bank_mask:0xf")
        q(f"v_mul_f32 v46, {INV640}, v55\nv_mul_f32 v48, {INV640}, v48\nv_fma_f32 v48, -v46, v46, v48\nv_max_f32 v48, 0, v48")
        q.add(self.bfr(48, 48)); q(f"v_add_f32 v48, {EPS}, v48"); q.add(self.bfr(48, 48))
        q("v_sqrt_f32 v48, v48"); q.add(self.bfr(52, 46)); q.add(self.bfr(53, 48)); q("v_rcp_f32 v54, v53")
        q(f"v_mul_f32 v50, v52, v54\nv_cndmask_b32 v51, v54, v55, {S2(sMask)}")

    def side_store(self, p, ssm):
        if not self.c['wdlate']:
            for g in self.wd_job()[2]: p.add(g)
        if ssm:
            p(f"s_lshl_b32 s{sB}, s{sCw}, 4\ns_add_u32 s{sB}, s{sB}, s{sRg}\ns_lshl_b32 s{sB}, s{sB}, 8\ns_add_u32 s{sCo}, s{sB}, {CARRY}")
            p(f"v_mov_b32 v13, -1\nv_lshlrev_b32 v14, 2, v{vLane}")
            p(f"buffer_store_dword v13, v14, {S4(sWS)}, s{sCo} offen sc1", tag='side')
        p(f"s_mov_b32 exec_lo, 0x00010001\ns_mov_b32 exec_hi, 0x00010001")
        p(f"buffer_store_dwordx4 v[52:55], v40, {S4(sWS)}, 0 offen sc1", tag='side')
        p(f"buffer_store_dword v51, v41, {S4(sWS)}, 0 offen sc1", tag='side')
        p(f"buffer_store_dword v50, v42, {S4(sWS)}, 0 offen offset:144 sc1", tag='side')
        p("s_mov_b64 exec, -1")

    def ssm_consts(self, p):
        for i in range(100, 106): p(f"v_lshlrev_b32 v{i}, 16, v{i}")
        for i in (0, 1):
            p(f"v_mul_f32 v{104+i}, {LOG2E}, v{104+i}\nv_exp_f32 v{104+i}, v{104+i}")
        for i in (0, 1): p.add(self.bfr(104+i, 104+i))
        p("v_pk_mul_f32 v[106:107], v[104:105], v[100:101]\nv_pk_mul_f32 v[108:109], v[104:105], v[102:103]")
        for i in (0, 1):
            p(f"v_mul_f32 v{106+i}, {LOG2E}, v{106+i}\nv_exp_f32 v{106+i}, v{106+i}")
            p(f"v_mul_f32 v{108+i}, {INV2PI}, v{108+i}\nv_rndne_f32 v110, v{108+i}\nv_sub_f32 v{108+i}, v{108+i}, v110")
            p(f"v_cos_f32 v{112+i}, v{108+i}\nv_sin_f32 v{114+i}, v{108+i}")
        p(f"v_pk_mul_f32 {V2(LAM)}, v[106:107], v[112:113]\nv_pk_mul_f32 {V2(LAM+2)}, v[106:107], v[114:115]")
        p(f"v_pk_mul_f32 v[106:107], v[100:101], v[100:101]\nv_pk_fma_f32 v[106:107], v[102:103], v[102:103], v[106:107]")
        p("v_rcp_f32 v106, v106\nv_rcp_f32 v107, v107")
        p(f"v_add_f32 v112, -1.0, v{LAM}\nv_add_f32 v113, -1.0, v{LAM+1}\nv_mov_b32 v114, v{LAM+2}\nv_mov_b32 v115, v{LAM+3}")
        p("v_add_f32 v106, v106, v106\nv_add_f32 v107, v107, v107")
        p("v_pk_mul_f32 v[100:101], v[100:101], v[106:107]\nv_pk_mul_f32 v[102:103], v[102:103], v[106:107] neg_lo:[1,0] neg_hi:[1,0]")
        p.add(self.cmul(COEF, 112, 100))
        p.add(self.cmul(100, LAM, LAM))
        p.add(self.cmul(104, 100, 100))
        p.add(self.cmul(108, 104, 104))
        p.add(self.cmul(104, 108, 108))
        p.add(self.cmul(L18, 104, 100))
        p.add(self.cmul(L36, L18, L18))
        p.add(self.cmul(100, L36, L36))
        p.add(self.cmul(104, 100, L36))
        p(f"v_cmp_le_u32 {S2(sQ1)}, 16, v{vLane}\nv_cmp_le_u32 {S2(sQ2)}, 32, v{vLane}\nv_cmp_le_u32 {S2(sQ3)}, 48, v{vLane}")
        p.add(self.cone(108))
        p.add(self.csel(F36, 104, 100, sQ1)); p.add(self.csel(F36, F36, L36, sQ2)); p.add(self.csel(F36, F36, 108, sQ3))

    def dma_stage(self, s, ssm):
        buf = (s % 3) * STG; tag = f'st{s}'
        g = []
        for n in range(4):
            pre = self.chunk_ops(s, ssm) + [f"s_add_u32 m0, s{sM0X}, {buf}"] if n == 0 else []
            g.append(pre + [I(f"buffer_load_dwordx4 v{vXD+n}, {S4(sX)}, s{sOffX} offen offset:{1024*n} lds", tag)])
        g.append([I(f"buffer_load_dwordx4 v{vXD+4}, {S4(sX)}, s{sOffX} offen offset:{(28 if ssm else 27)*128} lds", tag)])
        for m in range(2):
            for n in range(4):
                pre = [f"s_add_u32 m0, s{sM0W}, {buf + m * (4096 if ssm else 16384)}"] if n == 0 else []
                g.append(pre + [I(f"buffer_load_dwordx4 v{vWDm+n}, {S4(sW1 if m else sW0)}, s{sOffW} offen offset:{1024*n} lds", tag)])
        return g

    def xread(self, B):
        h = (B // 9) & 1; b = B % 9
        return f"ds_read_b128 {V4(xr(B))}, v{vXR1 if h else vXR0} offset:{b*2048}"
    def wreads(self, K, ssm):
        h = K & 1; out = []
        for t in range(4):
            d = wb(K & 1, t)
            if ssm:
                out.append(f"ds_read_b128 {V4(d)}, v{vWR1 if h else vWR0} offset:{(t & 1)*4096 + (t >> 1)*2048}")
            else:
                for tt in range(2):
                    out.append(f"ds_read_b64_tr_b16 {V2(d+2*tt)}, v{vWR1 if (t >> 1) else vWR0} offset:{(t & 1)*16384 + (32*h + 4*tt)*256}")
        return out

    def wd_ops(self):
        ops = []
        for i in range(12):
            if i == 0:
                pre = [f"s_mul_i32 s{sD}, s{sCt}, 52", f"s_mul_i32 s{sC}, s{sWave}, 12", f"s_add_u32 s{sD}, s{sD}, s{sC}",
                       f"s_mul_i32 s{sD}, s{sD}, 5120", f"s_add_u32 s{sO2}, s{sD}, {WD}"]
            else:
                pre = [f"s_add_u32 s{sO2}, s{sO2}, 5120"]
            for nb in range(5):
                a = 20 * i + 4 * nb
                ld = (f"buffer_load_dwordx4 {A4(a)}, v{vL16}, {S4(sWS)}, s{sO2} offen offset:{1024*nb} sc1" if nb < 4 else
                      f"buffer_load_dwordx4 {A4(a)}, v{vL16b}, {S4(sWS)}, s{sO2} offen sc1")
                ops.append((pre if nb == 0 else []) + [ld])
        return ops
    def crow(self, i): return (0, 1, 2, 3, 0)[i] * 40960
    def c_ops(self, i, rot=False):
        ops = []
        for j in range(10):
            pre = []
            if j == 0:
                pre = [f"s_xor_b32 s{sKC}, s{sRotC}, {i}" if rot else f"s_mov_b32 s{sKC}, {i}", f"s_lshl_b32 s98, s{sKC}, 7", f"s_add_u32 s98, s98, s{sRot2}",
                       f"s_mul_i32 s99, s{sKC}, {40960 if i < 4 else 0}", f"s_add_u32 s99, s99, s{sCslot}"]
            elif j % 2 == 0:
                pre = [f"s_add_u32 s98, s98, {16*1280}"]
            if j % 2 == 0: pre += [f"s_add_u32 m0, s99, {j * 1024}"]
            ops.append(pre + [I(f"buffer_load_dwordx4 v{vCD1 if j & 1 else vCD0}, {S4(sT)}, s98 offen offset:{1024*(j & 1)} lds", 'c0' if rot else f'c{i}')])
        return ops

    def poll_check(self, load, cmpc, reg):
        ok = self.lab('ok'); lp = self.lab('spin')
        out = [f"v_cmp_ne_u32 vcc, {cmpc}, v{reg}", f"s_cbranch_vccz {ok}"]
        slow = [f"s_mov_b32 s{sSpin}, 0x10000", f"{lp}:", "s_sleep 2", load, "s_waitcnt vmcnt(0)",
                f"v_cmp_ne_u32 vcc, {cmpc}, v{reg}", f"s_sub_u32 s{sSpin}, s{sSpin}, 1", f"s_cmp_eq_u32 s{sSpin}, 0",
                f"s_cbranch_scc1 {ok}", f"s_cbranch_vccnz {lp}"]
        out += [self.optI(x) for x in slow] + [f"{ok}:"]
        return out
    def optI(self, x):
        i = I(x, opt=True)
        if i.kind == 'vmem': i.kind = 'ctl'; i.wr = set(); i.rd = set()
        return i

    def mainloop(self, p, ssm):
        c = self.c; L = vLane
        mf = []
        for K in range(20):
            for b in range(9):
                B = K * 9 + b
                for t in (range(4) if not (c['snake'] and b & 1) else range(3, -1, -1)):
                    a = acc(b, t); w = wb(K & 1, t); x = xr(B)
                    cc = '0' if K == 0 else V4(a)
                    if ssm: mf.append(f"v_mfma_f32_16x16x32_bf16 {V4(a)}, {V4(x)}, {V4(w)}, {cc}")
                    else: mf.append(f"v_mfma_f32_16x16x32_bf16 {V4(a)}, {V4(w)}, {V4(x)}, {cc}")
        F = {}
        def put(B, g, items): F.setdefault(B * 4 + g, []).extend(items if isinstance(items, list) else [items])
        def place(groups, b0, b1):
            n = len(groups); nb = b1 - b0
            blocks = [b0 + (i * nb) // n for i in range(n)]
            for i, g in enumerate(groups):
                two = i + 1 < n and blocks[i + 1] == blocks[i]
                assert not (two and i > 0 and blocks[i - 1] == blocks[i])
                put(blocks[i], 0 if two else (3 if blocks[i] % 9 == 0 else 2), list(g))
        p(f"s_branch L_main{'S' if ssm else 'G'}\nL_split:")
        p.wait('st0', 'ones'); p("s_barrier")
        self.stamp(p, 1)
        wr = self.wreads(0, ssm); k = len(wr) // 4
        p.add(wr[:k]); p(self.xread(0)); p.add(wr[k:])
        for B in range(1, 5): p(self.xread(B))
        BB = 5
        pf = self.wd_ops()
        ps = c['poll_stage']; sa = 2 if c['wdlate'] else 0
        assert ps > sa
        ld = f"buffer_load_dword v{vPoll}, v{vL16}, {S4(sWS)}, s{sA} offen sc1"
        for s in range(10):
            B0 = s * 18
            for B in range(B0 + 5, B0 + 18): put(B - 5, 0, self.xread(B))
            w1 = self.wreads(2 * s + 1, ssm)
            for i, r in enumerate(w1): put(B0 + 1 + (i * 6) // len(w1), 1 if i % 2 == 0 or ssm else 3, r)
            Bb = B0 + 9 + BB
            tags = [f'st{s+1}', 'ALLLG'] + (['side'] if s == sa else []) + (['sstat'] if s >= ps + 2 else [])
            bar = [W(*tags), "s_barrier"]
            if c['x_nobar'] and s not in (0, ps, 9): bar = [W(*tags)]
            if s == ps: put(Bb - 1, 1, self.poll_check(ld, f"s{sTag}", vPoll))
            if s < 9:
                d = STG if (s + 1) % 3 else -2 * STG
                op = "v_add_u32" if d > 0 else "v_subrev_u32"
                upd = [f"{op} v{r}, {abs(d)}, v{r}" for r in (vWR0, vXR0, vWR1, vXR1)]
                put(Bb - 2, 1, upd[:2]); put(Bb - 1, 0, upd[2:])
            if c['stamps'] == 2:
                q = Prog(); self.stamp(q, 20 + s); bar += q.L
            put(Bb - 1, 3, bar)
            if s < 9:
                w0 = self.wreads(2 * s + 2, ssm); k = len(w0) // 4
                seq = w0[:k] + [self.xread(B0 + 18)] + w0[k:2*k] + [self.xread(B0 + 19)] + w0[2*k:]
                seq += [self.xread(B0 + 20), self.xread(B0 + 21), self.xread(B0 + 22)]
                if ssm: spots = [(0, 0), (0, 1), (0, 3), (1, 0), (1, 1), (1, 3), (2, 0), (2, 1), (3, 0)]
                else: spots = [(0, 0), (0, 1), (0, 2), (0, 3), (1, 0), (1, 1), (1, 3), (2, 0), (2, 1), (2, 3), (3, 0), (3, 1), (3, 3)]
                for (db, g), r in zip(spots, seq): put(Bb + db, g, r)
            if s == sa or s == ps:
                arr = self.lab('arr')
                cond = [f"s_cmp_lg_u32 s{sWave}, 0"] if s == sa else [f"s_or_b32 s{sB}, s{sWave}, s2"]
                adr = [f"s_lshl_b32 s{sB}, s2, 4", f"s_add_u32 s{sB}, s{sB}, {ARR}"] if s == sa else [f"s_mov_b32 s{sB}, {EPOCH}"]
                put(Bb, 0, cond + [f"s_cbranch_scc1 {arr}"] +
                    [I(x, opt=True) for x in adr + [f"v_mov_b32 v{vPoll}, s{sTag}", "s_mov_b64 exec, 1",
                                              f"buffer_store_dword v{vPoll}, v{vL16}, {S4(sWS)}, s{sB} offen sc1", "s_mov_b64 exec, -1"]] + [f"{arr}:"])
            early = []; late = []
            if s == ps: early.append([f"s_lshl_b32 s{sA}, s{sWave}, 10", f"s_add_u32 s{sA}, s{sA}, {ARR}", ld])
            if s == 0: early += self.dq_rest
            if s + 2 < 10 and not (c['x_nodma'] and s > 0): early += self.dma_stage(s + 2, ssm)
            if s == 1 and c['wdlate']:
                _, rr, ss = self.wd_job()
                put(B0 + 7, 1, [W('wdst'), rr[0]]); put(B0 + 8, 1, [rr[1]]); put(B0 + 10, 1, [rr[2]]); put(B0 + 11, 1, [rr[3]])
                late += ss
            if c['wpipe']:
                for k_ in (1, 2, 3):
                    if s == c[f'wp{k_}']:
                        op = self.wtouch_op(k_); put(B0 + 12, 3, op[:1]); late.append(op[1:])
            if s == c['cstage'] and c['touch']:
                late.append([f"s_mul_i32 s{sA}, s2, 25", f"s_and_b32 s{sB}, s{sWave}, 1", f"s_mul_i32 s{sB}, s{sB}, 13", f"s_add_u32 s{sA}, s{sA}, s{sB}", f"s_lshl_b32 s{sA}, s{sA}, 7",
                             f"v_min_u32 v{vTmp}, 12, v{L}", f"v_lshlrev_b32 v{vTmp}, 7, v{vTmp}", f"buffer_load_dword a241, v{vTmp}, {S4(sT)}, s{sA} offen"])
            if s == 2 and c['touch'] > 1:
                late.append([f"s_mov_b32 s{sA}, {2*HS}", f"s_mov_b32 s{sC}, {H + 139*1024}", f"v_min_u32 v{vTmp}, 43, v{L}", f"v_mul_u32_u24 v{vTmp}, s{sA}, v{vTmp}",
                             f"buffer_load_dword a242, v{vTmp}, {S4(sWS)}, s{sC} offen"])
                late.append([f"s_mul_i32 s{sA}, s{sRt}, {64*2560}", f"v_mov_b32 v{vTmp}, 0", f"buffer_load_dword a243, v{vTmp}, {S4(sU)}, s{sA} offen"])
            if s == ps: late += self.stat_loads(ssm)
            if s >= ps:
                n = c['wd_late'] if s >= 8 else (c['wd_mid'] - len(late))
                n = max(0, min(n, len(pf)))
                ops, pf = pf[:n], pf[n:]
                if s >= 8: early += ops
                else: late += ops
            if s == 0 or s >= 8:
                if early + late: place(early + late, B0, B0 + 18)
            else:
                if early: place(early, B0, B0 + max(13, len(early)))
                if late: place(late, B0 + 14, B0 + 18)
            if s == 9 and not ssm:
                put(B0, 1, [f"v_and_b32 v{vTmp}, 0xff, v{vL16}"]); put(B0, 3, [f"v_add_u32 v{vTmp}, {L_STAT}, v{vTmp}"])
                for b in range(9):
                    put(B0 + 1 + b, 3, [f"ds_read_b64 {V2(GST+2*b)}, v{vTmp} offset:{256*b}"])
                    if b < 9: put(B0 + 6 + b, 1, [f"v_rcp_f32 v{GK1+b}, v{GST+2*b+1}"]); put(B0 + 7 + b, 3, [f"v_mul_f32 v{GK1+b}, {NLOG2E}, v{GK1+b}"])
            if s == 9 and ssm:
                put(B0 + 10, 1, [f"v_lshrrev_b32 v{vTmp}, 4, v{L}", f"v_mul_u32_u24 v{vTmp}, 288, v{vTmp}"]); put(B0 + 11, 1, [f"v_add_u32 v{vTmp}, {L_STAT}, v{vTmp}"])
                for i, x in enumerate(self.rsrd(0) + self.rsrd(1)): put(B0 + 14 + i // 2, i % 2, [x])
            if s == 8 and not ssm:
                T = 245
                seq = [f"s_mul_i32 s{sA}, s{sRg}, 140", f"v_and_b32 v{T}, 15, v{L}", f"v_add_u32 v{T}, s{sA}, v{T}", f"v_lshrrev_b32 v{T+1}, 4, v{T}",
                       f"v_and_b32 v{T}, 15, v{T}", f"v_lshlrev_b32 v{T}, 4, v{T}", f"v_lshl_add_u32 v{T}, v{T+1}, 10, v{T}",
                       f"v_lshrrev_b32 v{T+1}, 4, v{L}", f"v_lshl_add_u32 v{GHA}, v{T+1}, 8, v{T}"]
                for i, x in enumerate(seq): put(B0 + 2 + i, 3, [x])
        p.add(interleave(mf, F))
        self.pf_rest = pf

    def rsreg(self, b): return (176, 236)[b] if b < 2 else 144 + 8 * (b & 1)
    def rsrd(self, b): return [f"ds_read_b128 {V4(self.rsreg(b))}, v{vTmp} offset:{16*b}", f"ds_read_b128 {V4(self.rsreg(b)+4)}, v{vTmp} offset:{144+16*b}"]

    def stat_loads(self, ssm):
        n = 288 if ssm else 576
        pre = [f"s_mul_i32 s{sA}, s{sRg}, {1152 if ssm else 2240}", f"s_mul_i32 s{sC}, s{sWave}, {n}", f"s_add_u32 s{sA}, s{sA}, s{sC}",
               f"s_add_u32 s{sA}, s{sA}, {STATS if ssm else STATG}", f"s_add_u32 m0, s{sC}, {L_STAT}"]
        g = [pre + [I(f"buffer_load_dwordx4 v{vL16}, {S4(sWS)}, s{sA} offen sc1 lds", 'sstat')]]
        if ssm:
            g.append([f"s_lshl_b32 s{sA}, s{sCw}, 8", f"s_add_u32 s{sA}, s{sA}, {CSUM}", f"v_and_b32 v{vTmp}, 0xff, v{vL16}",
                      f"buffer_load_dwordx4 {V4(CS)}, v{vTmp}, {S4(sWS)}, s{sA} offen sc1"])
        return g

    def glu_tail(self, p):
        L = vLane; c = self.c
        pf = self.pf_rest + [x for i in range(4) for x in self.c_ops(i, c['rotc'])]
        CSR = 144
        T = 172
        self.stamp(p, 2)
        for i in range(16): p(f"v_mov_b32_dpp v{CSR+i}, v{acc(8,0)+i} row_newbcast:12 row_mask:0xf bank_mask:0xf")
        for b in range(9):
            ms = V2(GST + 2 * b); k1 = V2(GK1 + (b & ~1)); ks = b & 1
            pairs = [(acc(b, 2*pr) + 2*hh, acc(b, 2*pr+1) + 2*hh, CSR + 8*pr + 2*hh, CSR + 8*pr + 4 + 2*hh) for pr in range(2) for hh in range(2)]
            body = []
            for (g, u, cg, cu) in pairs:
                body.append(f"v_pk_fma_f32 {V2(g)}, {V2(cg)}, {ms}, {V2(g)} op_sel_hi:[1,0,1] neg_lo:[0,1,0] neg_hi:[0,1,0]")
            for (g, u, cg, cu) in pairs:
                body.append(f"v_pk_mul_f32 {V2(g)}, {V2(g)}, {k1} op_sel:[0,{ks}] op_sel_hi:[1,{ks}]")
            for (g, u, cg, cu) in pairs:
                body += [f"v_exp_f32 v{g}, v{g}", f"v_exp_f32 v{g+1}, v{g+1}",
                         f"v_pk_fma_f32 {V2(u)}, {V2(cu)}, {ms}, {V2(u)} op_sel_hi:[1,0,1] neg_lo:[0,1,0] neg_hi:[0,1,0]"]
            for (g, u, cg, cu) in pairs:
                body.append(f"v_pk_fma_f32 {V2(g)}, {V2(g)}, {ms}, {ms} op_sel:[0,1,1] op_sel_hi:[1,1,1]")
            for (g, u, cg, cu) in pairs:
                body += [f"v_rcp_f32 v{g}, v{g}", f"v_rcp_f32 v{g+1}, v{g+1}"]
            for (g, u, cg, cu) in pairs:
                body.append(f"v_pk_mul_f32 {V2(u)}, {V2(u)}, {V2(g)}")
            D = T + 4 * (b & 1)
            for i, (g, u, cg, cu) in enumerate(pairs):
                body.append(f"v_cvt_pk_bf16_f32 v{D+i}, v{u}, v{u+1}")
            F = {}
            n = c['g_epi']
            for i in range(n):
                if pf: F[(i + 1) * 40 // (n + 1)] = pf.pop(0)
            p.add(interleave(body, F))
            if b in (4, 8): p(f"s_add_u32 s{sHo}, s{sHo}, 4096")
            if b == 8: p("s_mov_b32 exec_lo, 0x0fff0fff\ns_mov_b32 exec_hi, 0x0fff0fff")
            p(f"buffer_store_dwordx4 {V4(D)}, v{GHA}, {S4(sWS)}, s{sHo} offen offset:{1024*(b & 3)} sc1", tag='hst')
            if b == 8: p("s_mov_b64 exec, -1")
        self.stamp(p, 3)
        self.publish(p, pf)

    def flag_store(self):
        return [f"v_mov_b32 v{vTmp}, s{sTag}", W('hst'), "s_mov_b64 exec, 1",
                f"buffer_store_dword v{vTmp}, v{vL16}, {S4(sWS)}, s{sFlag} offen sc1", "s_mov_b64 exec, -1"]
    def ldg(self): return f"buffer_load_dword v{vPoll}, v{vFG}, {S4(sWS)}, 0 offen sc1"

    def publish(self, p, pf):
        c = self.c
        def ops(n):
            for i in range(n):
                if pf: p.add(pf.pop(0))
        ops(c['pub'])
        p.add(self.flag_store())
        self.stamp(p, 4)
        ops(c['g_post'])
        self.stamp(p, 7)
        p(self.ldg())
        ops(c['g_rtt'])
        self.pf_rest = pf; self.late_flag = False

    def ssm_tail(self, p):
        L = vLane
        c = self.c
        pf = self.pf_rest + self.c_ops(0) + self.c_ops(1) + self.c_ops(2)
        self.stamp(p, 2)
        csr = lambda t: (V2(CS + 2 * (t & 1)), t >> 1)
        E = 160
        vS = 176
        rd = self.rsrd
        def step(T, n_re, n_im, e_re, e_im, p_re, p_im):
            sel = f"op_sel:[{T},0,0] op_sel_hi:[{T},1,1]"
            return [f"v_pk_fma_f32 {V2(n_re)}, {V2(LAM)}, {V2(e_re)}, {V2(p_re)} {sel}",
                    f"v_pk_fma_f32 {V2(n_im)}, {V2(LAM)}, {V2(e_im)}, {V2(p_im)} {sel}",
                    f"v_pk_fma_f32 {V2(n_re)}, {V2(LAM+2)}, {V2(e_im)}, {V2(n_re)} {sel} neg_lo:[1,0,0] neg_hi:[1,0,0]",
                    f"v_pk_fma_f32 {V2(n_im)}, {V2(LAM+2)}, {V2(e_re)}, {V2(n_im)} {sel}"]
        st = {}
        for b in range(9):
            body = []
            for hh in range(2):
                rs = self.rsreg(b) + 2 * hh; u = rs + 4
                for t in range(4):
                    a = acc(b, t) + 2 * hh
                    body.append(f"v_pk_mul_f32 {V2(a)}, {V2(a)}, {V2(rs)}")
                for t in range(4):
                    a = acc(b, t) + 2 * hh; cr, w = csr(t)
                    body.append(f"v_pk_fma_f32 {V2(a)}, {V2(u)}, {cr}, {V2(a)} op_sel:[0,{w},0] op_sel_hi:[1,{w},1] neg_lo:[0,1,0] neg_hi:[0,1,0]")
            if b + 2 < 9: body += rd(b + 2)
            for hh in range(2):
                j = 2 * b + hh
                for T in range(2):
                    pr, pi = acc(b, 2*T) + 2*hh, acc(b, 2*T+1) + 2*hh
                    if j == 0: st[T] = (pr, pi); continue
                    n = E + 8 * (j & 1) + 4 * T
                    body += step(T, n, n + 2, st[T][0], st[T][1], pr, pi); st[T] = (n, n + 2)
            F = {}
            for pos in (4, 20, 12)[:c['s_p1']]:
                if pf: F[pos] = pf.pop(0)
            p.add(interleave(body, F))
        e = E + 8
        p(f"v_swap_b32 v{e+1}, v{e+4}\nv_swap_b32 v{e+3}, v{e+6}")
        E0 = e; EL = e + 4; Wv = E
        p.add(self.cfma(EL, L18, E0, EL))
        p.add(self.cmul(Wv, F36, EL))
        p(f"v_permlane32_swap_b32 v{Wv}, v{Wv+2}\nv_permlane32_swap_b32 v{Wv+1}, v{Wv+3}")
        p(f"v_and_b32 v{vS}, 15, v{L}\nv_lshrrev_b32 v{vS+1}, 4, v{L}")
        p(f"v_pk_add_f32 {V2(Wv)}, {V2(Wv)}, {V2(Wv+2)}")
        p(f"v_lshlrev_b32 v{vS}, 4, v{vS}\nv_lshl_add_u32 v{vS+2}, v{vS+1}, 2, v{vS}")
        p(f"v_permlane16_swap_b32 v{Wv}, v{Wv+1}\nv_add_f32 v{Wv}, v{Wv}, v{Wv+1}")
        p(f"buffer_store_dword v{Wv}, v{vS+2}, {S4(sWS)}, s{sCo} offen sc1")
        self.stamp(p, 3)
        p("s_barrier")
        pf += self.c_ops(3)
        CO = 194
        body = [f"v_mov_b32 v{CO+4}, {OOB}", f"v_lshl_add_u32 v{CO+5}, v{vS+1}, 8, v{vS}", f"s_sub_u32 s{sCo}, s{sCo}, 4096", f"s_movk_i32 s{sK1}, 1024"]
        for n in range(4):
            body += [[f"s_sub_u32 s{sB}, {16 - 4*n}, s{sRg}", f"v_cmp_gt_i32 vcc, s{sB}, v{vS+1}", f"v_cndmask_b32 v{CO+n}, v{CO+5}, v{CO+4}, vcc"]]
        coefp = []
        for b in range(9):
            for hh in range(2):
                for T in range(2):
                    pr, pi = acc(b, 2*T) + 2*hh, acc(b, 2*T+1) + 2*hh
                    s2 = f"op_sel:[{T},0] op_sel_hi:[{T},1]"; s3 = f"op_sel:[{T},0,0] op_sel_hi:[{T},1,1]"
                    t1 = 160 + 4 * T
                    coefp += [f"v_pk_mul_f32 {V2(t1)}, {V2(COEF)}, {V2(pr)} {s2}", f"v_pk_mul_f32 {V2(t1+2)}, {V2(COEF+2)}, {V2(pr)} {s2}",
                             f"v_pk_fma_f32 {V2(pr)}, {V2(COEF+2)}, {V2(pi)}, {V2(t1)} {s3} neg_lo:[1,0,0] neg_hi:[1,0,0]",
                             f"v_pk_fma_f32 {V2(pi)}, {V2(COEF)}, {V2(pi)}, {V2(t1+2)} {s3}"]
        G0, G1, G2, G3 = 144, 148, 152, 156
        for i in range(4):
            body += [f"v_mov_b32 v{G0+i}, v{EL+i}", f"v_mov_b32 v{G1+i}, v{EL+i}"]
        for i in range(4): body.append(f"v_permlane16_swap_b32 v{G0+i}, v{G1+i}")
        for i in range(4):
            body += [f"v_mov_b32 v{G2+i}, v{G0+i}", f"v_mov_b32 v{G3+i}, v{G1+i}"]
        for i in range(4):
            body += [f"v_permlane32_swap_b32 v{G0+i}, v{G2+i}", f"v_permlane32_swap_b32 v{G1+i}, v{G3+i}"]
        body += self.cfma(G1, L36, G0, G1) + self.cfma(G2, L36, G1, G2)
        PRE = 180
        body += [f"v_mov_b32 v{G3+i}, 0" for i in range(4)]
        body += self.csel(G3, G3, G0, sQ1) + self.csel(G3, G3, G1, sQ2) + self.csel(G3, G3, G2, sQ3)
        body += self.cmul(PRE, COEF, G3)
        E0C = 184
        body += self.cmul(E0C, COEF, E0)
        P72, P108, P144, P288, P432 = 144, 148, 152, 156, 160
        G36, F144, L576 = 236, 240, 188
        body += self.cmul(P72, L36, L36) + self.cmul(P108, P72, L36) + self.cmul(P144, P72, P72) + self.cmul(P288, P144, P144)
        body += self.cmul(P432, P288, P144) + self.cmul(L576, P288, P288)
        body += self.cone(164)
        body += self.csel(F144, P432, P288, sQ1) + self.csel(F144, F144, P144, sQ2) + self.csel(F144, F144, 164, sQ3)
        body += self.csel(164, 164, L36, sQ1) + self.csel(164, 164, P72, sQ2) + self.csel(164, 164, P108, sQ3)
        body += self.cmul(G36, COEF, 164)
        AD = 200; ID = 192
        body += [f"v_bfe_u32 v164, v{L}, 2, 2", f"v_and_b32 v166, 3, v{L}", f"v_mov_b32 v169, {OOB}",
                 [f"s_mul_i32 s{sA}, s{sRg}, 9216", f"s_cmp_eq_u32 s{sRg}, 14", f"s_cselect_b32 s{sB}, 0, 4", f"v_cmp_lt_u32 vcc, s{sB}, v164",
                  f"v_add_u32 v165, s{sA}, v{vL16}", f"v_cndmask_b32 v{AD}, v165, v169, vcc"]]
        for j in range(1, 9):
            body += [[f"s_cmp_eq_u32 s{sRg}, 14", f"s_cselect_b32 s{sA}, {64 if j & 3 else 1024 - 192}, s{sK1}", f"v_add_u32 v{AD+j}, s{sA}, v{AD+j-1}"]]
        body += [f"v_and_b32 v168, 1, v{L}", f"v_lshlrev_b32 v168, 4, v168", f"v_mov_b32 v169, 0x3f80", f"v_lshlrev_b32 v168, v168, v169",
                 f"v_cmp_eq_u32 vcc, v164, v{vS+1}", f"v_cndmask_b32 v168, 0, v168, vcc", f"v_cmp_gt_u32 vcc, 2, v166",
                 f"v_cndmask_b32 v{ID}, 0, v168, vcc", f"v_sub_u32 v{ID+1}, v168, v{ID}"]
        body += coefp
        CL = 144
        lb = [f"buffer_load_dwordx4 {V4(CL+4*n)}, v{CO+n}, {S4(sWS)}, s{sCo} offen offset:{1024*n} sc1" for n in range(4)]
        F = {}
        pos = 4; cut = len(body) - c['s_lb']
        while pf and pos < cut - c['s_gap']: F[pos] = pf.pop(0); pos += c['s_sh']
        F[cut - 1] = lb
        for i in range(c['s_al']):
            if pf: F[cut + 6 + i * (c['s_lb'] - 10) // c['s_al']] = pf.pop(0)
        p.add(interleave(body, F))
        lp = self.lab('lb'); ok = self.lab('lbok')
        chk = [f"v_max3_u32 v164, v{CL}, v{CL+1}, v{CL+2}"] + [f"v_max3_u32 v164, v164, v{CL+i}, v{CL+i+1}" for i in range(3, 15, 2)]
        chk += [f"v_max_u32 v164, v164, v{CL+15}", "v_cmp_eq_u32 vcc, -1, v164"]
        p.add(chk); p(f"s_cbranch_vccz {ok}")
        slow = [f"s_mov_b32 s{sSpin}, 0x10000", f"{lp}:"] + lb + ["s_waitcnt vmcnt(0)"] + chk + \
               [f"s_sub_u32 s{sSpin}, s{sSpin}, 1", f"s_cmp_eq_u32 s{sSpin}, 0", f"s_cbranch_scc1 {ok}", f"s_cbranch_vccnz {lp}"]
        p.add([self.optI(x) for x in slow])
        p(f"{ok}:")
        self.stamp(p, 5)
        for n in range(1, 4): p.add(self.cfma(CL + 4*n, L576, CL + 4*(n-1), CL + 4*n))
        p.add(self.cmul(CL, F144, CL + 12))
        for sw in ("v_permlane32_swap_b32", "v_permlane16_swap_b32"):
            p(f"v_mov_b64 {V2(CL+4)}, {V2(CL)}\nv_mov_b64 {V2(CL+6)}, {V2(CL+2)}")
            for i in range(4): p(f"{sw} v{CL+i}, v{CL+4+i}")
            p(f"v_pk_add_f32 {V2(CL)}, {V2(CL)}, {V2(CL+4)}\nv_pk_add_f32 {V2(CL+2)}, {V2(CL+2)}, {V2(CL+6)}")
        p.add(self.cfma(PRE, G36, CL, PRE))
        p.add(self.cfma(E0C, L18, PRE, E0C))
        p(f"v_swap_b32 v{PRE+1}, v{PRE+4}\nv_swap_b32 v{PRE+3}, v{PRE+6}")
        st = {0: (PRE, PRE + 2), 1: (PRE + 4, PRE + 6)}
        PK = 144; MO = 152; SD = 168
        def dsrc(n, t): return (acc(n, t), acc(n, t) + 2) if n < 9 else (acc(n - 9, t) + 1, acc(n - 9, t) + 3)
        def stageA(j):
            o = []
            for t in range(4):
                ng = '-' if t & 1 else ''
                for k in range(2):
                    a, b_ = dsrc(2*j + k, t)
                    o.append(f"v_cvt_pk_bf16_f32 v{PK+2*t+k}, {ng}v{a}, {ng}v{b_}")
            for t in range(4):
                o.append(f"v_mfma_f32_16x16x16_bf16 {V4(MO+4*t)}, {V2(PK+2*t)}, {V2(ID)}, 0")
            return o
        def stageB(j):
            o = []
            for m in range(2):
                for T in range(2):
                    s_ = MO + 4 * (2*T + m)
                    o += [f"v_cvt_pk_bf16_f32 v{SD+4*m+2*T}, v{s_}, v{s_+1}", f"v_cvt_pk_bf16_f32 v{SD+4*m+2*T+1}, v{s_+2}, v{s_+3}"]
                o.append(I(f"buffer_store_dwordx4 {V4(SD+4*m)}, v{AD+j}, {S4(sWS)}, s{sHo if m == 0 else sC} offen sc1", 'hst'))
            return o
        p(f"s_add_u32 s{sC}, s{sHo}, {20*HS}")
        done = {1: [0], 3: [1], 5: [2], 7: [3], 2: [5], 4: [6], 6: [7], 8: [4, 8]}
        pend = None
        for b in range(9):
            for hh in range(2):
                for T in range(2):
                    pr, pi = acc(b, 2*T) + 2*hh, acc(b, 2*T+1) + 2*hh
                    p.add(step(T, pr, pi, st[T][0], st[T][1], pr, pi)); st[T] = (pr, pi)
            for _ in range(c['s_p2']):
                if pf: p.add(pf.pop(0))
            if b == c['s_pb']: p(self.ldg())
            for j in done.get(b, []):
                if pend is not None: p.add(stageB(pend))
                p.add(stageA(j)); pend = j
        p.add(stageB(pend))
        self.stamp(p, 6)
        self.pf_rest = pf; self.late_flag = True

    def flag_offsets(self, p, reg, div, nper, first_sgpr_expr, nl, base):
        m = {140: 1873, 144: 1821}[div]
        p(f"s_lshl_b32 s{sA}, s{sRt}, 6\ns_add_u32 s{sB}, s{sA}, 63\ns_mul_i32 s{sA}, s{sA}, {m}\ns_lshr_b32 s{sA}, s{sA}, 18\ns_mul_i32 s{sB}, s{sB}, {m}\ns_lshr_b32 s{sB}, s{sB}, 18")
        p(f"s_mul_i32 s{sA}, s{sA}, {nper}\ns_mul_i32 s{sB}, s{sB}, {nper}\ns_sub_u32 s{sB}, s{sB}, {nl}")
        p(first_sgpr_expr)
        p(f"v_min_u32 v0, {2*nl-1}, v{vLane}\nv_mov_b32 v1, s{sA}\nv_mov_b32 v2, s{sB}\nv_cmp_gt_u32 vcc, {nl}, v0\nv_cndmask_b32 v1, v2, v1, vcc")
        p(f"v_add3_u32 v0, v0, v1, s{sC}\nv_lshlrev_b32 v0, 6, v0\nv_add_u32 v{reg}, {base}, v0")

    def p2_addr(self):
        L = vLane; a, b_, d = vT2, vT2 + 1, vT2 + 2
        o = [f"s_lshl_b32 s{sA}, s{sRt}, 2", f"s_add_u32 s{sA}, s{sA}, s{sWave}", f"s_xor_b32 s{sA}, s{sA}, s{sPar}", f"s_mul_i32 s{sB}, s{sA}, 57", f"s_lshr_b32 s{sB}, s{sB}, 9",
             f"s_mul_i32 s{sB}, s{sB}, 9", f"s_sub_u32 s{sB}, s{sA}, s{sB}", f"s_mul_i32 s{sB}, s{sB}, 12",
             [f"s_cmp_lt_u32 s{sA}, 126", f"s_cselect_b32 s{sB}, s{sB}, 0", f"s_cselect_b32 s71, 32, 0"],
             f"s_lshl_b32 s{sA}, s{sA}, 4", f"s_movk_i32 s72, 1280",
             f"v_lshrrev_b32 v{a}, 2, v{L}", f"v_and_b32 v{b_}, 3, v{L}", f"v_add_u32 v{d}, s{sA}, v{a}", f"v_lshlrev_b32 v{vSR}, 4, v{d}",
             f"v_lshrrev_b32 v{vOO}, 4, v{L}", f"v_mad_u32_u24 v{d}, v{vOO}, s71, v{d}", f"v_subrev_u32 v{d}, s{sB}, v{d}",
             f"s_mul_i32 s{sB}, s{sCt}, 160", f"v_lshlrev_b32 v{vBI}, 3, v{b_}", f"v_add_u32 v{vOO}, s{sB}, v{vBI}", f"v_mad_u32_u24 v{vOO}, v{d}, s72, v{vOO}",
             f"v_min_u32 v{d}, 39, v{L}", f"v_lshl_add_u32 v{vDr}, v{d}, 2, s{sB}"]
        o += [f"v_lshl_add_u32 v{d}, v{b_}, 2, v{a}", f"v_and_b32 v{d}, 15, v{d}", f"v_lshlrev_b32 v{d}, 4, v{d}", f"v_lshl_add_u32 v{d}, v{b_}, 8, v{d}"]
        for t in range(4):
            o += [f"s_sub_u32 s{sA}, s{sWave}, {1 + t}", f"s_and_b32 s{sA}, s{sA}, 3", f"s_mul_i32 s{sA}, s{sA}, 10240", f"v_add_u32 v{vRA[t]}, s{sA}, v{d}"]
        o += [
              f"v_and_b32 v{a}, 15, v{L}", f"v_lshrrev_b32 v{b_}, 4, v{L}",
              f"v_lshl_add_u32 v{d}, v{b_}, 2, v{a}", f"v_and_b32 v{d}, 15, v{d}", f"v_lshlrev_b32 v{d}, 4, v{d}", f"v_lshl_add_u32 v{d}, v{b_}, 8, v{d}",
              f"v_add_u32 v{vWA}, s{sCslot}, v{d}"]
        return o

    def phase2(self, p):
        L = vLane; c = self.c
        AR = 80; NR = 16; LOOK = c['look']
        P = (0, 20); SUM = (40, 60); G = 0; XF = 20
        CR = (144, 164, 184, 216)
        YA = (120, 140)
        def cbase(i): return [f"v_add_u32 v{vCR0}, {self.crow(i)}, v{vCpat}", f"v_xor_b32 v{vCR1}, 64, v{vCR0}"]
        def cread(y, nb):
            d = V4(CR[y] + 4 * nb) if y < 4 else A4(20 * (y - 4) + 4 * nb)
            return I(f"ds_read_b128 {d}, v{vCR1 if y & 1 else vCR0} offset:{2048*nb}", f'c{y >> 1}r')
        lds_ = f"buffer_load_dword v{vPoll}, v{vFS}, {S4(sWS)}, 0 offen sc1"
        pf = self.pf_rest
        if c['verbose']: print("ssm" if self.late_flag else "glu", "prefetch ops left at phase-2 entry:", len(pf))
        while pf and (not isinstance(pf[0][-1], I) or pf[0][-1].tag in ('c0', 'c1') or len(pf) > c['maxbg']): p.add(pf.pop(0))
        p.add(self.poll_check(self.ldg(), f"s{sTag}", vPoll))
        self.stamp(p, 8)
        steps = [(ph, t, 12 if ph == 0 else 10) for ph in range(2) for t in range(4)]
        frag = [(ph, t, k) for (ph, t, n) in steps for k in range(n)]
        def aload(a):
            ph, t, k = frag[a]; pre = []
            if k == 0:
                if t == 0:
                    pre += [f"s_mul_i32 s{sD}, s{sWave}, {(10 if ph else 12)*HS}", f"s_lshl_b32 s{sC}, s{sRt}, 12", f"s_add_u32 s{sD}, s{sD}, s{sC}",
                            f"s_add_u32 s{sD}, s{sD}, {H + (48*HS if ph else 0)}"]
                pre += [f"s_add_u32 s{sO2}, s{sWave}, {1 + t}", f"s_and_b32 s{sO2}, s{sO2}, 3"] + ([f"s_xor_b32 s{sO2}, s{sO2}, s{sPar}"] if c['rot3'] else []) + [f"s_lshl_b32 s{sO2}, s{sO2}, 10", f"s_add_u32 s{sO2}, s{sO2}, s{sD}"]
            else:
                pre = [f"s_add_u32 s{sO2}, s{sO2}, s{sK2}"]
            return pre + [f"buffer_load_dwordx4 {V4(AR + 4*(a % NR))}, v{vL16}, {S4(sWS)}, s{sO2} offen {('', 'sc1', 'sc0 sc1', 'nt sc1')[c['aflag']]}"]
        p(f"s_mov_b32 s{sK2}, {HS}\ns_mov_b32 s{sK1}, {NLOG2E}\ns_and_b32 s{sPar}, s{sCt}, {c['rot3']}")
        for a in range(LOOK): p.add(aload(a))
        for _ in range(c['lead_bg']):
            if pf: p.add(pf.pop(0))
        p.add(self.p2_addr()); p.add(cbase(0))
        if self.late_flag: p.add(self.flag_store())
        p.wait('c0')
        for y in range(2):
            for nb in range(5): p.add([cread(y, nb)])
        mf = []
        for a, (ph, t, k) in enumerate(frag):
            for nb in range(5):
                if ph == 0: d = V4(P[t & 1] + 4*nb); w = A4(20*k + 4*nb)
                else: d = A4(YA[t & 1] + 4*nb); w = V4(CR[k] + 4*nb) if k < 4 else A4(20*(k - 4) + 4*nb)
                mf.append(f"v_mfma_f32_16x16x32_bf16 {d}, {w}, {V4(AR + 4*(a % NR))}, {'0' if k == 0 else d}")
        FL = Filler(len(mf), reserved=range(4, len(mf), 5))
        g0 = {}
        for a, (ph, t, k) in enumerate(frag):
            if k == 0: g0[(ph, t)] = 5 * a
            if c['stamps'] == 3 and k == 0:
                q = Prog(); self.stamp(q, 20 + 4 * ph + t); FL.at(5 * a, q.L)
            if c['stamps'] == 4 and 0 <= a - c['sfrom'] < 12:
                q = Prog(); self.stamp(q, 20 + a - c['sfrom']); FL.at(5 * a, q.L)
            j = a + LOOK
            if j == 48: FL.at(5 * a, self.poll_check(lds_, f"s{sTag}", vPoll))
            if j == 48 - c['spoll']: FL.at(5 * a + 3, [lds_])
            if j < 88 and not c['x_noa']: FL.at(5 * a + 1, aload(j))
        def wr(ph, t, nb):
            src = A4(YA[t & 1] + 4*nb) if ph else V4(P[t & 1] + 4*nb)
            return I(f"ds_write_b128 v{vWA}, {src} offset:{40960 + (t & 1)*5120 + nb*1024}", 'xw')
        def rd(t, n, dst): return f"ds_read_b128 {V4(dst + 4*n)}, v{vRA[t]} offset:{40960 + (t & 1)*5120 + n*1024}"
        addq = {}
        for (ph, t, n) in steps[1:]:
            pp, pt = (ph, t - 1) if t else (0, 3)
            S, IN = SUM[pp], SUM[1 - pp]; z = g0[(ph, t)]
            if c['w64'] and ph == 0:
                for k_, g in enumerate((2, 3, 5, 7, 8, 10, 12, 13, 15, 17)):
                    FL.at(z + g, I(f"ds_write_b64 v{vWA}, {V2(P[pt & 1] + 2*k_)} offset:{40960 + (pt & 1)*5120 + (k_ >> 1)*1024 + (k_ & 1)*8}", 'xw'))
            else:
                for nb, g in enumerate((3, 7, 10, 13, 17)): FL.at(z + g, wr(pp, pt, nb))
            rg = (23, 24, 25, 27, 28) if pt < 3 else (8, 12, 14, 18, 19)
            FL.at(z + (22 if pt < 3 else 45), [W('xw', 'xr'), "s_barrier"])
            for n_, g in enumerate(rg): FL.at(z + g, I(rd(pt, n_, S if pt == 0 else IN), 'xr'))
            addq[(ph, t)] = (z + rg[0] + 9, [f"v_add_f32 v{S+i}, v{S+i}, v{IN+i}" for i in range(20)] if pt else [])
        c4 = self.c_ops(4); c4[0] = [W('c0r')] + c4[0]
        bg = pf + c4
        if c['x_nobg']: bg = []
        g = 0
        for i, x in enumerate(bg): g = FL.fit(x, max(g + 1, 5 * (1 + i * 33 // len(bg)) + 3))
        assert g < g0[(0, 3)]
        g = FL.stream([cbase(1) + [W('c1')]] + [cread(y, nb) for y in (2, 3) for nb in range(5)], 2, 56, step=1)
        assert g < g0[(0, 1)] + 3
        for key in ((0, 2), (0, 3)):
            g = FL.stream(addq[key][1], addq[key][0]); assert g < g0[key] + 58
        g = g0[(0, 3)] + 5
        for y in range(4, 10):
            if y % 2 == 0: g = FL.fit(cbase(y >> 1) + [W(f'c{y >> 1}')], g) + 1
            g = FL.stream([cread(y, nb) for nb in range(5)], max(g, g0[(0, 3)] + 5 * (y - 3)), g0[(1, 0)] + 5 * y - 8, step=1) + 1
        S = SUM[0]
        if not c['x_nofin'] & 1: FL.stream([f"global_load_dword v{vDr}, v{vDr}, {S2(pDsk)}", f"buffer_load_dwordx4 {V4(vSR)}, v{vSR}, {S4(sWS)}, 0 offen sc1"], g0[(1, 1)] + 30, None, step=5)
        g = FL.stream(addq[(1, 0)][1], addq[(1, 0)][0]); assert g < g0[(1, 1)] + 22
        ch = [[f"v_mul_f32 v{XF+e}, s{sK1}, v{S+e}", f"v_exp_f32 v{XF+e}, v{XF+e}", f"v_add_f32 v{XF+e}, 1.0, v{XF+e}",
               f"v_rcp_f32 v{XF+e}, v{XF+e}", f"v_mul_f32 v{G+e}, v{S+e}, v{XF+e}"] for e in range(20)]
        end = FL.dag(ch, g + 1, g0[(1, 2)] + 21)
        gfin = 0
        for n_ in range(5 if not c['x_nofin'] & 2 else 0):
            gfin = FL.fit(f"buffer_load_dwordx2 {V2(XF+4*n_+2)}, v{vOO}, {S4(sX)}, 0 offen offset:{32*n_}", max(gfin + 4, max(end[4*n_:4*n_+4])) + 1, max(gfin + 5, max(end[4*n_:4*n_+4]) + 5))
        g = FL.stream(addq[(1, 2)][1], addq[(1, 2)][0]); assert g < g0[(1, 3)] + 22
        S = SUM[1]; T = vT2
        a0 = 88 - NR
        tq = [f"v_mul_f32 v{vSR+1}, v{vSR}, v{vSR+2}"]
        def unp(R): return [f"v_lshlrev_b32 v{R}, 16, v{R+2}", f"v_and_b32 v{R+1}, 0xffff0000, v{R+2}", f"v_lshlrev_b32 v{R+2}, 16, v{R+3}", f"v_and_b32 v{R+3}, 0xffff0000, v{R+3}"]
        gb = 0
        for n_ in range(5):
            Dn = AR + 4 * ((a0 + n_) % NR)
            gb = FL.stream([f"ds_bpermute_b32 v{Dn + 2 + k}, v{vBI}, v{vDr} offset:{32*n_ + 4*k}" for k in range(2)], max(gb + 1, 5 * (a0 + n_ + 1)), None, step=1)
            tq += unp(Dn)
        for n_ in range(5):
            Dn = AR + 4 * ((a0 + n_) % NR)
            tq += unp(XF + 4*n_)
            tq += [f"v_fma_f32 v{T+k}, v{XF+4*n_+k}, v{vSR+2}, -v{vSR+1}" for k in range(4)]
            tq += [f"v_fmac_f32 v{S+4*n_+k}, v{T+k}, v{Dn+k}" for k in range(4)]
        tq.append(f"v_lshlrev_b32 v{vOO}, 1, v{vOO}")
        g = max(gb + 1, gfin + 1)
        while tq and g < len(mf) - 1:
            if FL.time(g, FL.norm(tq[0])) <= 16: FL.at(g, tq.pop(0))
            else: g += 1
        if c['verbose']: print("skip-term instructions left for the tail:", len(tq), "overflow", sum(max(0, FL.time(g_) - 16) for g_ in range(len(mf))))
        p.add(interleave(mf, FL.F))
        self.stamp(p, 9)
        IN = SUM[0]; I3 = CR[0]
        for n_ in range(5):
            r = 4 * n_
            tq += [f"v_pk_add_f32 {V2(S+r+k)}, {V2(S+r+k)}, {V2(IN+r+k)}" for k in (0, 2)]
        for n_ in range(5):
            r = 4 * n_
            tq += [f"v_pk_fma_f32 {V2(XF+r+k)}, {V2(S+r+k)}, {V2(G+r+k)}, {V2(XF+r+k)}" for k in (0, 2)]
        k = (len(tq) + 6) // 7
        for nb in range(5):
            p.add(tq[:k]); tq = tq[k:]
            p.add([wr(1, 3, nb), rd(3, nb, I3)])
        p.add(tq)
        for n_ in range(5):
            r = 4 * n_
            for k in (0, 2): p(f"v_pk_fma_f32 {V2(XF+r+k)}, {V2(I3+r+k)}, {V2(G+r+k)}, {V2(XF+r+k)}")
            p(f"buffer_store_dwordx4 {V4(XF+r)}, v{vOO}, {S4(sU)}, 0 offen offset:{64*n_} {('', 'nt', 'sc1', 'sc0 sc1')[c['outmode']]}")
        self.stamp(p, 11)
        self.stamp_flush(p)
        if self.c['endspin']:
            l = self.lab('es')
            if self.c['probe'] < 0 and not self.c['chase'] and not self.c['bw']: p("s_mov_b32 s101, 0")
            p(f"s_add_u32 s101, s101, {self.c['endspin']*100}\n{l}:\ns_memrealtime {S2(sSt)}\ns_waitcnt lgkmcnt(0)\ns_sub_u32 s{sSt}, s{sSt}, s100\ns_cmp_lt_u32 s{sSt}, s101\ns_cbranch_scc1 {l}")
        p("s_endpgm")

    def build(self, code_bytes):
        paths = []
        for ssm in (0, 1):
            p = Prog()
            self.entry(p, code_bytes)
            p("L_mark:")
            self.prologue(p, ssm)
            self.mainloop(p, ssm)
            (self.ssm_tail if ssm else self.glu_tail)(p)
            self.phase2(p)
            Lf = finalize(p)
            k = [i for i, x in enumerate(Lf) if x.text == 'L_mark:'][0]
            k2 = [i for i, x in enumerate(Lf) if x.text == 'L_split:'][0]
            paths.append((Lf[:k], Lf[k+1:k2], self.with_pads(Lf[k2+1:], 'S' if ssm else 'G')))
        assert text_of(paths[0][0]) == text_of(paths[1][0])
        body = text_of(paths[0][0]) + text_of(paths[self.c['sfirst']][1]) + "L_second:\n" + text_of(paths[1 - self.c['sfirst']][1]) + "L_end:\n    s_endpgm\n"
        for nm, pth in zip("GS", paths):
            body += f".p2align 12\nL_main{nm}:\n" + text_of(pth[2])
        return body

    def with_pads(self, L, nm):
        if not self.c['pads']: return L
        sz = inst_sizes(L); out = []; off = 0; k = 0
        for i, n in zip(L, sz):
            if off >= 4096 * k and i.kind != 'label':
                out += [I(f"L_pad{nm}{k}:"), k]; off += 4; k += 1
            out.append(i); off += n
        assert k >= 4
        return [I(f"s_cbranch_execz " + (f"L_pad{nm}{x+4}" if x + 4 < k else f"L_ret{nm}")) if isinstance(x, int) else x for x in out]

def inst_sizes(L):
    import subprocess, tempfile
    with tempfile.TemporaryDirectory() as d:
        open(d + "/k.s", "w").write('.amdgcn_target "amdgcn-amd-amdhsa--gfx950"\n.text\n' + text_of(L))
        r = subprocess.run(["clang", "-x", "assembler", "-target", "amdgcn-amd-amdhsa", "-mcpu=gfx950", "-c", d + "/k.s", "-o", d + "/k.o"], capture_output=True, text=True)
        assert r.returncode == 0, r.stderr[:3000]
        r = subprocess.run(["llvm-objdump", "-d", "-z", "--mcpu=gfx950", d + "/k.o"], capture_output=True, text=True)
    enc = [4 * len(re.findall(r'\b[0-9A-F]{8}\b', ln.split('//')[1].split(':', 1)[1].split('<')[0])) for ln in r.stdout.split('\n') if '//' in ln]
    n = sum(1 for i in L if i.kind != 'label'); assert len(enc) == n, (len(enc), n)
    it = iter(enc)
    return [0 if i.kind == 'label' else next(it) for i in L]

HEADER = open(os.path.join(os.path.dirname(os.path.abspath(__file__)), "..", "cdna_kernels", NAME + ".s.ref")).read().split("; Override launch")[0] \
    if os.path.exists(os.path.join(os.path.dirname(os.path.abspath(__file__)), "..", "cdna_kernels", NAME + ".s.ref")) else ""

def make(cfg, code_bytes=61440):
    body = Gen(cfg).build(code_bytes)
    return HEADER + f"""; One persistent launch: 256 workgroups x 4 waves, one per CU (generated by gen/k4.py).
; @launch grid=(256,1,1) block=(256,1,1) lds=163840
.amdgcn_target "amdgcn-amd-amdhsa--gfx950"
.text
.globl {KERN}
.p2align 8
.type {KERN},@function
{KERN}:
{body}L_code_end:
.section .rodata,"a"
.p2align 6
.amdhsa_kernel {KERN}
  .amdhsa_next_free_vgpr 512
  .amdhsa_next_free_sgpr 102
  .amdhsa_accum_offset 256
  .amdhsa_group_segment_fixed_size 0
  .amdhsa_kernarg_size 128
  .amdhsa_user_sgpr_count 2
  .amdhsa_user_sgpr_kernarg_segment_ptr 1
  .amdhsa_system_sgpr_workgroup_id_x 1
  .amdhsa_float_denorm_mode_32 3
.end_amdhsa_kernel
"""

def code_size(txt):
    import subprocess, tempfile
    with tempfile.TemporaryDirectory() as d:
        open(d + "/k.s", "w").write(txt)
        r = subprocess.run(["clang", "-x", "assembler", "-target", "amdgcn-amd-amdhsa", "-mcpu=gfx950", "-c", d + "/k.s", "-o", d + "/k.o"], capture_output=True, text=True)
        assert r.returncode == 0, r.stderr[:3000]
        r = subprocess.run(["llvm-readelf", "-S", d + "/k.o"], capture_output=True, text=True)
        for ln in r.stdout.split('\n'):
            if ' .text' in ln:
                f = ln.split(']')[1].split()
                return int(f[4], 16)

if __name__ == "__main__":
    cfg = dict(CFG)
    out = None
    for a in sys.argv[1:]:
        if '=' in a:
            k, v = a.split('='); cfg[k] = int(v)
        else: out = a
    n = code_size(make(cfg))
    txt = make(cfg, n)
    n2 = code_size(txt)
    assert abs(n2 - n) <= 64, (n, n2)
    open(out or "k.s", "w").write(txt)
    print("code bytes", n2, "source bytes", len(txt))
```

```python
import sys, os, re
sys.path.insert(0, os.path.dirname(os.path.abspath(__file__)))
from fw import *

NAME = "recurrent_scan__ssm_conv_s5__glu_gated_glu__prompt"
KERN = NAME + "_kernel"

CFG = dict(
    rot=4,
    smask=0x4522,
    mapd=1, mapy=1, spec=0,
    sfirst=0, head=3, pre1=6, pads=1,
    poll_stage=3,
    cstage=2,
    wd_mid=4, wd_late=18,
    g_epi=1, s_p1=1, s_sh=7, s_gap=30, s_lb=144, s_al=0,
    look=12, w64=1, prewait=1, nap=1, pbar=1, xnap=2, dpoll=1, dchk=30, xsp=2, xflag=10, xpoll=14, xchk=8, ypoll=5,
    outmode=1, warm=1, stlate=0, fullf=1,
    stamps=0, cyc=0, endspin=0, probe=-1, verbose=0, sfrom=0,
    x_nodma=0, x_nobar=0, x_noa=0, x_nolb=0, x_eflag=0, x_efat=8, pollfirst=0, cstg=1, predr=0,
)

STATG = 0
CSUM = STATG + 2368 * 16
ARR = CSUM + 320 * 16
EPOCH = ARR + 4096
STATS = EPOCH + 256
FS, FSH = 64, 6
FLAGG = (STATS + 18 * 1152 + 255) // 256 * 256
FLAGS = FLAGG + 16 * 48 * FS
EXF = FLAGS + 16 * 20 * FS
CARRY = EXF + 1024 * 128
EX = (CARRY + 320 * 256 + 4095) // 4096 * 4096
WD = EX + 1024 * 5120
HS = 140 * 1024
H = WD + 8 * 52 * 5 * 1024
WS_END = H + 88 * HS
STAMP = WS_END
WS_SIZE = WS_END + 1024 * 256
OOB = 0x7ff00000
PADOFF = 0

STG = 51200; XIMG = 18432
SPARE = 3 * STG
L_WDST = SPARE
L_DUMMY = SPARE + 8192
L_STAT = SPARE

pX, pLre, pLim, pBre, pBim, pCre, pCim, pLdt = 4, 6, 8, 10, 12, 14, 16, 18
pDsk, pBx, pWg, pWu, pWd, pOut, pDbg, pWs = 20, 22, 24, 26, 28, 30, 32, 34
sX, sW0, sW1, sWS, sT, sU = 36, 40, 44, 48, 52, 56
sWave, sCg, sRg, sRt, sCt = 60, 61, 62, 63, 64
sOffX, sOffW, sChunk, sM0X, sM0W = 65, 66, 67, 68, 69
sM0H = 70
sA, sB, sC, sD = 73, 74, 75, 76
sK2, sO2, sCo, sSpin = 77, 78, 79, 80
sCslot = 81
sTag = 82
sPar = 83
sMask = 84
sQ1, sQ2, sQ3 = 86, 88, 90
sSt = 92
sHo = 94
sFlag = 95
sCcol = 96
sRole = 97
sEx, sExF, sOk = 72, 65, 66
sCw = 3
sK1 = 70
sI = 71
sKC = 67

def S4(r): return f"s[{r}:{r+3}]"
def S2(r): return f"s[{r}:{r+1}]"
def V4(r): return f"v[{r}:{r+3}]"
def V2(r): return f"v[{r}:{r+1}]"
def A4(r): return f"a[{r}:{r+3}]"

def acc(b, t): return 16 * b + 4 * t
XR = 144; NXR = 6
def xr(B): return XR + 4 * (B % NXR)
def wb(par, t): return 168 + 16 * par + 4 * t
vXD = 200; vWDm = 205
vXR0, vXR1, vWR0, vWR1 = 209, 210, 211, 212
vL16, vL16b, vLane = 213, 214, 215
LAM, COEF, L18, L36, F36, CS = 216, 220, 224, 228, 232, 244
GST, GK1, GHA = 216, 234, 244
vJ0 = 244
AR, NR = 0, 16
P2, SUM, OTH, XF, TT, GV = (64, 84), (104, 124), 144, 164, 184, 228
vWA, vOO, vBI, vDr = 204, 205, 206, 207
vT2, vSR, vRA = 216, 220, (224, 225, 226, 227)
vFG, vCpat, vFS = 248, 249, 250
vPoll, vCD0, vCD1, vTmp = 252, 253, 254, 255

LOG2E = 0x3fb8aa3b
NLOG2E = 0xbfb8aa3b
INV2PI = 0x3e22f983
INV640 = 0x3acccccd
EPS = 0x3727c5ac

def p1_tile(i, smask):
    cg, rg = (i >> 3, i & 7) if i < 136 else (16 - (i - 136) // 7, 8 + (i - 136) % 7)
    if i == 255: cg, rg = 0, 15
    return (smask >> cg) & 1, cg, rg

def role_masks(c):
    out = []
    for x in range(8):
        t = [p1_tile(32 * x + j, c['smask']) for j in range(32)]
        if c['spec']:
            y = (c['spec'] >> x) & 1; assert y or not any(a[0] for a in t)
            out.append(0xffffffff if y else 0); continue
        ys = [j for j in range(32) if t[j][0]]; assert len(ys) <= 16
        rest = sorted((j for j in range(32) if not t[j][0]), key=lambda j: (-(t[j][2] >= 14), j))
        out.append(sum(1 << j for j in ys + rest[:16 - len(ys)]))
    assert sum(bin(m).count('1') for m in out) == 128
    return out

class Seq:
    def __init__(self): self.items = []
    def __call__(self, text, tag=None): self.items.append([I(x.strip(), tag) for x in text.strip().split('\n')])
    def add(self, l): self.items.append(list(l))

class Gen:
    def __init__(self, cfg):
        self.c = cfg
        self.nlab = 0
        self.nstamp = 0
        self.light = {}

    def lab(self, s):
        self.nlab += 1
        return f"L_{s}_{self.nlab}"

    def stamp(self, p, idx):
        if self.c['probe'] == idx:
            p(f"s_memrealtime {S2(sSt)}\ns_waitcnt lgkmcnt(0)\ns_sub_u32 s101, s{sSt}, s100")
        if not self.c['stamps']: return
        if idx >= 20:
            r = [4, 6, 8, 10, 12, 14, 16, 18, 22, 24, 26, 28, 30, 32, 34][idx - 20]
            i = I(f"{'s_memtime' if self.c['cyc'] else 's_memrealtime'} {S2(r)}"); i.kind = 'ctl'; i.wr = set(); i.rd = set()
            p.L.append(i); self.light[idx] = r
            return
        p(f"{'s_memtime' if (idx >= 20 and self.c['cyc']) else 's_memrealtime'} {S2(sSt)}")
        if idx < 20: p(f"s_memtime s[34:35]" if idx else "s_memtime s[90:91]")
        p("s_waitcnt lgkmcnt(0)")
        p(f"v_writelane_b32 v251, s{sSt}, {idx}")
        if idx < 20: p(f"v_writelane_b32 v251, {'s34' if idx else 's90'}, {40 + idx}")

    def stamp_flush(self, p):
        if not self.c['stamps']: return
        p(f"s_lshl_b32 s{sA}, s2, 2\ns_add_u32 s{sA}, s{sA}, s{sWave}\ns_lshl_b32 s{sA}, s{sA}, 8\ns_add_u32 s{sA}, s{sA}, {STAMP}")
        p(f"v_writelane_b32 v251, s100, 39")
        p("s_waitcnt lgkmcnt(0)")
        for k_, r_ in self.light.items(): p(f"v_writelane_b32 v251, s{r_}, {k_}")
        p(f"v_lshlrev_b32 v250, 2, v{vLane}")
        p(f"buffer_store_dword v251, v250, {S4(sWS)}, s{sA} offen")

    def cmul(self, d, a, b):
        return [f"v_pk_mul_f32 {V2(d)}, {V2(a)}, {V2(b)}",
                f"v_pk_mul_f32 {V2(d+2)}, {V2(a)}, {V2(b+2)}",
                f"v_pk_fma_f32 {V2(d)}, {V2(a+2)}, {V2(b+2)}, {V2(d)} neg_lo:[1,0,0] neg_hi:[1,0,0]",
                f"v_pk_fma_f32 {V2(d+2)}, {V2(a+2)}, {V2(b)}, {V2(d+2)}"]
    def cfma(self, d, a, b, c):
        return [f"v_pk_fma_f32 {V2(d)}, {V2(a)}, {V2(b)}, {V2(c)}",
                f"v_pk_fma_f32 {V2(d+2)}, {V2(a)}, {V2(b+2)}, {V2(c+2)}",
                f"v_pk_fma_f32 {V2(d)}, {V2(a+2)}, {V2(b+2)}, {V2(d)} neg_lo:[1,0,0] neg_hi:[1,0,0]",
                f"v_pk_fma_f32 {V2(d+2)}, {V2(a+2)}, {V2(b)}, {V2(d+2)}"]
    def csel(self, d, f, t, mask):
        return [f"v_cndmask_b32 v{d+i}, v{f+i}, v{t+i}, {S2(mask)}" for i in range(4)]
    def cone(self, d):
        return [f"v_mov_b32 v{d}, 1.0", f"v_mov_b32 v{d+1}, 1.0", f"v_mov_b32 v{d+2}, 0", f"v_mov_b32 v{d+3}, 0"]
    def bfr(self, d, a):
        return [f"v_cvt_pk_bf16_f32 v{d}, v{a}, v{a}", f"v_lshlrev_b32 v{d}, 16, v{d}"]

    def entry(self, p, code_bytes):
        if self.c['endspin'] or self.c['stamps']: p("s_memrealtime s[100:101]")
        p(f"s_cmp_ge_u32 s2, 256\ns_cbranch_scc1 L_end")
        p(f"s_load_dwordx16 s[4:19], s[0:1], 0\ns_load_dwordx16 s[20:35], s[0:1], 64")
        per = (code_bytes + 32 * 128 - 1) // (32 * 128)
        assert per <= 64
        p(f"s_getpc_b64 {S2(sMask)}\nL_pc:")
        p(f"s_lshr_b32 s{sB}, s2, 3\ns_mul_i32 s{sA}, s{sB}, {per*128}")
        p(f"v_min_u32 v1, {per-1}, v0\nv_lshl_add_u32 v1, v1, 7, s{sA}")
        p(f"v_min_u32 v1, L_code_end-L_pc-4, v1")
        p(f"v_lshrrev_b32 v2, 6, v0\nv_and_b32 v{vLane}, 63, v0")
        p(f"global_load_dword a240, v1, {S2(sMask)}")
        p(f"v_readfirstlane_b32 s{sWave}, v2")
        if self.c['stamps']: p("v_mov_b32 v251, 0")
        p(f"s_and_b32 s{sA}, s2, 7\ns_lshl_b32 s{sA}, s{sA}, 5\ns_add_u32 s{sA}, s{sA}, s{sB}")
        p(f"s_and_b32 s{sCt}, s{sA}, 7\ns_lshr_b32 s{sRt}, s{sA}, 3\ns_mov_b32 s{sI}, s{sA}")
        p(f"s_sub_u32 s{sB}, s{sA}, 136\ns_mul_i32 s{sC}, s{sB}, 147\ns_lshr_b32 s{sC}, s{sC}, 10")
        p(f"s_mul_i32 s{sD}, s{sC}, 7\ns_sub_u32 s{sB}, s{sB}, s{sD}\ns_add_u32 s{sB}, s{sB}, 8\ns_sub_u32 s{sC}, 16, s{sC}")
        p(f"s_cmp_ge_u32 s{sA}, 136\ns_cselect_b32 s{sCg}, s{sC}, s{sRt}\ns_cselect_b32 s{sRg}, s{sB}, s{sCt}")
        p(f"s_cmp_eq_u32 s{sA}, 255\ns_cselect_b32 s{sCg}, 0, s{sCg}\ns_cselect_b32 s{sRg}, 15, s{sRg}")
        r = self.c['rot']
        if r == 1:
            p(f"s_mul_i32 s{sPar}, s{sCg}, 3\ns_add_u32 s{sPar}, s{sPar}, s{sRg}")
            p(f"s_mul_i32 s{sA}, s{sPar}, 205\ns_lshr_b32 s{sA}, s{sA}, 11\ns_mul_i32 s{sA}, s{sA}, 10\ns_sub_u32 s{sPar}, s{sPar}, s{sA}")
        elif r == 2:
            p(f"s_add_u32 s{sPar}, s{sCg}, s{sRg}\ns_and_b32 s{sPar}, s{sPar}, 1")
        elif r == 3:
            p(f"s_lshl_b32 s{sPar}, s{sCg}, 1\ns_add_u32 s{sPar}, s{sPar}, s{sRg}")
            p(f"s_mul_i32 s{sA}, s{sPar}, 205\ns_lshr_b32 s{sA}, s{sA}, 10\ns_mul_i32 s{sA}, s{sA}, 5\ns_sub_u32 s{sPar}, s{sPar}, s{sA}")
        elif r == 4:
            p(f"s_add_u32 s{sPar}, s{sCg}, s{sRg}\ns_and_b32 s{sPar}, s{sPar}, 3")
        m = self.c['smask']
        p(f"s_bfm_b32 s{sA}, s{sCg}, 0\ns_and_b32 s{sA}, s{sA}, {m}\ns_bcnt1_i32_b32 s{sB}, s{sA}\ns_sub_u32 s{sC}, s{sCg}, s{sB}")
        p(f"s_bitcmp1_b32 {m}, s{sCg}\ns_cselect_b32 s{sCg}, s{sB}, s{sC}")
        p("s_cbranch_scc0 L_second" if self.c['sfirst'] else "s_cbranch_scc1 L_second")

    def chunk_ops(self, s, ssm):
        r = self.c['rot']; ws = 128 if ssm else 196608
        if r == 0: return [f"s_mov_b32 s{sOffX}, {s*128}", f"s_mov_b32 s{sOffW}, {s*ws}"]
        if r in (1, 3):
            n = 10 if r == 1 else 5
            o = [] if s == 0 else [f"s_add_u32 s{sPar}, s{sPar}, 1", f"s_cmp_eq_u32 s{sPar}, {n}", f"s_cselect_b32 s{sPar}, 0, s{sPar}"]
            k = sPar
            if r == 3 and s >= 5: o.append(f"s_add_u32 s{sChunk}, s{sPar}, 5"); k = sChunk
        elif r == 2:
            o = [f"s_xor_b32 s{sChunk}, s{sPar}, {s}"]; k = sChunk
        else:
            if s < 2: o = [f"s_and_b32 s{sChunk}, s{sPar}, 1", f"s_xor_b32 s{sChunk}, s{sChunk}, {s}"]
            else: o = [f"s_xor_b32 s{sChunk}, s{sPar}, {s-2}", f"s_add_u32 s{sChunk}, s{sChunk}, 2"]
            k = sChunk
        return o + [f"s_lshl_b32 s{sOffX}, s{k}, 7", f"s_mul_i32 s{sOffW}, s{k}, {ws}"]

    def prologue(self, p, ssm):
        L = vLane; c = self.c
        t0, t1, t2, t3, t4, t5 = 0, 1, 2, 3, 4, 5
        p(f"s_mov_b32 s{sD}, 1280\ns_lshl_b32 s{sA}, s{sI}, 3\ns_lshl_b32 s{sB}, s{sWave}, 2\ns_add_u32 s{sA}, s{sA}, s{sB}\ns_lshl_b32 s{sB}, s{sI}, 2")
        p(f"s_cmp_ge_u32 s{sWave}, 2\ns_cselect_b32 s{sA}, s{sB}, s{sA}\ns_cselect_b32 s{sT+2}, 0, {2621440-819200}\ns_add_u32 s{sT+2}, s{sT+2}, 819200")
        p(f"v_lshlrev_b32 v{vL16}, 4, v{L}\nv_lshrrev_b32 v7, 4, v{L}\nv_add_u32 v7, s{sA}, v7\nv_and_b32 v{t0}, 0xff, v{vL16}\nv_mad_u32_u24 v6, v7, s{sD}, v{t0}")
        p(f"s_mul_i32 s{sK2}, s2, 205\ns_lshr_b32 s{sK2}, s{sK2}, 10\ns_mul_i32 s{sB}, s{sK2}, 5\ns_sub_u32 s{sO2}, s2, s{sB}")
        p(f"s_mul_i32 s{sA}, s{sK2}, {32*1280}\ns_lshl_b32 s{sB}, s{sO2}, 8\ns_add_u32 s{sA}, s{sA}, s{sB}\ns_lshl_b32 s{sB}, s{sWave}, 6\ns_add_u32 s{sA}, s{sA}, s{sB}")
        p(f"v_lshrrev_b32 v{t0}, 2, v{L}\nv_and_b32 v{t2}, 48, v{vL16}\nv_mad_u32_u24 v8, v{t0}, s{sD}, v{t2}\nv_add_u32 v{vJ0}, s{sA}, v8")
        p(f"v_add_u32 v{vJ0+1}, {16*1280-1024}, v{vJ0}\nv_mov_b32 v11, {EPOCH}")
        p(f"s_lshl_b32 s{sCw}, s{sCg}, 2\ns_add_u32 s{sCw}, s{sCw}, s{sWave}")
        if ssm:
            p(f"s_lshl_b32 s{sA}, s{sCw}, 5")
            p(f"v_bfe_u32 v{t0}, v{L}, 2, 2\nv_and_b32 v{t2}, 3, v{L}\nv_lshl_add_u32 v{t0}, v{t0}, 3, v{t2}\nv_add_lshl_u32 v10, v{t0}, s{sA}, 1")
        for r_, n in ((sX, 2621440), (sW0, 819200 if ssm else 1966080), (sW1, 819200 if ssm else 1966080), (sWS, WS_SIZE), (sU, 1966080)):
            p(f"s_mov_b32 s{r_+2}, {n}\ns_mov_b32 s{r_+3}, 0x20000")
        p(f"s_mov_b32 s{sT+3}, 0x20000")
        NS = 36 if ssm else 35
        p(f"s_mul_i32 s{sA}, s{sWave}, {NS}\ns_mul_i32 s{sB}, s{sRg}, {144 if ssm else 140}")
        p(f"v_lshrrev_b32 v{t0}, 3, v{L}\nv_and_b32 v{t1}, 7, v{L}\nv_add_u32 v{t0}, s{sA}, v{t0}")
        if not ssm: p(f"s_movk_i32 s{sC}, 2016")
        for n in ((0, 1, 4) if ssm else range(5)):
            if n: p(f"v_add_u32 v{t0}, {(8 if n == 1 else NS - 16) if ssm else (8 if n < 4 else 3)}, v{t0}")
            p(f"v_bfe_u32 v{t2}, v{t0}, 1, 3\nv_xor_b32 v{t2}, v{t2}, v{t1}")
            if ssm:
                p(f"v_bfe_u32 v{t3}, v{t0}, 2, 2\nv_mul_u32_u24 v{t3}, 36, v{t3}")
                p(f"v_and_b32 v{t4}, 1, v{t0}\nv_mad_u32_u24 v{t3}, v{t4}, 18, v{t3}")
                p(f"v_lshrrev_b32 v{t4}, 4, v{t0}\nv_lshl_add_u32 v{t3}, v{t4}, 1, v{t3}")
                p(f"v_bfe_u32 v{t4}, v{t0}, 1, 1\nv_add3_u32 v{t3}, v{t3}, v{t4}, s{sB}")
            else:
                p(f"v_add_u32 v{t3}, s{sB}, v{t0}\nv_lshrrev_b32 v{t4}, 4, v{t3}\nv_mul_u32_u24 v{t5}, 57, v{t4}\nv_lshrrev_b32 v{t5}, 9, v{t5}")
                p(f"v_cmp_gt_u32 vcc, s{sC}, v{t3}\nv_mad_i32_i24 v{t4}, v{t5}, -9, v{t4}\nv_and_b32 v{t5}, 12, v{t3}\nv_lshlrev_b32 v{t5}, 3, v{t5}")
                p(f"v_mad_i32_i24 v{t4}, v{t4}, -12, v{t5}\nv_cndmask_b32 v{t4}, 0, v{t4}, vcc\nv_add_u32 v{t3}, v{t3}, v{t4}")
            p(f"v_lshlrev_b32 v{t2}, 4, v{t2}\nv_mad_u32_u24 v{vXD+n}, v{t3}, s{sD}, v{t2}")
            if n and not ssm: p(f"v_subrev_u32 v{vXD+n}, {1024*n if n < 4 else 27*128}, v{vXD+n}")
        if ssm:
            p(f"v_subrev_u32 v{vXD+1}, 1024, v{vXD+1}\nv_add_u32 v{vXD+2}, 512, v{vXD}\nv_add_u32 v{vXD+3}, 512, v{vXD+1}\nv_subrev_u32 v{vXD+4}, {28*128}, v{vXD+4}")
        if ssm:
            p(f"s_lshl_b32 s{sA}, s{sCw}, 5")
            p(f"v_lshrrev_b32 v{t0}, 5, v{L}\nv_lshlrev_b32 v{t0}, 3, v{t0}\nv_bfe_u32 v{t2}, v{L}, 3, 2\nv_add3_u32 v{t0}, v{t0}, v{t2}, s{sA}")
            p(f"v_lshrrev_b32 v{t2}, 4, v{L}\nv_xor_b32 v{t2}, v{t2}, v{t1}\nv_lshlrev_b32 v{t2}, 4, v{t2}")
            p(f"v_mad_u32_u24 v{vWDm}, v{t0}, s{sD}, v{t2}")
            p(f"v_xor_b32 v{t2}, 64, v{vWDm}\nv_add_u32 v{vWDm+1}, {16*1280-1024}, v{t2}")
            p(f"v_add_u32 v{vWDm+2}, {4*1280-2048}, v{vWDm}\nv_add_u32 v{vWDm+3}, {4*1280-2048}, v{vWDm+1}")
            p(f"s_mul_i32 s{sM0W}, s{sWave}, 8192")
        else:
            p(f"s_mul_i32 s{sA}, s{sWave}, {16*3072}\ns_lshl_b32 s{sB}, s{sCg}, 8\ns_add_u32 s{sA}, s{sA}, s{sB}\ns_mov_b32 s{sC}, 3072")
            p(f"v_lshrrev_b32 v{t0}, 4, v{L}\nv_and_b32 v{t2}, 15, v{L}\nv_lshlrev_b32 v{t3}, 1, v{t0}\nv_xor_b32 v{t2}, v{t2}, v{t3}\nv_lshlrev_b32 v{t2}, 4, v{t2}")
            p(f"v_mad_u32_u24 v{t2}, v{t0}, s{sC}, v{t2}\nv_add_u32 v{vWDm}, s{sA}, v{t2}")
            p(f"v_add_u32 v{vWDm+1}, {4*3072-1024}, v{vWDm}")
            p(f"v_xor_b32 v{t2}, 128, v{vWDm}\nv_add_u32 v{vWDm+2}, {8*3072-2048}, v{t2}\nv_add_u32 v{vWDm+3}, {12*3072-3072}, v{t2}")
            p(f"s_mul_i32 s{sM0W}, s{sWave}, 4096")
        p(f"s_add_u32 s{sM0W}, s{sM0W}, {XIMG}\ns_mul_i32 s{sM0X}, s{sWave}, {NS*128}")
        p("s_waitcnt lgkmcnt(0)")
        self.stamp(p, 0)
        p(f"s_cmp_eq_u32 s{sWave}, 2\ns_cselect_b64 {S2(sT)}, {S2(pBre)}, {S2(pBim)}\ns_cmp_lt_u32 s{sWave}, 2\ns_cselect_b64 {S2(sT)}, {S2(pX)}, {S2(sT)}")
        side = []
        for j in range(5):
            side.append(f"buffer_load_dwordx4 {V4(16+4*j)}, v6, {S4(sT)}, 0 offen offset:{256*j}")
        side += self.wd_job()[0]
        side.append(f"buffer_load_dword v15, v11, {S4(sWS)}, 0 offen sc1")
        if c['warm']:
            nl = (CARRY // 128 + 1023) // 1024
            p(f"s_lshl_b32 s{sA}, s2, 2\ns_add_u32 s{sA}, s{sA}, s{sWave}\ns_mul_i32 s{sA}, s{sA}, {128*nl}\nv_min_u32 v13, {nl-1}, v{L}\nv_lshl_add_u32 v13, v13, 7, s{sA}\nv_min_u32 v13, {CARRY-128}, v13")
            side.append(f"buffer_load_dword a252, v13, {S4(sWS)}, 0 offen")
        p(f"s_mov_b64 {S2(sU)}, {S2(pWd)}\ns_mov_b64 {S2(sX)}, {S2(pX)}\ns_mov_b64 {S2(sWS)}, {S2(pWs)}")
        p(f"s_mov_b64 {S2(sW0)}, {S2(pBre if ssm else pWg)}\ns_mov_b64 {S2(sW1)}, {S2(pBim if ssm else pWu)}")
        if ssm:
            for i, ptr in enumerate((pLre, pLim, pLdt)):
                p(f"global_load_ushort v{100+2*i}, v10, {S2(ptr)}\nglobal_load_ushort v{101+2*i}, v10, {S2(ptr)} offset:8")
        st0 = self.dma_stage(0, ssm); st1 = self.dma_stage(1, ssm)
        p.add(side)
        dq = st0 + st1[:c['pre1']]
        self.dq_rest = st1[c['pre1']:]
        q = Seq()
        q(f"v_add_u32 v{vL16b}, 0x1000, v{vL16}")
        q(f"v_and_b32 v{t0}, 15, v{L}\nv_lshrrev_b32 v{t1}, 4, v{L}\nv_lshrrev_b32 v{t2}, 1, v{t0}\nv_xor_b32 v{t2}, v{t2}, v{t1}\nv_lshlrev_b32 v{t2}, 4, v{t2}")
        q(f"v_lshl_add_u32 v{vXR0}, v{t0}, 7, v{t2}\nv_xor_b32 v{vXR1}, 64, v{vXR0}")
        if ssm:
            q(f"v_add_u32 v{vWR0}, s{sM0W}, v{vXR0}\nv_add_u32 v{vWR1}, s{sM0W}, v{vXR1}")
        else:
            q(f"v_bfe_u32 v{t0}, v{L}, 2, 3\ns_lshl_b32 s{sA}, s{sWave}, 1\nv_xor_b32 v{t0}, s{sA}, v{t0}\nv_lshlrev_b32 v{t0}, 5, v{t0}")
            q(f"v_and_b32 v{t2}, 3, v{L}\nv_lshl_add_u32 v{t0}, v{t2}, 3, v{t0}")
            q(f"v_bfe_u32 v{t2}, v{L}, 2, 2\nv_lshl_add_u32 v{t2}, v{t1}, 3, v{t2}\nv_lshl_add_u32 v{t0}, v{t2}, 8, v{t0}")
            q(f"v_add_u32 v{vWR0}, {XIMG}, v{t0}\nv_xor_b32 v{vWR1}, 32, v{vWR0}")
            q(f"v_mov_b32 v12, 0x3f803f80\nv_mov_b32 v13, 0x3f803f80\nv_lshlrev_b32 v{t0}, 3, v{L}\nv_add_u32 v{t2}, {STG}, v{t0}\nv_add_u32 v{t3}, {2*STG}, v{t0}")
            for r_ in (t0, t2, t3): q(f"ds_write_b64 v{r_}, v[12:13] offset:{140*128}", tag='ones')
        q(f"s_mul_i32 s{sA}, s{sCt}, {80*1280}")
        q(f"v_lshrrev_b32 v{t0}, 3, v{L}\nv_and_b32 v{t2}, 7, v{L}\nv_lshrrev_b32 v{t3}, 4, v{L}\nv_xor_b32 v{t2}, v{t2}, v{t3}\nv_lshlrev_b32 v{t2}, 4, v{t2}")
        q(f"v_mad_u32_u24 v{t0}, v{t0}, s{sD}, v{t2}\nv_add_u32 v{vCD0}, s{sA}, v{t0}\nv_xor_b32 v{t0}, 64, v{vCD0}\nv_add_u32 v{vCD1}, {8*1280-1024}, v{t0}")
        q(f"s_mul_i32 s{sCslot}, s{sWave}, 10240\nv_add_u32 v{vCpat}, s{sCslot}, v{vXR0}")
        if not ssm: self.flag_offsets(q, vFG, 140, 48, f"s_mul_i32 s{sC}, s{sWave}, 12", 12, FLAGG)
        self.flag_offsets(q, vFS, 144, 20, f"s_and_b32 s{sC}, s{sWave}, 1\ns_mul_i32 s{sC}, s{sC}, 10", 10, FLAGS)
        q(f"s_and_b32 s{sCcol}, s{sWave}, 1\ns_mul_i32 s{sCcol}, s{sCcol}, 640")
        q(f"s_mul_i32 s{sB}, s{sRg}, {20 if ssm else 48}\ns_add_u32 s{sB}, s{sB}, s{sCw}\ns_lshl_b32 s{sB}, s{sB}, {FSH}\ns_add_u32 s{sFlag}, s{sB}, {FLAGS if ssm else FLAGG}")
        q(f"s_mul_i32 s{sHo}, s{sCw}, {HS}\ns_add_u32 s{sHo}, s{sHo}, {H + (48*HS if ssm else 0)}")
        self.side_addr(q)
        nfree = len(q.items)
        if ssm: self.ssm_consts(q)
        self.side_stats(q)
        q(f"v_readfirstlane_b32 s{sTag}, v15\ns_nop 1\ns_mul_i32 s{sTag}, s{sTag}, 1664525\ns_add_u32 s{sTag}, s{sTag}, 1013904223")
        items = q.items; nh = c['head']
        for g in dq[:nh]: p.add(g)
        self.role_map(p)
        if c['pads']:
            p("s_mov_b64 exec, 0")
            if not ssm: p(f"s_cmp_eq_u32 s{sRole}, 0\ns_cbranch_scc1 L_walkD")
            for nm in (('SY',) if ssm else ('GY', 'GD')):
                if nm == 'GD': p("L_walkD:")
                for w_ in range(3): p(f"s_cmp_eq_u32 s{sWave}, {w_}\ns_cbranch_scc1 L_pad{nm}{w_}")
                p(f"s_branch L_pad{nm}3")
            p(f"L_ret{'S' if ssm else 'G'}:\ns_mov_b64 exec, -1")
        dq = dq[nh:]
        tot = sum(len(x) for x in items); k = 0; cnt = 0
        for it in items:
            p.add(it); cnt += len(it)
            while k < len(dq) and cnt * len(dq) >= (k + 1) * tot: p.add(dq[k]); k += 1
        while k < len(dq): p.add(dq[k]); k += 1
        self.side_store(p, ssm)
        p(f"s_cmp_lt_u32 s{sWave}, 2\ns_cselect_b64 {S2(sT)}, {S2(pCre)}, {S2(pCim)}\ns_mov_b32 s{sT+2}, 819200")

    def role_map(self, p):
        masks = role_masks(self.c); base = [sum(bin(m).count('1') for m in masks[:x]) for x in range(8)]
        p(f"s_lshr_b32 s{sA}, s{sI}, 5\ns_mov_b32 s{sB}, {masks[0]}\ns_mov_b32 s{sC}, 0")
        for x in range(1, 8): p(f"s_cmp_eq_u32 s{sA}, {x}\ns_cselect_b32 s{sB}, {masks[x]}, s{sB}\ns_cselect_b32 s{sC}, {base[x]}, s{sC}")
        p(f"s_and_b32 s{sA}, s{sI}, 31\ns_lshr_b32 s{sRole}, s{sB}, s{sA}\ns_and_b32 s{sRole}, s{sRole}, 1\ns_bfm_b32 s{sA}, s{sA}, 0\ns_and_b32 s{sA}, s{sA}, s{sB}")
        p(f"s_bcnt1_i32_b32 s{sA}, s{sA}\ns_add_u32 s{sA}, s{sA}, s{sC}\ns_sub_u32 s{sB}, s{sI}, s{sA}\ns_cmp_eq_u32 s{sRole}, 1\ns_cselect_b32 s{sA}, s{sA}, s{sB}")
        p(f"s_lshr_b32 s{sRt}, s{sA}, 3\ns_and_b32 s{sCt}, s{sA}, 7")
        md, my = self.c['mapd'], self.c['mapy']
        if md or my:
            p(f"s_lshr_b32 s{sB}, s{sA}, 5\ns_lshl_b32 s{sB}, s{sB}, 2\ns_bfe_u32 s{sC}, s{sA}, 0x20002\ns_add_u32 s{sB}, s{sB}, s{sC}")
            p(f"s_bfe_u32 s{sC}, s{sA}, 0x10004\ns_lshl_b32 s{sC}, s{sC}, 2\ns_and_b32 s{sA}, s{sA}, 3\ns_add_u32 s{sC}, s{sC}, s{sA}")
            if md and my: p(f"s_mov_b32 s{sRt}, s{sB}\ns_mov_b32 s{sCt}, s{sC}")
            else: p(f"s_cmp_eq_u32 s{sRole}, {1 if my else 0}\ns_cselect_b32 s{sRt}, s{sB}, s{sRt}\ns_cselect_b32 s{sCt}, s{sC}, s{sCt}")

    def wd_job(self):
        vJD = 60
        d = [[f"s_lshl_b32 s{sC}, s{sWave}, 11", f"s_add_u32 m0, s{sC}, {L_WDST}", I(f"buffer_load_dwordx4 v{vJ0}, {S4(sU)}, 0 offen lds", 'wdst')],
             [I(f"buffer_load_dwordx4 v{vJ0+1}, {S4(sU)}, 0 offen offset:1024 lds", 'wdst')]]
        r = [f"ds_read_b64_tr_b16 {V2(vJD+4*nbl+2*t)}, v{vJ0+2} offset:{t*1024 + nbl*32}" for nbl in range(2) for t in range(2)]
        st = [[I(f"buffer_store_dwordx4 {V4(vJD+4*nbl)}, v{vL16}, {S4(sWS)}, s{98+nbl} offen sc1", 'side')] for nbl in range(2)]
        st[0] = [f"s_mov_b64 {S2(sU)}, {S2(pOut)}", f"s_mov_b32 s{sU+2}, 5242880"] + st[0]
        return d, r, st

    def side_addr(self, q):
        L = vLane
        q(f"s_cmp_lt_u32 s{sWave}, 2\ns_cselect_b32 s{sB}, 0, 1408\ns_cselect_b32 s{sC}, 0, 2048\ns_cselect_b32 s{sA}, 0, {OOB}\n"
          f"v_mov_b32 v40, s{sA}\nv_add_u32 v44, s{sB}, v7\nv_cmp_gt_u32 {S2(sMask)}, s{sC}, v44")
        q(f"s_mov_b32 s{sA}, 1821\nv_mul_u32_u24 v1, s{sA}, v44\nv_lshrrev_b32 v1, 18, v1")
        q(f"v_mul_u32_u24 v2, 144, v1\nv_sub_u32 v2, v44, v2\nv_mul_u32_u24 v3, 57, v2\nv_lshrrev_b32 v3, 10, v3")
        q(f"v_mul_u32_u24 v4, 18, v3\nv_sub_u32 v4, v2, v4")
        q(f"v_lshrrev_b32 v5, 1, v3\nv_cmp_gt_u32 vcc, 14, v1\nv_mul_u32_u24 v0, 36, v5\nv_sub_u32 v0, v2, v0\nv_and_b32 v0, 60, v0\nv_mul_u32_u24 v0, 3, v0\n"
          f"v_lshlrev_b32 v2, 5, v5\nv_sub_u32 v0, v0, v2\nv_cndmask_b32 v0, 0, v0, vcc\nv_add_u32 v0, v0, v44\nv_lshl_add_u32 v40, v0, 4, v40")
        q(f"v_lshl_add_u32 v1, v1, 2, v5\nv_mul_u32_u24 v1, 72, v1")
        q(f"v_and_b32 v3, 1, v3\nv_lshl_add_u32 v3, v4, 1, v3\nv_add_lshl_u32 v1, v1, v3, 2\nv_add_u32 v1, {STATS}, v1")
        q(f"v_lshrrev_b32 v2, 3, v7\nv_and_b32 v3, 3, v7\nv_lshl_add_u32 v2, v2, 2, v3\nv_and_b32 v3, 4, v7\nv_lshl_add_u32 v2, v2, 4, v3")
        q(f"s_lshl_b32 s{sA}, s{sWave}, 3\ns_add_u32 s{sA}, s{sA}, {CSUM - 16}\nv_add_u32 v2, s{sA}, v2\nv_mov_b32 v3, {OOB}")
        q(f"v_cndmask_b32 v41, v1, v2, {S2(sMask)}\nv_cndmask_b32 v42, v1, v3, {S2(sMask)}")
        q(f"s_lshl_b32 s{sA}, s{sWave}, 11\ns_add_u32 s{sA}, s{sA}, {L_WDST}\n"
          f"v_lshrrev_b32 v0, 2, v{L}\nv_and_b32 v1, 3, v{L}\nv_lshlrev_b32 v1, 3, v1\nv_lshl_add_u32 v0, v0, 6, v1\nv_add_u32 v{vJ0+2}, s{sA}, v0")
        for nbl in range(2):
            q(f"s_lshl_b32 s{sA}, s{sO2}, 3\ns_lshl_b32 s{sB}, s{sWave}, 1\ns_add_u32 s{sA}, s{sA}, s{sB}\ns_add_u32 s{sA}, s{sA}, {nbl}")
            q(f"s_mul_i32 s{sB}, s{sA}, 205\ns_lshr_b32 s{sB}, s{sB}, 10\ns_mul_i32 s{sB}, s{sB}, 255\ns_add_u32 s{sA}, s{sA}, s{sB}")
            q(f"s_mul_i32 s{sB}, s{sK2}, 5\ns_add_u32 s{sA}, s{sA}, s{sB}\ns_lshl_b32 s{sA}, s{sA}, 10\ns_add_u32 s{98+nbl}, s{sA}, {WD}")

    def side_stats(self, q):
        q("v_mov_b32 v45, 0x3f803f80")
        for j in range(20):
            a = 46 + (j & 1); b = 48 + (j & 1)
            q(f"v_dot2_f32_bf16 v{a}, v{16+j}, v45, {'0' if j < 2 else 'v%d' % a}\nv_dot2_f32_bf16 v{b}, v{16+j}, v{16+j}, {'0' if j < 2 else 'v%d' % b}")
        q.items.append([W('wdst')])
        for x in self.wd_job()[1]: q(x)
        q("v_add_f32 v55, v46, v47\nv_add_f32 v48, v48, v49")
        for r in (8, 4, 2, 1):
            q(f"v_add_f32_dpp v55, v55, v55 row_ror:{r} row_mask:0xf bank_mask:0xf\nv_add_f32_dpp v48, v48, v48 row_ror:{r} row_mask:0xf bank_mask:0xf")
        q(f"v_mul_f32 v46, {INV640}, v55\nv_mul_f32 v48, {INV640}, v48\nv_fma_f32 v48, -v46, v46, v48\nv_max_f32 v48, 0, v48")
        q.add(self.bfr(48, 48)); q(f"v_add_f32 v48, {EPS}, v48"); q.add(self.bfr(48, 48))
        q("v_sqrt_f32 v48, v48"); q.add(self.bfr(52, 46)); q.add(self.bfr(53, 48)); q("v_rcp_f32 v54, v53")
        q(f"v_mul_f32 v50, v52, v54\nv_cndmask_b32 v51, v54, v55, {S2(sMask)}")

    def side_store(self, p, ssm):
        self.st_groups = []
        if self.c['stlate']:
            for i in range(8): p(f"v_accvgpr_write_b32 a{224+i}, v{60+i}")
            for i, r_ in enumerate((52, 53, 54, 55, 51, 50)): p(f"v_accvgpr_write_b32 a{232+i}, v{r_}")
            p(f"v_mov_b32 v236, v40\nv_mov_b32 v237, v41\nv_mov_b32 v238, v42\ns_mov_b64 {S2(sU)}, {S2(pOut)}\ns_mov_b32 s{sU+2}, 5242880")
            g = [[I(f"buffer_store_dwordx4 {A4(224+4*nbl)}, v{vL16}, {S4(sWS)}, s{98+nbl} offen sc1", 'side')] for nbl in range(2)]
            if ssm:
                p(f"s_lshl_b32 s{sB}, s{sCw}, 4\ns_add_u32 s{sB}, s{sB}, s{sRg}\ns_lshl_b32 s{sB}, s{sB}, 8\ns_add_u32 s{sCo}, s{sB}, {CARRY}")
                p(f"v_mov_b32 v239, -1\nv_lshlrev_b32 v240, 2, v{vLane}")
                g.append([I(f"buffer_store_dword v239, v240, {S4(sWS)}, s{sCo} offen sc1", 'side')])
            g.append([["s_mov_b32 exec_lo, 0x00010001", "s_mov_b32 exec_hi, 0x00010001",
                       I(f"buffer_store_dwordx4 a[232:235], v236, {S4(sWS)}, 0 offen sc1", 'side'),
                       I(f"buffer_store_dword a236, v237, {S4(sWS)}, 0 offen sc1", 'side'),
                       I(f"buffer_store_dword a237, v238, {S4(sWS)}, 0 offen offset:144 sc1", 'side'), "s_mov_b64 exec, -1"]])
            self.st_groups = g
            return
        for g in self.wd_job()[2]: p.add(g)
        if ssm:
            p(f"s_lshl_b32 s{sB}, s{sCw}, 4\ns_add_u32 s{sB}, s{sB}, s{sRg}\ns_lshl_b32 s{sB}, s{sB}, 8\ns_add_u32 s{sCo}, s{sB}, {CARRY}")
            p(f"v_mov_b32 v13, -1\nv_lshlrev_b32 v14, 2, v{vLane}")
            p(f"buffer_store_dword v13, v14, {S4(sWS)}, s{sCo} offen sc1", tag='side')
        p(f"s_mov_b32 exec_lo, 0x00010001\ns_mov_b32 exec_hi, 0x00010001")
        p(f"buffer_store_dwordx4 v[52:55], v40, {S4(sWS)}, 0 offen sc1", tag='side')
        p(f"buffer_store_dword v51, v41, {S4(sWS)}, 0 offen sc1", tag='side')
        p(f"buffer_store_dword v50, v42, {S4(sWS)}, 0 offen offset:144 sc1", tag='side')
        p("s_mov_b64 exec, -1")

    def ssm_consts(self, p):
        for i in range(100, 106): p(f"v_lshlrev_b32 v{i}, 16, v{i}")
        for i in (0, 1):
            p(f"v_mul_f32 v{104+i}, {LOG2E}, v{104+i}\nv_exp_f32 v{104+i}, v{104+i}")
        for i in (0, 1): p.add(self.bfr(104+i, 104+i))
        p("v_pk_mul_f32 v[106:107], v[104:105], v[100:101]\nv_pk_mul_f32 v[108:109], v[104:105], v[102:103]")
        for i in (0, 1):
            p(f"v_mul_f32 v{106+i}, {LOG2E}, v{106+i}\nv_exp_f32 v{106+i}, v{106+i}")
            p(f"v_mul_f32 v{108+i}, {INV2PI}, v{108+i}\nv_rndne_f32 v110, v{108+i}\nv_sub_f32 v{108+i}, v{108+i}, v110")
            p(f"v_cos_f32 v{112+i}, v{108+i}\nv_sin_f32 v{114+i}, v{108+i}")
        p(f"v_pk_mul_f32 {V2(LAM)}, v[106:107], v[112:113]\nv_pk_mul_f32 {V2(LAM+2)}, v[106:107], v[114:115]")
        p(f"v_pk_mul_f32 v[106:107], v[100:101], v[100:101]\nv_pk_fma_f32 v[106:107], v[102:103], v[102:103], v[106:107]")
        p("v_rcp_f32 v106, v106\nv_rcp_f32 v107, v107")
        p(f"v_add_f32 v112, -1.0, v{LAM}\nv_add_f32 v113, -1.0, v{LAM+1}\nv_mov_b32 v114, v{LAM+2}\nv_mov_b32 v115, v{LAM+3}")
        p("v_add_f32 v106, v106, v106\nv_add_f32 v107, v107, v107")
        p("v_pk_mul_f32 v[100:101], v[100:101], v[106:107]\nv_pk_mul_f32 v[102:103], v[102:103], v[106:107] neg_lo:[1,0] neg_hi:[1,0]")
        p.add(self.cmul(COEF, 112, 100))
        p.add(self.cmul(100, LAM, LAM))
        p.add(self.cmul(104, 100, 100))
        p.add(self.cmul(108, 104, 104))
        p.add(self.cmul(104, 108, 108))
        p.add(self.cmul(L18, 104, 100))
        p.add(self.cmul(L36, L18, L18))
        p.add(self.cmul(100, L36, L36))
        p.add(self.cmul(104, 100, L36))
        p(f"v_cmp_le_u32 {S2(sQ1)}, 16, v{vLane}\nv_cmp_le_u32 {S2(sQ2)}, 32, v{vLane}\nv_cmp_le_u32 {S2(sQ3)}, 48, v{vLane}")
        p.add(self.cone(108))
        p.add(self.csel(F36, 104, 100, sQ1)); p.add(self.csel(F36, F36, L36, sQ2)); p.add(self.csel(F36, F36, 108, sQ3))

    def dma_stage(self, s, ssm):
        buf = (s % 3) * STG; tag = f'st{s}'
        g = []
        for n in range(4):
            pre = self.chunk_ops(s, ssm) + [f"s_add_u32 m0, s{sM0X}, {buf}"] if n == 0 else []
            g.append(pre + [I(f"buffer_load_dwordx4 v{vXD+n}, {S4(sX)}, s{sOffX} offen offset:{1024*n} lds", tag)])
        g.append([I(f"buffer_load_dwordx4 v{vXD+4}, {S4(sX)}, s{sOffX} offen offset:{(28 if ssm else 27)*128} lds", tag)])
        for m in range(2):
            for n in range(4):
                pre = [f"s_add_u32 m0, s{sM0W}, {buf + m * (4096 if ssm else 16384)}"] if n == 0 else []
                g.append(pre + [I(f"buffer_load_dwordx4 v{vWDm+n}, {S4(sW1 if m else sW0)}, s{sOffW} offen offset:{1024*n} lds", tag)])
        return g

    def xread(self, B):
        h = (B // 9) & 1; b = B % 9
        return f"ds_read_b128 {V4(xr(B))}, v{vXR1 if h else vXR0} offset:{b*2048}"
    def wreads(self, K, ssm):
        h = K & 1; out = []
        for t in range(4):
            d = wb(K & 1, t)
            if ssm:
                out.append(f"ds_read_b128 {V4(d)}, v{vWR1 if h else vWR0} offset:{(t & 1)*4096 + (t >> 1)*2048}")
            else:
                for tt in range(2):
                    out.append(f"ds_read_b64_tr_b16 {V2(d+2*tt)}, v{vWR1 if (t >> 1) else vWR0} offset:{(t & 1)*16384 + (32*h + 4*tt)*256}")
        return out

    def wd_ops(self):
        ops = []
        for i in range(12):
            if i == 0:
                pre = [f"s_mul_i32 s{sD}, s{sCt}, 52", f"s_mul_i32 s{sC}, s{sWave}, 12", f"s_add_u32 s{sD}, s{sD}, s{sC}",
                       f"s_mul_i32 s{sD}, s{sD}, 5120", f"s_add_u32 s{sO2}, s{sD}, {WD}"]
            else:
                pre = [f"s_add_u32 s{sO2}, s{sO2}, 5120"]
            for nb in range(5):
                a = 20 * i + 4 * nb
                ld = (f"buffer_load_dwordx4 {A4(a)}, v{vL16}, {S4(sWS)}, s{sO2} offen offset:{1024*nb} sc1" if nb < 4 else
                      f"buffer_load_dwordx4 {A4(a)}, v{vL16b}, {S4(sWS)}, s{sO2} offen sc1")
                ops.append((pre if nb == 0 else []) + [ld])
        return ops
    def cslot(self, i): return (STG, 2 * STG, STG, 0, 2 * STG)[i]
    def c_ops(self, i):
        ops = []
        for j in range(10):
            pre = []
            if j == 0: pre = ([W(f'c{i // 2 - 1}r')] if i in (2, 4) else []) + [f"s_add_u32 s98, s{sCcol}, {128 * i}"]
            elif j % 2 == 0: pre = [f"s_add_u32 s98, s98, {16*1280}"]
            if j % 2 == 0: pre += [f"s_add_u32 m0, s{sCslot}, {self.cslot(i) + j * 1024}"]
            ops.append(pre + [I(f"buffer_load_dwordx4 v{vCD1 if j & 1 else vCD0}, {S4(sT)}, s98 offen offset:{1024*(j & 1)} lds", f'c{i}')])
        return ops
    def c_reads(self, i, r0, r1):
        o = [[f"v_add_u32 v{r0}, {self.cslot(i)}, v{vCpat}", f"v_xor_b32 v{r1}, 64, v{r0}", W(f'c{i}')]]
        return o + [I(f"ds_read_b128 {A4(40*i + 20*h + 4*nb)}, v{r1 if h else r0} offset:{2048*nb}", f'c{i}r') for h in range(2) for nb in range(5)]

    def poll_check(self, load, cmpc, reg, nap=2):
        ok = self.lab('ok'); lp = self.lab('spin')
        out = [f"v_cmp_ne_u32 vcc, {cmpc}, v{reg}", f"s_cbranch_vccz {ok}"]
        slow = [f"s_mov_b32 s{sSpin}, 0x10000", f"{lp}:", f"s_sleep {nap}", load, "s_waitcnt vmcnt(0)",
                f"v_cmp_ne_u32 vcc, {cmpc}, v{reg}", f"s_sub_u32 s{sSpin}, s{sSpin}, 1", f"s_cmp_eq_u32 s{sSpin}, 0",
                f"s_cbranch_scc1 {ok}", f"s_cbranch_vccnz {lp}"]
        out += [self.optI(x) for x in slow] + [f"{ok}:"]
        return out
    def optI(self, x):
        i = I(x, opt=True)
        if i.kind == 'vmem': i.kind = 'ctl'; i.wr = set(); i.rd = set()
        return i

    def mainloop(self, p, ssm, role):
        c = self.c; L = vLane
        mf = []
        for K in range(20):
            for b in range(9):
                B = K * 9 + b
                for t in range(4):
                    a = acc(b, t); w = wb(K & 1, t); x = xr(B)
                    cc = '0' if K == 0 else V4(a)
                    if ssm: mf.append(f"v_mfma_f32_16x16x32_bf16 {V4(a)}, {V4(x)}, {V4(w)}, {cc}")
                    else: mf.append(f"v_mfma_f32_16x16x32_bf16 {V4(a)}, {V4(w)}, {V4(x)}, {cc}")
        F = {}
        def put(B, g, items): F.setdefault(B * 4 + g, []).extend(items if isinstance(items, list) else [items])
        def place(groups, b0, b1):
            n = len(groups); nb = b1 - b0
            blocks = [b0 + (i * nb) // n for i in range(n)]
            for i, g in enumerate(groups):
                two = i + 1 < n and blocks[i + 1] == blocks[i]
                assert not (two and i > 0 and blocks[i - 1] == blocks[i])
                put(blocks[i], 0 if two else (3 if blocks[i] % 9 == 0 else 2), list(g))
        if ssm: p("s_branch L_mainSY\nL_split:")
        else: p(f"s_cmp_eq_u32 s{sRole}, 0\ns_cbranch_scc1 L_mainGD\ns_branch L_mainGY\nL_split:")
        p.wait('st0', 'ones'); p("s_barrier")
        self.stamp(p, 1)
        wr = self.wreads(0, ssm); k = len(wr) // 4
        p.add(wr[:k]); p(self.xread(0)); p.add(wr[k:])
        for B in range(1, 5): p(self.xread(B))
        BB = 5
        pf = self.wd_ops() if role == 0 else self.c_ops(0) + self.c_ops(1) + self.c_ops(2)
        ps = c['poll_stage'] if role == 0 else c['ypoll']; sa = c['stlate']
        assert ps > sa
        ld = f"buffer_load_dword v{vPoll}, v{vL16}, {S4(sWS)}, s{sA} offen sc1"
        for s in range(10):
            B0 = s * 18
            for B in range(B0 + 5, B0 + 18): put(B - 5, 0, self.xread(B))
            w1 = self.wreads(2 * s + 1, ssm)
            for i, r in enumerate(w1): put(B0 + 1 + (i * 6) // len(w1), 1 if i % 2 == 0 or ssm else 3, r)
            Bb = B0 + 9 + BB
            tags = [f'st{s+1}', 'ALLLG'] + (['side'] if s == sa else []) + (['sstat'] if s >= ps + 2 else []) + ['cp']
            bar = [W(*tags), "s_barrier"]
            if c['x_nobar'] and s not in (0, ps, 9): bar = [W(*tags)]
            if s == ps: put(Bb - 1, 1, self.poll_check(ld, f"s{sTag}", vPoll))
            if s < 9:
                d = STG if (s + 1) % 3 else -2 * STG
                op = "v_add_u32" if d > 0 else "v_subrev_u32"
                upd = [f"{op} v{r}, {abs(d)}, v{r}" for r in (vWR0, vXR0, vWR1, vXR1)]
                put(Bb - 2, 1, upd[:2]); put(Bb - 1, 0, upd[2:])
            if c['stamps'] == 2:
                q = Prog(); self.stamp(q, 20 + s); bar += q.L
            put(Bb - 1, 3, bar)
            if s < 9:
                w0 = self.wreads(2 * s + 2, ssm); k = len(w0) // 4
                seq = w0[:k] + [self.xread(B0 + 18)] + w0[k:2*k] + [self.xread(B0 + 19)] + w0[2*k:]
                seq += [self.xread(B0 + 20), self.xread(B0 + 21), self.xread(B0 + 22)]
                if ssm: spots = [(0, 0), (0, 1), (0, 3), (1, 0), (1, 1), (1, 3), (2, 0), (2, 1), (3, 0)]
                else: spots = [(0, 0), (0, 1), (0, 2), (0, 3), (1, 0), (1, 1), (1, 3), (2, 0), (2, 1), (2, 3), (3, 0), (3, 1), (3, 3)]
                for (db, g), r in zip(spots, seq): put(Bb + db, g, r)
            if s == sa or s == ps:
                arr = self.lab('arr')
                cond = [f"s_cmp_lg_u32 s{sWave}, 0"] if s == sa else [f"s_or_b32 s{sB}, s{sWave}, s2"]
                adr = [f"s_lshl_b32 s{sB}, s2, 4", f"s_add_u32 s{sB}, s{sB}, {ARR}"] if s == sa else [f"s_mov_b32 s{sB}, {EPOCH}"]
                put(Bb, 0, cond + [f"s_cbranch_scc1 {arr}"] +
                    [I(x, opt=True) for x in adr + [f"v_mov_b32 v{vPoll}, s{sTag}", "s_mov_b64 exec, 1",
                                              f"buffer_store_dword v{vPoll}, v{vL16}, {S4(sWS)}, s{sB} offen sc1", "s_mov_b64 exec, -1"]] + [f"{arr}:"])
            early = []; late = []
            if s == ps: early.append([f"s_lshl_b32 s{sA}, s{sWave}, 10", f"s_add_u32 s{sA}, s{sA}, {ARR}", ld])
            if s == 0: early += self.dq_rest
            if s + 2 < 10 and not (c['x_nodma'] and s > 0): early += self.dma_stage(s + 2, ssm)
            if s == c['cstage']:
                late.append([f"s_mul_i32 s{sA}, s2, 25", f"s_and_b32 s{sB}, s{sWave}, 1", f"s_mul_i32 s{sB}, s{sB}, 13", f"s_add_u32 s{sA}, s{sA}, s{sB}", f"s_lshl_b32 s{sA}, s{sA}, 7",
                             f"v_min_u32 v{vTmp}, 12, v{L}", f"v_lshlrev_b32 v{vTmp}, 7, v{vTmp}", f"buffer_load_dword a241, v{vTmp}, {S4(sT)}, s{sA} offen"])
            if c['stlate'] and s == c['stlate'] - 1: late += self.st_groups
            if s == ps: late += self.stat_loads(ssm)
            if s >= ps:
                n = c['wd_late'] if s >= 8 else (c['wd_mid'] - len(late))
                if role: n = {8: 10, 9: 17}.get(s, 0)
                n = max(0, min(n, len(pf)))
                ops, pf = pf[:n], pf[n:]
                if s >= 8: early += ops
                else: late += ops
            if s == 9 and role:
                cr = self.c_reads(0, vXD, vXD + 1)
                put(B0 + 1, 3 if ssm else 2, cr[0])
                for i, x in enumerate(cr[1:]): put(B0 + 2 + (i * 7) // 10, (3, 2)[i % 2] if ssm else 2, [x])
            if ssm and c['cstg'] and 3 <= s <= 8:
                nb = s - 3; g2 = []
                if nb == 0: put(B0 + 10, 1, [f"s_mul_i32 s{sA if s != ps else sB}, s{sWave}, {10240 - 2048}", f"v_subrev_u32 v241, s{sA if s != ps else sB}, v{vCpat}"]); put(B0 + 11, 1, [f"v_add_u32 v241, {SPARE + 2048}, v241", f"v_xor_b32 v242, 64, v241"])
                if nb > 0:
                    for h in range(2): put(Bb + h, 2, [I(f"ds_read_b128 {A4(160 + 20*h + 4*(nb-1))}, v{241 + h}", 'cpr')])
                if nb < 5:
                    g2 = [([W('cpr')] if nb else []) + [f"s_add_u32 s98, s{sCcol}, {512 + nb*16*1280}", f"s_lshl_b32 s99, s{sWave}, 11", f"s_add_u32 m0, s99, {SPARE + 2048}",
                           I(f"buffer_load_dwordx4 v{vCD0}, {S4(sT)}, s98 offen lds", 'cp')], [I(f"buffer_load_dwordx4 v{vCD1}, {S4(sT)}, s98 offen offset:1024 lds", 'cp')]]
                    assert len(late) <= 2
                    if late: place(late, B0 + 14, B0 + 16); late = []
                    place(g2, B0 + 16, B0 + 18)
            if s == 0 or s >= 8:
                if early + late: place(early + late, B0, B0 + (12 if role and s == 8 else 18))
            else:
                if early: place(early, B0, B0 + max(13, len(early)))
                if late: place(late, B0 + 14, B0 + 18)
            if s == 9 and not ssm:
                put(B0, 1, [f"v_and_b32 v{vTmp}, 0xff, v{vL16}"]); put(B0, 3, [f"v_add_u32 v{vTmp}, {L_STAT}, v{vTmp}"])
                for b in range(9):
                    put(B0 + 1 + b, 3, [f"ds_read_b64 {V2(GST+2*b)}, v{vTmp} offset:{256*b}"])
                    if b < 9: put(B0 + 6 + b, 1, [f"v_rcp_f32 v{GK1+b}, v{GST+2*b+1}"]); put(B0 + 7 + b, 3, [f"v_mul_f32 v{GK1+b}, {NLOG2E}, v{GK1+b}"])
            if s == 9 and ssm:
                put(B0 + 10, 1, [f"v_lshrrev_b32 v{vTmp}, 4, v{L}", f"v_mul_u32_u24 v{vTmp}, 288, v{vTmp}"]); put(B0 + 11, 1, [f"v_add_u32 v{vTmp}, {L_STAT}, v{vTmp}"])
                for i, x in enumerate(self.rsrd(0) + self.rsrd(1)): put(B0 + 14 + i // 2, i % 2, [x])
            if s == 8 and not ssm:
                T = 245
                seq = [f"s_mul_i32 s{sA}, s{sRg}, 140", f"v_and_b32 v{T}, 15, v{L}", f"v_add_u32 v{T}, s{sA}, v{T}", f"v_lshrrev_b32 v{T+1}, 4, v{T}",
                       f"v_and_b32 v{T}, 15, v{T}", f"v_lshlrev_b32 v{T}, 4, v{T}", f"v_lshl_add_u32 v{T}, v{T+1}, 10, v{T}",
                       f"v_lshrrev_b32 v{T+1}, 4, v{L}", f"v_lshl_add_u32 v{GHA}, v{T+1}, 8, v{T}"]
                for i, x in enumerate(seq): put(B0 + 2 + i, 3, [x])
        p.add(interleave(mf, F))
        self.pf_rest = pf

    def rsreg(self, b): return (176, 236)[b] if b < 2 else 144 + 8 * (b & 1)
    def rsrd(self, b): return [f"ds_read_b128 {V4(self.rsreg(b))}, v{vTmp} offset:{16*b}", f"ds_read_b128 {V4(self.rsreg(b)+4)}, v{vTmp} offset:{144+16*b}"]

    def stat_loads(self, ssm):
        n = 288 if ssm else 576
        pre = [f"s_mul_i32 s{sA}, s{sRg}, {1152 if ssm else 2240}", f"s_mul_i32 s{sC}, s{sWave}, {n}", f"s_add_u32 s{sA}, s{sA}, s{sC}",
               f"s_add_u32 s{sA}, s{sA}, {STATS if ssm else STATG}", f"s_add_u32 m0, s{sC}, {L_STAT}"]
        g = [pre + [I(f"buffer_load_dwordx4 v{vL16}, {S4(sWS)}, s{sA} offen sc1 lds", 'sstat')]]
        if ssm:
            g.append([f"s_lshl_b32 s{sA}, s{sCw}, 8", f"s_add_u32 s{sA}, s{sA}, {CSUM}", f"v_and_b32 v{vTmp}, 0xff, v{vL16}",
                      f"buffer_load_dwordx4 {V4(CS)}, v{vTmp}, {S4(sWS)}, s{sA} offen sc1"])
        return g

    def y_rest(self, ssm=False):
        if ssm and self.c['cstg']: return self.c_ops(3)
        return self.c_ops(3) + [self.c_reads(1, vXR0, vXR1)] + self.c_ops(4)

    def glu_tail(self, p, role):
        L = vLane; c = self.c
        pf = self.pf_rest + (self.y_rest() if role else [])
        CSR = 144
        T = 172
        self.stamp(p, 2)
        for i in range(16): p(f"v_mov_b32_dpp v{CSR+i}, v{acc(8,0)+i} row_newbcast:12 row_mask:0xf bank_mask:0xf")
        for b in range(9):
            ms = V2(GST + 2 * b); k1 = V2(GK1 + (b & ~1)); ks = b & 1
            pairs = [(acc(b, 2*pr) + 2*hh, acc(b, 2*pr+1) + 2*hh, CSR + 8*pr + 2*hh, CSR + 8*pr + 4 + 2*hh) for pr in range(2) for hh in range(2)]
            body = []
            for (g, u, cg, cu) in pairs:
                body.append(f"v_pk_fma_f32 {V2(g)}, {V2(cg)}, {ms}, {V2(g)} op_sel_hi:[1,0,1] neg_lo:[0,1,0] neg_hi:[0,1,0]")
            for (g, u, cg, cu) in pairs:
                body.append(f"v_pk_mul_f32 {V2(g)}, {V2(g)}, {k1} op_sel:[0,{ks}] op_sel_hi:[1,{ks}]")
            for (g, u, cg, cu) in pairs:
                body += [f"v_exp_f32 v{g}, v{g}", f"v_exp_f32 v{g+1}, v{g+1}",
                         f"v_pk_fma_f32 {V2(u)}, {V2(cu)}, {ms}, {V2(u)} op_sel_hi:[1,0,1] neg_lo:[0,1,0] neg_hi:[0,1,0]"]
            for (g, u, cg, cu) in pairs:
                body.append(f"v_pk_fma_f32 {V2(g)}, {V2(g)}, {ms}, {ms} op_sel:[0,1,1] op_sel_hi:[1,1,1]")
            for (g, u, cg, cu) in pairs:
                body += [f"v_rcp_f32 v{g}, v{g}", f"v_rcp_f32 v{g+1}, v{g+1}"]
            for (g, u, cg, cu) in pairs:
                body.append(f"v_pk_mul_f32 {V2(u)}, {V2(u)}, {V2(g)}")
            D = T + 4 * (b & 1)
            for i, (g, u, cg, cu) in enumerate(pairs):
                body.append(f"v_cvt_pk_bf16_f32 v{D+i}, v{u}, v{u+1}")
            F = {}
            n = c['g_epi']
            for i in range(n):
                if pf: F[(i + 1) * 40 // (n + 1)] = pf.pop(0)
            p.add(interleave(body, F))
            if b in (4, 8): p(f"s_add_u32 s{sHo}, s{sHo}, 4096")
            if b == 8: p("s_mov_b32 exec_lo, 0x0fff0fff\ns_mov_b32 exec_hi, 0x0fff0fff")
            p(f"buffer_store_dwordx4 {V4(D)}, v{GHA}, {S4(sWS)}, s{sHo} offen offset:{1024*(b & 3)} sc1", tag='hst')
            if b == 8: p("s_mov_b64 exec, -1")
        self.stamp(p, 3)
        self.gap(p, pf, role, False)

    def flag_store(self):
        if self.c['fullf']:
            return [[f"v_mov_b32 v{vTmp}, s{sTag}", f"v_lshlrev_b32 v{vT2+3}, 2, v{vLane}"], W('hst'), "s_mov_b64 exec, 0xffff",
                    f"buffer_store_dword v{vTmp}, v{vT2+3}, {S4(sWS)}, s{sFlag} offen sc1", "s_mov_b64 exec, -1"]
        return [f"v_mov_b32 v{vTmp}, s{sTag}", W('hst'), "s_mov_b64 exec, 1",
                f"buffer_store_dword v{vTmp}, v{vL16}, {S4(sWS)}, s{sFlag} offen sc1", "s_mov_b64 exec, -1"]

    def gap(self, p, pf, role, ssm):
        c = self.c
        if c['verbose']: print("ssm" if ssm else "glu", role, "prefetch ops left in the gap:", len(pf))
        p.add(self.p2_addr(role))
        p(f"global_load_dword v{vDr}, v{vDr}, {S2(pDsk)}\nbuffer_load_dwordx4 {V4(vSR)}, v{vSR}, {S4(sWS)}, 0 offen sc1")
        for n in range(5): p(f"buffer_load_dwordx2 {V2(XF+4*n+2)}, v{vOO}, {S4(sX)}, 0 offen offset:{32*n}")
        ld = f"buffer_load_dword v{vPoll}, v{vFS if role else vFG}, {S4(sWS)}, 0 offen sc1"
        rest = (1, 2, 3) if ssm and c['cstg'] else (2, 3, 4)
        npf = len(pf)
        for _ in range(c['predr'] if ssm else 0):
            if pf: p.add(pf.pop(0))
        if role and not npf:
            for i in rest: p.add(self.c_reads(i, vXR0, vXR1))
        if not (ssm and c['x_eflag']): p.add(self.flag_store())
        self.stamp(p, 4)
        while pf: p.add(pf.pop(0))
        first = ssm and c['pollfirst']
        if first: p(ld)
        if role and npf:
            for i in rest: p.add(self.c_reads(i, vXR0, vXR1))
        for n in range(5):
            for k in range(2): p(f"ds_bpermute_b32 v{TT+4*n+2+k}, v{vBI}, v{vDr} offset:{32*n + 4*k}")
        p(f"v_mul_f32 v{vSR+3}, v{vSR}, v{vSR+2}\nv_lshlrev_b32 v{vOO}, 1, v{vOO}")
        for R in [XF + 4*n for n in range(5)] + [TT + 4*n for n in range(5)]:
            p(f"v_lshlrev_b32 v{R}, 16, v{R+2}\nv_and_b32 v{R+1}, 0xffff0000, v{R+2}\nv_lshlrev_b32 v{R+2}, 16, v{R+3}\nv_and_b32 v{R+3}, 0xffff0000, v{R+3}")
        for k in range(0, 20, 2):
            p(f"v_pk_fma_f32 {V2(OTH+k)}, {V2(XF+k)}, {V2(vSR+2)}, {V2(vSR+2)} op_sel:[0,0,1] op_sel_hi:[1,0,1] neg_lo:[0,0,1] neg_hi:[0,0,1]")
        for k in range(0, 20, 2): p(f"v_pk_mul_f32 {V2(TT+k)}, {V2(TT+k)}, {V2(OTH+k)}")
        self.stamp(p, 7)
        if role and not ssm and c['prewait']:
            p("s_mov_b64 exec, 1"); p(ld); p.add(self.poll_check(ld, f"s{sTag}", vPoll, 8)); p("s_mov_b64 exec, -1")
        if not first: p(ld)
        p.add(self.poll_check(ld, f"s{sTag}", vPoll, c['nap']))
        if c['pbar']: p("s_barrier")
        self.stamp(p, 8)

    def ssm_tail(self, p, role):
        L = vLane
        c = self.c
        pf = self.pf_rest + self.y_rest(True)
        self.stamp(p, 2)
        csr = lambda t: (V2(CS + 2 * (t & 1)), t >> 1)
        E = 160
        vS = 176
        rd = self.rsrd
        def step(T, n_re, n_im, e_re, e_im, p_re, p_im):
            sel = f"op_sel:[{T},0,0] op_sel_hi:[{T},1,1]"
            return [f"v_pk_fma_f32 {V2(n_re)}, {V2(LAM)}, {V2(e_re)}, {V2(p_re)} {sel}",
                    f"v_pk_fma_f32 {V2(n_im)}, {V2(LAM)}, {V2(e_im)}, {V2(p_im)} {sel}",
                    f"v_pk_fma_f32 {V2(n_re)}, {V2(LAM+2)}, {V2(e_im)}, {V2(n_re)} {sel} neg_lo:[1,0,0] neg_hi:[1,0,0]",
                    f"v_pk_fma_f32 {V2(n_im)}, {V2(LAM+2)}, {V2(e_re)}, {V2(n_im)} {sel}"]
        st = {}
        for b in range(9):
            body = []
            for hh in range(2):
                rs = self.rsreg(b) + 2 * hh; u = rs + 4
                for t in range(4):
                    a = acc(b, t) + 2 * hh
                    body.append(f"v_pk_mul_f32 {V2(a)}, {V2(a)}, {V2(rs)}")
                for t in range(4):
                    a = acc(b, t) + 2 * hh; cr, w = csr(t)
                    body.append(f"v_pk_fma_f32 {V2(a)}, {V2(u)}, {cr}, {V2(a)} op_sel:[0,{w},0] op_sel_hi:[1,{w},1] neg_lo:[0,1,0] neg_hi:[0,1,0]")
            if b + 2 < 9: body += rd(b + 2)
            for hh in range(2):
                j = 2 * b + hh
                for T in range(2):
                    pr, pi = acc(b, 2*T) + 2*hh, acc(b, 2*T+1) + 2*hh
                    if j == 0: st[T] = (pr, pi); continue
                    n = E + 8 * (j & 1) + 4 * T
                    body += step(T, n, n + 2, st[T][0], st[T][1], pr, pi); st[T] = (n, n + 2)
            F = {}
            for pos in (4, 20, 12)[:c['s_p1']]:
                if pf: F[pos] = pf.pop(0)
            p.add(interleave(body, F))
        e = E + 8
        p(f"v_swap_b32 v{e+1}, v{e+4}\nv_swap_b32 v{e+3}, v{e+6}")
        E0 = e; EL = e + 4; Wv = E
        p.add(self.cfma(EL, L18, E0, EL))
        p.add(self.cmul(Wv, F36, EL))
        p(f"v_permlane32_swap_b32 v{Wv}, v{Wv+2}\nv_permlane32_swap_b32 v{Wv+1}, v{Wv+3}")
        p(f"v_and_b32 v{vS}, 15, v{L}\nv_lshrrev_b32 v{vS+1}, 4, v{L}")
        p(f"v_pk_add_f32 {V2(Wv)}, {V2(Wv)}, {V2(Wv+2)}")
        p(f"v_lshlrev_b32 v{vS}, 4, v{vS}\nv_lshl_add_u32 v{vS+2}, v{vS+1}, 2, v{vS}")
        p(f"v_permlane16_swap_b32 v{Wv}, v{Wv+1}\nv_add_f32 v{Wv}, v{Wv}, v{Wv+1}")
        p(f"buffer_store_dword v{Wv}, v{vS+2}, {S4(sWS)}, s{sCo} offen sc1")
        self.stamp(p, 3)
        CO = 194
        body = [f"v_mov_b32 v{CO+4}, {OOB}", f"v_lshl_add_u32 v{CO+5}, v{vS+1}, 8, v{vS}", f"s_sub_u32 s{sCo}, s{sCo}, 4096", f"s_movk_i32 s{sK1}, 1024"]
        for n in range(4):
            body += [[f"s_sub_u32 s{sB}, {16 - 4*n}, s{sRg}", f"v_cmp_gt_i32 vcc, s{sB}, v{vS+1}", f"v_cndmask_b32 v{CO+n}, v{CO+5}, v{CO+4}, vcc"]]
        coefp = []
        for b in range(9):
            for hh in range(2):
                for T in range(2):
                    pr, pi = acc(b, 2*T) + 2*hh, acc(b, 2*T+1) + 2*hh
                    s2 = f"op_sel:[{T},0] op_sel_hi:[{T},1]"; s3 = f"op_sel:[{T},0,0] op_sel_hi:[{T},1,1]"
                    t1 = 160 + 4 * T
                    coefp += [f"v_pk_mul_f32 {V2(t1)}, {V2(COEF)}, {V2(pr)} {s2}", f"v_pk_mul_f32 {V2(t1+2)}, {V2(COEF+2)}, {V2(pr)} {s2}",
                             f"v_pk_fma_f32 {V2(pr)}, {V2(COEF+2)}, {V2(pi)}, {V2(t1)} {s3} neg_lo:[1,0,0] neg_hi:[1,0,0]",
                             f"v_pk_fma_f32 {V2(pi)}, {V2(COEF)}, {V2(pi)}, {V2(t1+2)} {s3}"]
        G0, G1, G2, G3 = 144, 148, 152, 156
        for i in range(4):
            body += [f"v_mov_b32 v{G0+i}, v{EL+i}", f"v_mov_b32 v{G1+i}, v{EL+i}"]
        for i in range(4): body.append(f"v_permlane16_swap_b32 v{G0+i}, v{G1+i}")
        for i in range(4):
            body += [f"v_mov_b32 v{G2+i}, v{G0+i}", f"v_mov_b32 v{G3+i}, v{G1+i}"]
        for i in range(4):
            body += [f"v_permlane32_swap_b32 v{G0+i}, v{G2+i}", f"v_permlane32_swap_b32 v{G1+i}, v{G3+i}"]
        body += self.cfma(G1, L36, G0, G1) + self.cfma(G2, L36, G1, G2)
        PRE = 180
        body += [f"v_mov_b32 v{G3+i}, 0" for i in range(4)]
        body += self.csel(G3, G3, G0, sQ1) + self.csel(G3, G3, G1, sQ2) + self.csel(G3, G3, G2, sQ3)
        body += self.cmul(PRE, COEF, G3)
        E0C = 184
        body += self.cmul(E0C, COEF, E0)
        P72, P108, P144, P288, P432 = 144, 148, 152, 156, 160
        G36, F144, L576 = 236, 240, 188
        body += self.cmul(P72, L36, L36) + self.cmul(P108, P72, L36) + self.cmul(P144, P72, P72) + self.cmul(P288, P144, P144)
        body += self.cmul(P432, P288, P144) + self.cmul(L576, P288, P288)
        body += self.cone(164)
        body += self.csel(F144, P432, P288, sQ1) + self.csel(F144, F144, P144, sQ2) + self.csel(F144, F144, 164, sQ3)
        body += self.csel(164, 164, L36, sQ1) + self.csel(164, 164, P72, sQ2) + self.csel(164, 164, P108, sQ3)
        body += self.cmul(G36, COEF, 164)
        AD = 200; ID = 192
        body += [f"v_bfe_u32 v164, v{L}, 2, 2", f"v_and_b32 v166, 3, v{L}", f"v_mov_b32 v169, {OOB}",
                 [f"s_mul_i32 s{sA}, s{sRg}, 9216", f"s_cmp_eq_u32 s{sRg}, 14", f"s_cselect_b32 s{sB}, 0, 4", f"v_cmp_lt_u32 vcc, s{sB}, v164",
                  f"v_add_u32 v165, s{sA}, v{vL16}", f"v_cndmask_b32 v{AD}, v165, v169, vcc"]]
        for j in range(1, 9):
            body += [[f"s_cmp_eq_u32 s{sRg}, 14", f"s_cselect_b32 s{sA}, {64 if j & 3 else 1024 - 192}, s{sK1}", f"v_add_u32 v{AD+j}, s{sA}, v{AD+j-1}"]]
        body += [f"v_and_b32 v168, 1, v{L}", f"v_lshlrev_b32 v168, 4, v168", f"v_mov_b32 v169, 0x3f80", f"v_lshlrev_b32 v168, v168, v169",
                 f"v_cmp_eq_u32 vcc, v164, v{vS+1}", f"v_cndmask_b32 v168, 0, v168, vcc", f"v_cmp_gt_u32 vcc, 2, v166",
                 f"v_cndmask_b32 v{ID}, 0, v168, vcc", f"v_sub_u32 v{ID+1}, v168, v{ID}"]
        body += coefp
        CL = 144
        lb = [f"buffer_load_dwordx4 {V4(CL+4*n)}, v{CO+n}, {S4(sWS)}, s{sCo} offen offset:{1024*n} sc1" for n in range(4)]
        F = {}
        pos = 4; cut = len(body) - c['s_lb']
        while pf and pos < cut - c['s_gap']: F[pos] = pf.pop(0); pos += c['s_sh']
        F[cut - 1] = lb
        for i in range(c['s_al']):
            if pf: F[cut + 6 + i * (c['s_lb'] - 10) // c['s_al']] = pf.pop(0)
        p.add(interleave(body, F))
        lp = self.lab('lb'); ok = self.lab('lbok')
        chk = [f"v_max3_u32 v164, v{CL}, v{CL+1}, v{CL+2}"] + [f"v_max3_u32 v164, v164, v{CL+i}, v{CL+i+1}" for i in range(3, 15, 2)]
        chk += [f"v_max_u32 v164, v164, v{CL+15}", "v_cmp_eq_u32 vcc, -1, v164"]
        p.add(chk)
        if c['stamps']: self.stamp(p, 13)
        p(f"s_branch {ok}" if c['x_nolb'] else f"s_cbranch_vccz {ok}")
        slow = [f"s_mov_b32 s{sSpin}, 0x10000", f"{lp}:"] + lb + ["s_waitcnt vmcnt(0)"] + chk + \
               [f"s_sub_u32 s{sSpin}, s{sSpin}, 1", f"s_cmp_eq_u32 s{sSpin}, 0", f"s_cbranch_scc1 {ok}", f"s_cbranch_vccnz {lp}"]
        p.add([self.optI(x) for x in slow])
        p(f"{ok}:")
        self.stamp(p, 5)
        for n in range(1, 4): p.add(self.cfma(CL + 4*n, L576, CL + 4*(n-1), CL + 4*n))
        p.add(self.cmul(CL, F144, CL + 12))
        for sw in ("v_permlane32_swap_b32", "v_permlane16_swap_b32"):
            p(f"v_mov_b64 {V2(CL+4)}, {V2(CL)}\nv_mov_b64 {V2(CL+6)}, {V2(CL+2)}")
            for i in range(4): p(f"{sw} v{CL+i}, v{CL+4+i}")
            p(f"v_pk_add_f32 {V2(CL)}, {V2(CL)}, {V2(CL+4)}\nv_pk_add_f32 {V2(CL+2)}, {V2(CL+2)}, {V2(CL+6)}")
        p.add(self.cfma(PRE, G36, CL, PRE))
        p.add(self.cfma(E0C, L18, PRE, E0C))
        p(f"v_swap_b32 v{PRE+1}, v{PRE+4}\nv_swap_b32 v{PRE+3}, v{PRE+6}")
        st = {0: (PRE, PRE + 2), 1: (PRE + 4, PRE + 6)}
        PK = 144; MO = 152; SD = 168
        def dsrc(n, t): return (acc(n, t), acc(n, t) + 2) if n < 9 else (acc(n - 9, t) + 1, acc(n - 9, t) + 3)
        def stageA(j, ks=(0, 1)):
            o = []; pk = PRE if j == 4 else PK
            for t in range(4):
                ng = '-' if t & 1 else ''
                for k in ks:
                    a, b_ = dsrc(2*j + k, t)
                    o.append(f"v_cvt_pk_bf16_f32 v{pk+2*t+k}, {ng}v{a}, {ng}v{b_}")
            if 0 in ks:
                for t in range(4):
                    o.append(f"v_mfma_f32_16x16x16_bf16 {V4(MO+4*t)}, {V2(pk+2*t)}, {V2(ID)}, 0")
            return o
        def stageB(j):
            o = []
            for m in range(2):
                for T in range(2):
                    s_ = MO + 4 * (2*T + m)
                    o += [f"v_cvt_pk_bf16_f32 v{SD+4*m+2*T}, v{s_}, v{s_+1}", f"v_cvt_pk_bf16_f32 v{SD+4*m+2*T+1}, v{s_+2}, v{s_+3}"]
                o.append(I(f"buffer_store_dwordx4 {V4(SD+4*m)}, v{AD+j}, {S4(sWS)}, s{sHo if m == 0 else sC} offen sc1", 'hste' if (0, 5, 1, 6, 2, 7, 3, 4, 8).index(j) < c['x_eflag'] else 'hst'))
            return o
        p(f"s_add_u32 s{sC}, s{sHo}, {20*HS}")
        done = {1: [0], 3: [1], 5: [2], 7: [3], 2: [5], 4: [6], 6: [7], 8: [4, 8]}
        pend = None
        for b in range(9):
            for hh in range(2):
                for T in range(2):
                    pr, pi = acc(b, 2*T) + 2*hh, acc(b, 2*T+1) + 2*hh
                    p.add(step(T, pr, pi, st[T][0], st[T][1], pr, pi)); st[T] = (pr, pi)
            if b == 0: p.add(stageA(4, (1,)))
            if c['x_eflag'] and b == c['x_efat']:
                p.add([f"v_mov_b32 v{vTmp}, s{sTag}", f"v_lshlrev_b32 v{vPoll}, 2, v{vLane}", W('hste'), "s_mov_b64 exec, 0xffff",
                       f"buffer_store_dword v{vTmp}, v{vPoll}, {S4(sWS)}, s{sFlag} offen sc1", "s_mov_b64 exec, -1"])
            for j in done.get(b, []):
                if pend is not None: p.add(stageB(pend))
                p.add(stageA(j, (0,) if j == 4 else (0, 1))); pend = j
        p.add(stageB(pend))
        self.stamp(p, 6)
        self.gap(p, pf, role, True)

    def flag_offsets(self, p, reg, div, nper, first_sgpr_expr, nl, base):
        m = {140: 1873, 144: 1821}[div]
        p(f"s_lshl_b32 s{sA}, s{sRt}, 7\ns_add_u32 s{sB}, s{sA}, 127\ns_mul_i32 s{sA}, s{sA}, {m}\ns_lshr_b32 s{sA}, s{sA}, 18\ns_mul_i32 s{sB}, s{sB}, {m}\ns_lshr_b32 s{sB}, s{sB}, 18")
        p(f"s_mul_i32 s{sA}, s{sA}, {nper}\ns_mul_i32 s{sB}, s{sB}, {nper}\ns_sub_u32 s{sB}, s{sB}, {nl}")
        p(first_sgpr_expr)
        p(f"v_min_u32 v0, {2*nl-1}, v{vLane}\nv_mov_b32 v1, s{sA}\nv_mov_b32 v2, s{sB}\nv_cmp_gt_u32 vcc, {nl}, v0\nv_cndmask_b32 v1, v2, v1, vcc")
        p(f"v_add3_u32 v0, v0, v1, s{sC}\nv_lshlrev_b32 v0, {FSH}, v0\nv_add_u32 v{reg}, {base}, v0")

    def p2_addr(self, role):
        L = vLane; a, b_, d = vT2, vT2 + 1, vT2 + 2
        def swz(): return [f"v_lshl_add_u32 v{d}, v{b_}, 2, v{a}", f"v_and_b32 v{d}, 15, v{d}", f"v_lshlrev_b32 v{d}, 4, v{d}", f"v_lshl_add_u32 v{d}, v{b_}, 8, v{d}"]
        o = [f"v_and_b32 v{a}, 15, v{L}", f"v_lshrrev_b32 v{b_}, 4, v{L}"] + swz() + [f"v_add_u32 v{vWA}, s{sCslot}, v{d}"]
        o += [f"v_lshrrev_b32 v{a}, 2, v{L}", f"v_and_b32 v{b_}, 3, v{L}"] + swz() + [f"v_add_u32 v{vRA[3]}, s{sCslot}, v{d}"]
        for t in range(3):
            o += [f"s_sub_u32 s{sA}, s{sWave}, {1 + t}", f"s_and_b32 s{sA}, s{sA}, 3", f"s_mul_i32 s{sA}, s{sA}, 10240", f"v_add_u32 v{vRA[t]}, s{sA}, v{d}"]
        o += [f"s_lshl_b32 s{sA}, s{sRt}, 3", f"s_add_u32 s{sB}, s{sA}, s{sCt}", f"s_lshl_b32 s{sB}, s{sB}, 3", f"s_add_u32 s{sB}, s{sB}, s{sWave}",
              f"s_mul_i32 s{sEx}, s{sB}, 5120", f"s_add_u32 s{sEx}, s{sEx}, {EX}", f"s_lshl_b32 s{sExF}, s{sB}, 7", f"s_add_u32 s{sExF}, s{sExF}, {EXF}",
              f"s_mov_b32 s{sK2}, {HS}", f"s_mov_b32 s{sK1}, {NLOG2E}",
              f"s_add_u32 s{sA}, s{sA}, s{sWave}", f"s_add_u32 s{sA}, s{sA}, {4 * (1 - role)}"]
        o += [f"s_mul_i32 s{sB}, s{sA}, 57", f"s_lshr_b32 s{sB}, s{sB}, 9",
              f"s_mul_i32 s{sB}, s{sB}, 9", f"s_sub_u32 s{sB}, s{sA}, s{sB}", f"s_mul_i32 s{sB}, s{sB}, 12",
              [f"s_cmp_lt_u32 s{sA}, 126", f"s_cselect_b32 s{sB}, s{sB}, 0", f"s_cselect_b32 s71, 32, 0"],
              f"v_lshl_add_u32 v{d}, s{sA}, 4, v{a}", f"v_lshlrev_b32 v{vSR}, 4, v{d}",
              f"v_lshrrev_b32 v{vOO}, 4, v{L}", f"v_mad_u32_u24 v{d}, v{vOO}, s71, v{d}", f"v_subrev_u32 v{d}, s{sB}, v{d}", f"v_mul_u32_u24 v{d}, 1280, v{d}",
              f"s_mul_i32 s{sB}, s{sCt}, 160", f"v_lshlrev_b32 v{vBI}, 3, v{b_}", f"v_add3_u32 v{vOO}, v{d}, v{vBI}, s{sB}",
              f"v_min_u32 v{d}, 39, v{L}", f"v_lshl_add_u32 v{vDr}, v{d}, 2, s{sB}"]
        return o

    def phase2(self, p, role):
        L = vLane; c = self.c
        LOOK = c['look']; NK = 10 if role else 12; P = P2
        steps = [(ph, t) for ph in range(2) for t in range(4)]
        frag = [(ph, t, k) for (ph, t) in steps for k in range(NK)]; NF = len(frag)
        def aload(a):
            ph, t, k = frag[a]; pre = []
            if k == 0:
                if a == 0:
                    pre += [f"s_mul_i32 s{sD}, s{sWave}, {NK*HS}", f"s_lshl_b32 s{sO2}, s{sRt}, 13", f"s_add_u32 s{sD}, s{sD}, s{sO2}",
                            f"s_add_u32 s{sD}, s{sD}, {H + role*(48*HS + 4096)}"]
                elif t == 0: pre += [f"s_{'sub' if role else 'add'}_u32 s{sD}, s{sD}, 4096"]
                pre += [f"s_add_u32 s{sO2}, s{sWave}, {1 + t}", f"s_and_b32 s{sO2}, s{sO2}, 3", f"s_lshl_b32 s{sO2}, s{sO2}, 10", f"s_add_u32 s{sO2}, s{sO2}, s{sD}"]
            else:
                pre = [f"s_add_u32 s{sO2}, s{sO2}, s{sK2}"]
            return pre + [f"buffer_load_dwordx4 {V4(AR + 4*(a % NR))}, v{vL16}, {S4(sWS)}, s{sO2} offen sc1"]
        for a in range(LOOK): p.add(aload(a))
        mf = []
        for a, (ph, t, k) in enumerate(frag):
            for nb in range(5):
                d = V4(P[t & 1] + 4*nb)
                mf.append(f"v_mfma_f32_16x16x32_bf16 {d}, {A4(20*k + 4*nb)}, {V4(AR + 4*(a % NR))}, {'0' if k == 0 else d}")
        FL = Filler(len(mf), reserved=range(4, len(mf), 5))
        g0 = {}
        for a, (ph, t, k) in enumerate(frag):
            if k == 0: g0[(ph, t)] = 5 * a
            if c['stamps'] == 3 and k == 0:
                q = Prog(); self.stamp(q, 20 + 4 * ph + t); FL.at(5 * a, q.L)
            if c['stamps'] == 4 and 0 <= a - c['sfrom'] < 12:
                q = Prog(); self.stamp(q, 20 + a - c['sfrom']); FL.at(5 * a, q.L)
            if a + LOOK < NF and not c['x_noa']: FL.at(5 * a + 1, aload(a + LOOK))
        def wr(t, nb): return I(f"ds_write_b128 v{vWA}, {V4(P[t & 1] + 4*nb)} offset:{(t & 1)*5120 + nb*1024}", 'xw')
        def rd(t, n, dst): return f"ds_read_b128 {V4(dst + 4*n)}, v{vRA[t]} offset:{(t & 1)*5120 + n*1024}"
        gend = {}
        for (ph, t) in steps[1:]:
            pp, pt = (ph, t - 1) if t else (0, 3)
            S, IN = SUM[pp], SUM[1 - pp]; z = g0[(ph, t)]
            if c['w64']:
                for k_, g in enumerate((2, 3, 5, 7, 8, 10, 12, 13, 15, 17)):
                    FL.at(z + g, I(f"ds_write_b64 v{vWA}, {V2(P[pt & 1] + 2*k_)} offset:{(pt & 1)*5120 + (k_ >> 1)*1024 + (k_ & 1)*8}", 'xw'))
            else:
                for nb, g in enumerate((3, 7, 10, 13, 17)): FL.at(z + g, wr(pt, nb))
            rg = (23, 24, 25, 27, 28) if pt < 3 else (4, 9, 14, 18, 19)
            FL.at(z + (22 if pt < 3 else 45), [W('xw', 'xr'), "s_barrier"])
            for n_, g in enumerate(rg): FL.at(z + g, I(rd(pt, n_, S if pt == 0 else IN), 'xr'))
            if pt and (ph, t) != (1, 3):
                gend[(ph, t)] = FL.stream([f"v_add_f32 v{S+i}, v{S+i}, v{IN+i}" for i in range(20)], z + (32 if pt < 3 else 22))
                assert gend[(ph, t)] < z + 5 * NK + 3
        S = SUM[0]; g = gend[(1, 0)]
        def xoff(n): return f"v{vL16 if n < 4 else vL16b}, {S4(sWS)}, s{sA} offen offset:{1024*(n & 3) if n < 4 else 0} sc1"
        if role == 0:
            ch = [[f"v_mul_f32 v{GV+e}, s{sK1}, v{S+e}", f"v_exp_f32 v{GV+e}, v{GV+e}", f"v_add_f32 v{GV+e}, 1.0, v{GV+e}",
                   f"v_rcp_f32 v{GV+e}, v{GV+e}", f"v_mul_f32 v{GV+e}, v{S+e}, v{GV+e}"] for e in range(20)]
            g = max(FL.dag(ch, g + 1, g0[(1, 2)] + 21)); S = GV
        FL.at(g, [f"s_add_u32 s{sA}, s{sEx}, {role * 20480}"])
        for n_ in range(5): g = FL.fit(I(f"buffer_store_dwordx4 {V4(S+4*n_)}, " + xoff(n_), 'xst'), g + c['xsp'], g + c['xsp'] + 4)
        gst = g
        if role: assert g < g0[(1, 2)] + 20
        g = g + 5 * c['xflag']
        FL.at(g - 1, [f"s_add_u32 s{sB}, s{sExF}, {role * 512}", f"v_mov_b32 v{vTmp}, s{sTag}"])
        g = FL.fit([W('xst'), "s_mov_b64 exec, 1", f"buffer_store_dword v{vTmp}, v{vL16}, {S4(sWS)}, s{sB} offen sc1", "s_mov_b64 exec, -1"], g, g + 4)
        ldx = f"buffer_load_dword v{vPoll}, v{vT2}, {S4(sWS)}, s{sC} offen sc1"
        assert g < len(mf) - 1
        late = role == 0 and c['dpoll'] >= 0
        gp = max(gst + 2, len(mf) - 5 * (c['dpoll'] if late else c['xpoll']))
        FL.at(gp - 1, [f"s_add_u32 s{sC}, s{sExF}, {(1 - role) * 512}", f"s_add_u32 s{sA}, s{sEx}, {(1 - role) * 20480}", f"v_mov_b32 v{vT2}, 0"])
        gp = FL.fit(ldx, gp, gp + 4)
        chk = [f"v_cmp_ne_u32 {S2(sMask)}, s{sTag}, v{vPoll}", [f"s_cmp_eq_u64 {S2(sMask)}, 0", f"s_cselect_b32 s{sA}, s{sA}, {OOB}"]]
        oth = [f"buffer_load_dwordx4 {V4(OTH+4*n_)}, " + xoff(n_) for n_ in range(5)]
        if not late:
            g = FL.fit(chk[0], gp + 5 * c['xchk'], gp + 5 * c['xchk'] + 3)
            g = FL.at(g + 1, chk[1])
            for x in oth: g = FL.fit(x, g + 2, g + 6)
            assert g < len(mf) - 1
        if c['verbose']: print("role", role, "partner loads end at gap", g, "of", len(mf), "overflow", sum(max(0, FL.time(g_) - 16) for g_ in range(len(mf))))
        p.add(interleave(mf, FL.F))
        self.stamp(p, 9)
        S = SUM[1]; IN = SUM[0]; I3 = AR
        tq = [f"v_pk_add_f32 {V2(S+k)}, {V2(S+k)}, {V2(IN+k)}" for k in range(0, 20, 2)]
        if role: tq += [f"v_pk_add_f32 {V2(S+k)}, {V2(S+k)}, {V2(TT+k)}" for k in range(0, 20, 2)]
        k = (len(tq) + 4) // 5
        for nb in range(5):
            p.add(tq[:k]); tq = tq[k:]
            p.add([wr(3, nb), rd(3, nb, I3)])
        if role == 0:
            sl = []
            for k in range(0, 20, 2): sl += [f"v_pk_add_f32 {V2(S+k)}, {V2(S+k)}, {V2(I3+k)}", f"v_pk_mul_f32 {V2(GV+k)}, {V2(S+k)}, s[{sK1}:{sK1+1}] op_sel_hi:[1,0]"]
            sl += [f"v_exp_f32 v{GV+k}, v{GV+k}" for k in range(20)]
            sl += [f"v_pk_add_f32 {V2(GV+k)}, {V2(GV+k)}, 1.0 op_sel_hi:[1,0]" for k in range(0, 20, 2)]
            sl += [f"v_rcp_f32 v{GV+k}, v{GV+k}" for k in range(20)]
            sl += [f"v_pk_mul_f32 {V2(S+k)}, {V2(S+k)}, {V2(GV+k)}" for k in range(0, 20, 2)]
            p.add(sl[:c['dchk']])
            if late: p.add(chk + oth)
            p.add(sl[c['dchk']:])
        ok = self.lab('xok'); lp = self.lab('xspin'); go = self.lab('xgo')
        p(f"s_cmp_eq_u64 {S2(sMask)}, 0\ns_cbranch_scc1 {ok}")
        slow = [f"s_mov_b32 s{sSpin}, 0x10000", f"s_add_u32 s{sA}, s{sEx}, {(1 - role) * 20480}", f"{lp}:", ldx, "s_waitcnt vmcnt(0)", f"v_cmp_ne_u32 vcc, s{sTag}, v{vPoll}",
                f"s_sub_u32 s{sSpin}, s{sSpin}, 1", f"s_cmp_eq_u32 s{sSpin}, 0", f"s_cbranch_scc1 {go}", f"s_cbranch_vccz {go}", f"s_sleep {c['xnap']}", f"s_branch {lp}", f"{go}:"] + oth + ["s_waitcnt vmcnt(0)"]
        p.add([self.optI(x) for x in slow]); p(f"{ok}:")
        self.stamp(p, 10)
        for n_ in range(5):
            r = 4 * n_
            for k in (0, 2):
                if role: p(f"v_pk_add_f32 {V2(S+r+k)}, {V2(S+r+k)}, {V2(I3+r+k)}")
                else: p(f"v_pk_add_f32 {V2(OTH+r+k)}, {V2(OTH+r+k)}, {V2(TT+r+k)}")
            for k in (0, 2): p(f"v_pk_fma_f32 {V2(XF+r+k)}, {V2(S+r+k)}, {V2(OTH+r+k)}, {V2(XF+r+k)}")
            p(f"buffer_store_dwordx4 {V4(XF+r)}, v{vOO}, {S4(sU)}, 0 offen offset:{64*n_} {('', 'nt', 'sc1', 'sc0 sc1')[c['outmode']]}")
        self.stamp(p, 11)
        self.stamp_flush(p)
        if self.c['endspin']:
            l = self.lab('es')
            if self.c['probe'] < 0: p("s_mov_b32 s101, 0")
            p(f"s_add_u32 s101, s101, {self.c['endspin']*100}\n{l}:\ns_memrealtime {S2(sSt)}\ns_waitcnt lgkmcnt(0)\ns_sub_u32 s{sSt}, s{sSt}, s100\ns_cmp_lt_u32 s{sSt}, s101\ns_cbranch_scc1 {l}")
        p("s_endpgm")

    def build(self, code_bytes):
        paths = {}
        for ssm, role in ((0, 0), (0, 1), (1, 1)):
            nm = 'GS'[ssm] + 'DY'[role]
            p = Prog()
            self.entry(p, code_bytes)
            p("L_mark:")
            self.prologue(p, ssm)
            self.mainloop(p, ssm, role)
            (self.ssm_tail if ssm else self.glu_tail)(p, role)
            self.phase2(p, role)
            Lf = finalize(p)
            k = [i for i, x in enumerate(Lf) if x.text == 'L_mark:'][0]
            k2 = [i for i, x in enumerate(Lf) if x.text == 'L_split:'][0]
            paths[nm] = (text_of(Lf[:k]), text_of(Lf[k+1:k2]), text_of(self.with_pads(Lf[k2+1:], nm)))
        assert paths['GD'][0] == paths['SY'][0] and paths['GD'][:2] == paths['GY'][:2]
        a, b = ('SY', 'GD') if self.c['sfirst'] else ('GD', 'SY')
        body = paths[a][0] + paths[a][1] + "L_second:\n" + paths[b][1] + "L_end:\n    s_endpgm\n"
        for nm in ('SY', 'GD', 'GY'):
            body += f".p2align 12\nL_main{nm}:\n" + paths[nm][2]
        return body

    def with_pads(self, L, nm):
        if not self.c['pads']: return L
        sz = inst_sizes(L); out = []; off = 0; k = 0
        for i, n in zip(L, sz):
            if off >= 4096 * k and i.kind != 'label':
                out += [I(f"L_pad{nm}{k}:"), k]; off += 4; k += 1
            out.append(i); off += n
        assert k >= 4
        return [I(f"s_cbranch_execz " + (f"L_pad{nm}{x+4}" if x + 4 < k else f"L_ret{nm[0]}")) if isinstance(x, int) else x for x in out]

def inst_sizes(L):
    import subprocess, tempfile
    with tempfile.TemporaryDirectory() as d:
        open(d + "/k.s", "w").write('.amdgcn_target "amdgcn-amd-amdhsa--gfx950"\n.text\n' + text_of(L))
        r = subprocess.run(["clang", "-x", "assembler", "-target", "amdgcn-amd-amdhsa", "-mcpu=gfx950", "-c", d + "/k.s", "-o", d + "/k.o"], capture_output=True, text=True)
        assert r.returncode == 0, r.stderr[:3000]
        r = subprocess.run(["llvm-objdump", "-d", "-z", "--mcpu=gfx950", d + "/k.o"], capture_output=True, text=True)
    enc = [4 * len(re.findall(r'\b[0-9A-F]{8}\b', ln.split('//')[1].split(':', 1)[1].split('<')[0])) for ln in r.stdout.split('\n') if '//' in ln]
    n = sum(1 for i in L if i.kind != 'label'); assert len(enc) == n, (len(enc), n)
    it = iter(enc)
    return [0 if i.kind == 'label' else next(it) for i in L]

HEADER = open(os.path.join(os.path.dirname(os.path.abspath(__file__)), "..", "cdna_kernels", NAME + ".s.ref")).read().split("; Override launch")[0] \
    if os.path.exists(os.path.join(os.path.dirname(os.path.abspath(__file__)), "..", "cdna_kernels", NAME + ".s.ref")) else ""

def make(cfg, code_bytes=61440):
    body = Gen(cfg).build(code_bytes)
    return HEADER + f"""; One persistent launch: 256 workgroups x 4 waves, one per CU (generated by gen/k6.py).
; @launch grid=(256,1,1) block=(256,1,1) lds=163840
.amdgcn_target "amdgcn-amd-amdhsa--gfx950"
.text
.globl {KERN}
.p2align 8
.type {KERN},@function
{KERN}:
{body}L_code_end:
.section .rodata,"a"
.p2align 6
.amdhsa_kernel {KERN}
  .amdhsa_next_free_vgpr 512
  .amdhsa_next_free_sgpr 102
  .amdhsa_accum_offset 256
  .amdhsa_group_segment_fixed_size 0
  .amdhsa_kernarg_size 128
  .amdhsa_user_sgpr_count 2
  .amdhsa_user_sgpr_kernarg_segment_ptr 1
  .amdhsa_system_sgpr_workgroup_id_x 1
  .amdhsa_float_denorm_mode_32 3
.end_amdhsa_kernel
"""

def code_size(txt):
    import subprocess, tempfile
    with tempfile.TemporaryDirectory() as d:
        open(d + "/k.s", "w").write(txt)
        r = subprocess.run(["clang", "-x", "assembler", "-target", "amdgcn-amd-amdhsa", "-mcpu=gfx950", "-c", d + "/k.s", "-o", d + "/k.o"], capture_output=True, text=True)
        assert r.returncode == 0, r.stderr[:3000]
        r = subprocess.run(["llvm-readelf", "-S", d + "/k.o"], capture_output=True, text=True)
        for ln in r.stdout.split('\n'):
            if ' .text' in ln:
                f = ln.split(']')[1].split()
                return int(f[4], 16)

if __name__ == "__main__":
    cfg = dict(CFG)
    out = None
    for a in sys.argv[1:]:
        if '=' in a:
            k, v = a.split('='); cfg[k] = int(v, 0)
        else: out = a
    n = code_size(make(cfg))
    txt = make(cfg, n)
    n2 = code_size(txt)
    assert abs(n2 - n) <= 64, (n, n2)
    open(out or "k.s", "w").write(txt)
    print("code bytes", n2, "source bytes", len(txt))
```

```python
import sys, os, re
sys.path.insert(0, os.path.dirname(os.path.abspath(__file__)))
from fw import *

NAME = "recurrent_scan__ssm_conv_s5__glu_gated_glu__prompt"
KERN = NAME + "_kernel"

CFG = dict(
    rot=4,
    poll_stage=3,
    wd_mid=4,
    wd_late=18,
    g_epi=1,
    s_p1=2,
    s_sh=10,
    s_p2=0, s_al=14, s_gap=30, s_pb=7,
    s_lb=144,
    pub=0,
    c4loop=1,
    x_nofin=0, x_nobg=0, aflag=1, bw=0, x_nodma=0, x_nobar=0, x_noa=0, cyc=0, map2=0,
    order=0,
    wtouch=0,
    wdlate=0,
    g_post=30, g_rtt=8, snake=1,
    tlb=0, rot3=0, rotc=0, x_plans=0, cfirst=0, wpipe=0, wp0=0, wp1=0, wp2=2, wp3=4, cstage=2, x_noside=0, imap=1, sfirst=0, x_nolb=0, x_lin=0, smask=0x4522, early=0, e_n=2, e_poll=3, e_chk=5, e_flag=12, w64=1, lead_bg=4, sfrom=68, pads=1, look=10, spoll=6, maxbg=10, verbose=0,
    head=3,
    touch=1,
    outmode=1, warm=1, l2n=0, l2c=1, l2s=6, l2w=0, l2g=0, xhalf=0, chain=1, stlate=0, fullf=1,
    pre1=6,
    stamps=0,
    rot2=0,
    endspin=0,
    probe=-1,
    chase=0,
)

STATG = 0
CSUM = STATG + 2368 * 16
ARR = CSUM + 320 * 16
EPOCH = ARR + 4096
STATS = EPOCH + 256
FLAGG = (STATS + 18 * 1152 + 255) // 256 * 256
FLAGS = FLAGG + 16 * 48 * 64
CARRY = FLAGS + 16 * 20 * 64
WD = (CARRY + 320 * 256 + 4095) // 4096 * 4096
HS = 140 * 1024
H = WD + 8 * 52 * 5 * 1024
WS_END = H + 88 * HS
STAMP = WS_END
WS_SIZE = WS_END + 1024 * 256
OOB = 0x7ff00000
PADOFF = 0

STG = 51200; XIMG = 18432
SPARE = 3 * STG
L_WDST = SPARE
L_DUMMY = SPARE + 8192
L_STAT = SPARE

pX, pLre, pLim, pBre, pBim, pCre, pCim, pLdt = 4, 6, 8, 10, 12, 14, 16, 18
pDsk, pBx, pWg, pWu, pWd, pOut, pDbg, pWs = 20, 22, 24, 26, 28, 30, 32, 34
sX, sW0, sW1, sWS, sT, sU = 36, 40, 44, 48, 52, 56
sWave, sCg, sRg, sRt, sCt = 60, 61, 62, 63, 64
sOffX, sOffW, sChunk, sM0X, sM0W = 65, 66, 67, 68, 69
sM0H = 70
sA, sB, sC, sD = 73, 74, 75, 76
sK2, sO2, sCo, sSpin = 77, 78, 79, 80
sCslot = 81
sTag = 82
sPar = 83
sMask = 84
sQ1, sQ2, sQ3 = 86, 88, 90
sSt = 92
sHo = 94
sFlag = 95
sRot2 = 96
sRotC = 97
sCw = 3
sK1 = 70
sI = 71
sKC = 67

def S4(r): return f"s[{r}:{r+3}]"
def S2(r): return f"s[{r}:{r+1}]"
def V4(r): return f"v[{r}:{r+3}]"
def V2(r): return f"v[{r}:{r+1}]"
def A4(r): return f"a[{r}:{r+3}]"

def acc(b, t): return 16 * b + 4 * t
XR = 144; NXR = 6
def xr(B): return XR + 4 * (B % NXR)
def wb(par, t): return 168 + 16 * par + 4 * t
vXD = 200; vWDm = 205
vXR0, vXR1, vWR0, vWR1 = 209, 210, 211, 212
vL16, vL16b, vLane = 213, 214, 215
LAM, COEF, L18, L36, F36, CS = 216, 220, 224, 228, 232, 244
GST, GK1, GHA = 216, 234, 244
vWT = 243
vJ0 = 244
AR, NR = 0, 16
vWA, vOO, vBI, vDr, vCR0, vCR1 = 204, 207, 208, 209, 210, 211
vRA = (205, 206, 212, 214)
vT2, vSR, vFG, vCpat, vFS = 236, 244, 248, 249, 250
vPoll, vCD0, vCD1, vTmp = 252, 253, 254, 255

LOG2E = 0x3fb8aa3b
NLOG2E = 0xbfb8aa3b
INV2PI = 0x3e22f983
INV640 = 0x3acccccd
EPS = 0x3727c5ac

class Seq:
    def __init__(self): self.items = []
    def __call__(self, text, tag=None): self.items.append([I(x.strip(), tag) for x in text.strip().split('\n')])
    def add(self, l): self.items.append(list(l))

class Gen:
    def __init__(self, cfg):
        self.c = cfg
        self.nlab = 0
        self.nstamp = 0
        self.light = {}

    def lab(self, s):
        self.nlab += 1
        return f"L_{s}_{self.nlab}"

    def stamp(self, p, idx):
        if self.c['probe'] == idx:
            p(f"s_memrealtime {S2(sSt)}\ns_waitcnt lgkmcnt(0)\ns_sub_u32 s101, s{sSt}, s100")
        if not self.c['stamps']: return
        if idx >= 20:
            r = [4, 6, 8, 10, 12, 14, 16, 18, 22, 24, 26, 28, 30, 32, 34][idx - 20]
            i = I(f"{'s_memtime' if self.c['cyc'] else 's_memrealtime'} {S2(r)}"); i.kind = 'ctl'; i.wr = set(); i.rd = set()
            p.L.append(i); self.light[idx] = r
            return
        p(f"{'s_memtime' if (idx >= 20 and self.c['cyc']) else 's_memrealtime'} {S2(sSt)}")
        if idx < 20: p(f"s_memtime s[34:35]" if idx else "s_memtime s[90:91]")
        p("s_waitcnt lgkmcnt(0)")
        p(f"v_writelane_b32 v251, s{sSt}, {idx}")
        if idx < 20: p(f"v_writelane_b32 v251, {'s34' if idx else 's90'}, {40 + idx}")

    def stamp_flush(self, p):
        if not self.c['stamps']: return
        p(f"s_lshl_b32 s{sA}, s2, 2\ns_add_u32 s{sA}, s{sA}, s{sWave}\ns_lshl_b32 s{sA}, s{sA}, 8\ns_add_u32 s{sA}, s{sA}, {STAMP}")
        p(f"v_writelane_b32 v251, s100, 39")
        p("s_waitcnt lgkmcnt(0)")
        for k_, r_ in self.light.items(): p(f"v_writelane_b32 v251, s{r_}, {k_}")
        p(f"v_lshlrev_b32 v250, 2, v{vLane}")
        p(f"buffer_store_dword v251, v250, {S4(sWS)}, s{sA} offen")

    def cmul(self, d, a, b):
        return [f"v_pk_mul_f32 {V2(d)}, {V2(a)}, {V2(b)}",
                f"v_pk_mul_f32 {V2(d+2)}, {V2(a)}, {V2(b+2)}",
                f"v_pk_fma_f32 {V2(d)}, {V2(a+2)}, {V2(b+2)}, {V2(d)} neg_lo:[1,0,0] neg_hi:[1,0,0]",
                f"v_pk_fma_f32 {V2(d+2)}, {V2(a+2)}, {V2(b)}, {V2(d+2)}"]
    def cfma(self, d, a, b, c):
        return [f"v_pk_fma_f32 {V2(d)}, {V2(a)}, {V2(b)}, {V2(c)}",
                f"v_pk_fma_f32 {V2(d+2)}, {V2(a)}, {V2(b+2)}, {V2(c+2)}",
                f"v_pk_fma_f32 {V2(d)}, {V2(a+2)}, {V2(b+2)}, {V2(d)} neg_lo:[1,0,0] neg_hi:[1,0,0]",
                f"v_pk_fma_f32 {V2(d+2)}, {V2(a+2)}, {V2(b)}, {V2(d+2)}"]
    def csel(self, d, f, t, mask):
        return [f"v_cndmask_b32 v{d+i}, v{f+i}, v{t+i}, {S2(mask)}" for i in range(4)]
    def cone(self, d):
        return [f"v_mov_b32 v{d}, 1.0", f"v_mov_b32 v{d+1}, 1.0", f"v_mov_b32 v{d+2}, 0", f"v_mov_b32 v{d+3}, 0"]
    def bfr(self, d, a):
        return [f"v_cvt_pk_bf16_f32 v{d}, v{a}, v{a}", f"v_lshlrev_b32 v{d}, 16, v{d}"]

    def entry(self, p, code_bytes):
        if self.c['endspin'] or self.c['stamps']: p("s_memrealtime s[100:101]")
        p(f"s_cmp_ge_u32 s2, 256\ns_cbranch_scc1 L_end")
        p(f"s_load_dwordx16 s[4:19], s[0:1], 0\ns_load_dwordx16 s[20:35], s[0:1], 64")
        per = (code_bytes + 32 * 128 - 1) // (32 * 128)
        assert per <= 64
        p(f"s_getpc_b64 {S2(sMask)}\nL_pc:")
        p(f"s_lshr_b32 s{sB}, s2, 3\ns_mul_i32 s{sA}, s{sB}, {per*128}")
        p(f"v_min_u32 v1, {per-1}, v0\nv_lshl_add_u32 v1, v1, 7, s{sA}")
        p(f"v_min_u32 v1, L_code_end-L_pc-4, v1")
        p(f"v_lshrrev_b32 v2, 6, v0\nv_and_b32 v{vLane}, 63, v0")
        p(f"global_load_dword a220, v1, {S2(sMask)}")
        p(f"v_readfirstlane_b32 s{sWave}, v2")
        if self.c['stamps']: p("v_mov_b32 v251, 0")
        p(f"s_and_b32 s{sA}, s2, 7\ns_lshl_b32 s{sA}, s{sA}, 5\ns_add_u32 s{sA}, s{sA}, s{sB}")
        p(f"s_and_b32 s{sCt}, s{sA}, 7\ns_lshr_b32 s{sRt}, s{sA}, 3\ns_mov_b32 s{sI}, s{sA if self.c['imap'] else 2}")
        p(f"s_sub_u32 s{sB}, s{sA}, 136\ns_mul_i32 s{sC}, s{sB}, 147\ns_lshr_b32 s{sC}, s{sC}, 10")
        p(f"s_mul_i32 s{sD}, s{sC}, 7\ns_sub_u32 s{sB}, s{sB}, s{sD}\ns_add_u32 s{sB}, s{sB}, 8\ns_sub_u32 s{sC}, 16, s{sC}")
        p(f"s_cmp_ge_u32 s{sA}, 136\ns_cselect_b32 s{sCg}, s{sC}, s{sRt}\ns_cselect_b32 s{sRg}, s{sB}, s{sCt}")
        p(f"s_cmp_eq_u32 s{sA}, 255\ns_cselect_b32 s{sCg}, 0, s{sCg}\ns_cselect_b32 s{sRg}, 15, s{sRg}")
        if self.c['map2']:
            p(f"s_lshr_b32 s{sRt}, s{sA}, 6\ns_lshl_b32 s{sRt}, s{sRt}, 3\ns_bfe_u32 s{sB}, s{sA}, 0x30002\ns_add_u32 s{sRt}, s{sRt}, s{sB}")
            p(f"s_bfe_u32 s{sB}, s{sA}, 0x10005\ns_lshl_b32 s{sB}, s{sB}, 2\ns_and_b32 s{sCt}, s{sA}, 3\ns_add_u32 s{sCt}, s{sCt}, s{sB}")
        r = self.c['rot']
        if r == 1:
            p(f"s_mul_i32 s{sPar}, s{sCg}, 3\ns_add_u32 s{sPar}, s{sPar}, s{sRg}")
            p(f"s_mul_i32 s{sA}, s{sPar}, 205\ns_lshr_b32 s{sA}, s{sA}, 11\ns_mul_i32 s{sA}, s{sA}, 10\ns_sub_u32 s{sPar}, s{sPar}, s{sA}")
        elif r == 2:
            p(f"s_add_u32 s{sPar}, s{sCg}, s{sRg}\ns_and_b32 s{sPar}, s{sPar}, 1")
        elif r == 3:
            p(f"s_lshl_b32 s{sPar}, s{sCg}, 1\ns_add_u32 s{sPar}, s{sPar}, s{sRg}")
            p(f"s_mul_i32 s{sA}, s{sPar}, 205\ns_lshr_b32 s{sA}, s{sA}, 10\ns_mul_i32 s{sA}, s{sA}, 5\ns_sub_u32 s{sPar}, s{sPar}, s{sA}")
        elif r == 4:
            p(f"s_add_u32 s{sPar}, s{sCg}, s{sRg}\ns_and_b32 s{sPar}, s{sPar}, 3")
        m = self.c['smask']
        p(f"s_bfm_b32 s{sA}, s{sCg}, 0\ns_and_b32 s{sA}, s{sA}, {m}\ns_bcnt1_i32_b32 s{sB}, s{sA}\ns_sub_u32 s{sC}, s{sCg}, s{sB}")
        p(f"s_bitcmp1_b32 {m}, s{sCg}\ns_cselect_b32 s{sCg}, s{sB}, s{sC}")
        p("s_cbranch_scc0 L_second" if self.c['sfirst'] else "s_cbranch_scc1 L_second")

    def chunk_ops(self, s, ssm):
        r = self.c['rot']; ws = 128 if ssm else 196608
        if r == 0: return [f"s_mov_b32 s{sOffX}, {s*128}", f"s_mov_b32 s{sOffW}, {s*ws}"]
        if r in (1, 3):
            n = 10 if r == 1 else 5
            o = [] if s == 0 else [f"s_add_u32 s{sPar}, s{sPar}, 1", f"s_cmp_eq_u32 s{sPar}, {n}", f"s_cselect_b32 s{sPar}, 0, s{sPar}"]
            k = sPar
            if r == 3 and s >= 5: o.append(f"s_add_u32 s{sChunk}, s{sPar}, 5"); k = sChunk
        elif r == 2:
            o = [f"s_xor_b32 s{sChunk}, s{sPar}, {s}"]; k = sChunk
        else:
            if s < 2: o = [f"s_and_b32 s{sChunk}, s{sPar}, 1", f"s_xor_b32 s{sChunk}, s{sChunk}, {s}"]
            else: o = [f"s_xor_b32 s{sChunk}, s{sPar}, {s-2}", f"s_add_u32 s{sChunk}, s{sChunk}, 2"]
            k = sChunk
        return o + [f"s_lshl_b32 s{sOffX}, s{k}, 7", f"s_mul_i32 s{sOffW}, s{k}, {ws}"]

    def prologue(self, p, ssm):
        L = vLane; c = self.c
        t0, t1, t2, t3, t4, t5 = 0, 1, 2, 3, 4, 5
        p(f"s_mov_b32 s{sD}, 1280\ns_lshl_b32 s{sA}, s{sI}, 3\ns_lshl_b32 s{sB}, s{sWave}, 2\ns_add_u32 s{sA}, s{sA}, s{sB}\ns_lshl_b32 s{sB}, s{sI}, 2")
        p(f"s_cmp_ge_u32 s{sWave}, 2\ns_cselect_b32 s{sA}, s{sB}, s{sA}\ns_cselect_b32 s{sT+2}, 0, {2621440-819200}\ns_add_u32 s{sT+2}, s{sT+2}, 819200")
        p(f"v_lshlrev_b32 v{vL16}, 4, v{L}\nv_lshrrev_b32 v7, 4, v{L}\nv_add_u32 v7, s{sA}, v7\nv_and_b32 v{t0}, 0xff, v{vL16}\nv_mad_u32_u24 v6, v7, s{sD}, v{t0}")
        p(f"s_mul_i32 s{sK2}, s2, 205\ns_lshr_b32 s{sK2}, s{sK2}, 10\ns_mul_i32 s{sB}, s{sK2}, 5\ns_sub_u32 s{sO2}, s2, s{sB}")
        p(f"s_mul_i32 s{sA}, s{sK2}, {32*1280}\ns_lshl_b32 s{sB}, s{sO2}, 8\ns_add_u32 s{sA}, s{sA}, s{sB}\ns_lshl_b32 s{sB}, s{sWave}, 6\ns_add_u32 s{sA}, s{sA}, s{sB}")
        p(f"v_lshrrev_b32 v{t0}, 2, v{L}\nv_and_b32 v{t2}, 48, v{vL16}\nv_mad_u32_u24 v8, v{t0}, s{sD}, v{t2}\nv_add_u32 v{vJ0}, s{sA}, v8")
        p(f"v_add_u32 v{vJ0+1}, {16*1280-1024}, v{vJ0}\nv_mov_b32 v11, {EPOCH}")
        p(f"s_lshl_b32 s{sCw}, s{sCg}, 2\ns_add_u32 s{sCw}, s{sCw}, s{sWave}")
        if ssm:
            p(f"s_lshl_b32 s{sA}, s{sCw}, 5")
            p(f"v_bfe_u32 v{t0}, v{L}, 2, 2\nv_and_b32 v{t2}, 3, v{L}\nv_lshl_add_u32 v{t0}, v{t0}, 3, v{t2}\nv_add_lshl_u32 v10, v{t0}, s{sA}, 1")
        for r_, n in ((sX, 2621440), (sW0, 819200 if ssm else 1966080), (sW1, 819200 if ssm else 1966080), (sWS, WS_SIZE), (sU, 1966080)):
            p(f"s_mov_b32 s{r_+2}, {n}\ns_mov_b32 s{r_+3}, 0x20000")
        p(f"s_mov_b32 s{sT+3}, 0x20000")
        NS = 36 if ssm else 35
        p(f"s_mul_i32 s{sA}, s{sWave}, {NS}\ns_mul_i32 s{sB}, s{sRg}, {144 if ssm else 140}")
        p(f"v_lshrrev_b32 v{t0}, 3, v{L}\nv_and_b32 v{t1}, 7, v{L}\nv_add_u32 v{t0}, s{sA}, v{t0}")
        if not ssm: p(f"s_movk_i32 s{sC}, 2016")
        for n in ((0, 1, 4) if ssm else range(5)):
            if n: p(f"v_add_u32 v{t0}, {(8 if n == 1 else NS - 16) if ssm else (8 if n < 4 else 3)}, v{t0}")
            p(f"v_bfe_u32 v{t2}, v{t0}, 1, 3\nv_xor_b32 v{t2}, v{t2}, v{t1}")
            if ssm:
                p(f"v_bfe_u32 v{t3}, v{t0}, 2, 2\nv_mul_u32_u24 v{t3}, 36, v{t3}")
                p(f"v_and_b32 v{t4}, 1, v{t0}\nv_mad_u32_u24 v{t3}, v{t4}, 18, v{t3}")
                p(f"v_lshrrev_b32 v{t4}, 4, v{t0}\nv_lshl_add_u32 v{t3}, v{t4}, 1, v{t3}")
                p(f"v_bfe_u32 v{t4}, v{t0}, 1, 1\nv_add3_u32 v{t3}, v{t3}, v{t4}, s{sB}")
            else:
                p(f"v_add_u32 v{t3}, s{sB}, v{t0}\nv_lshrrev_b32 v{t4}, 4, v{t3}\nv_mul_u32_u24 v{t5}, 57, v{t4}\nv_lshrrev_b32 v{t5}, 9, v{t5}")
                p(f"v_cmp_gt_u32 vcc, s{sC}, v{t3}\nv_mad_i32_i24 v{t4}, v{t5}, -9, v{t4}\nv_and_b32 v{t5}, 12, v{t3}\nv_lshlrev_b32 v{t5}, 3, v{t5}")
                p(f"v_mad_i32_i24 v{t4}, v{t4}, -12, v{t5}\nv_cndmask_b32 v{t4}, 0, v{t4}, vcc\nv_add_u32 v{t3}, v{t3}, v{t4}")
            p(f"v_lshlrev_b32 v{t2}, 4, v{t2}\nv_mad_u32_u24 v{vXD+n}, v{t3}, s{sD}, v{t2}")
            if n and not ssm: p(f"v_subrev_u32 v{vXD+n}, {1024*n if n < 4 else 27*128}, v{vXD+n}")
        if ssm:
            p(f"v_subrev_u32 v{vXD+1}, 1024, v{vXD+1}\nv_add_u32 v{vXD+2}, 512, v{vXD}\nv_add_u32 v{vXD+3}, 512, v{vXD+1}\nv_subrev_u32 v{vXD+4}, {28*128}, v{vXD+4}")
        if ssm:
            p(f"s_lshl_b32 s{sA}, s{sCw}, 5")
            p(f"v_lshrrev_b32 v{t0}, 5, v{L}\nv_lshlrev_b32 v{t0}, 3, v{t0}\nv_bfe_u32 v{t2}, v{L}, 3, 2\nv_add3_u32 v{t0}, v{t0}, v{t2}, s{sA}")
            p(f"v_lshrrev_b32 v{t2}, 4, v{L}\nv_xor_b32 v{t2}, v{t2}, v{t1}\nv_lshlrev_b32 v{t2}, 4, v{t2}")
            p(f"v_mad_u32_u24 v{vWDm}, v{t0}, s{sD}, v{t2}")
            p(f"v_xor_b32 v{t2}, 64, v{vWDm}\nv_add_u32 v{vWDm+1}, {16*1280-1024}, v{t2}")
            p(f"v_add_u32 v{vWDm+2}, {4*1280-2048}, v{vWDm}\nv_add_u32 v{vWDm+3}, {4*1280-2048}, v{vWDm+1}")
            p(f"s_mul_i32 s{sM0W}, s{sWave}, 8192")
        else:
            p(f"s_mul_i32 s{sA}, s{sWave}, {16*3072}\ns_lshl_b32 s{sB}, s{sCg}, 8\ns_add_u32 s{sA}, s{sA}, s{sB}\ns_mov_b32 s{sC}, 3072")
            p(f"v_lshrrev_b32 v{t0}, 4, v{L}\nv_and_b32 v{t2}, 15, v{L}\nv_lshlrev_b32 v{t3}, 1, v{t0}\nv_xor_b32 v{t2}, v{t2}, v{t3}\nv_lshlrev_b32 v{t2}, 4, v{t2}")
            p(f"v_mad_u32_u24 v{t2}, v{t0}, s{sC}, v{t2}\nv_add_u32 v{vWDm}, s{sA}, v{t2}")
            p(f"v_add_u32 v{vWDm+1}, {4*3072-1024}, v{vWDm}")
            p(f"v_xor_b32 v{t2}, 128, v{vWDm}\nv_add_u32 v{vWDm+2}, {8*3072-2048}, v{t2}\nv_add_u32 v{vWDm+3}, {12*3072-3072}, v{t2}")
            p(f"s_mul_i32 s{sM0W}, s{sWave}, 4096")
        p(f"s_add_u32 s{sM0W}, s{sM0W}, {XIMG}\ns_mul_i32 s{sM0X}, s{sWave}, {NS*128}")
        p("s_waitcnt lgkmcnt(0)")
        self.stamp(p, 0)
        if c['bw']:
            p(f"s_lshl_b32 s{sA}, s2, 2\ns_add_u32 s{sA}, s{sA}, s{sWave}")
            p(f"s_waitcnt vmcnt(0)\ns_memrealtime {S2(sQ1)}\ns_waitcnt lgkmcnt(0)")
            k = 0
            for ptr, nbytes in ((pX, 2621440), (pWg, 1966080), (pWu, 1966080), (pWd, 1966080), (pBre, 819200), (pBim, 819200), (pCre, 819200), (pCim, 819200))[:c['bw']]:
                per = nbytes // 1024
                p(f"s_mul_i32 s{sB}, s{sA}, {per}")
                for o in range(0, per, 1024):
                    p(f"v_add_u32 v12, {o}, v{vL16}\nv_min_u32 v12, {per-16}, v12\nv_add_u32 v12, s{sB}, v12\nglobal_load_dwordx4 a[{4*k}:{4*k+3}], v12, {S2(ptr)}"); k += 1
            p(f"s_waitcnt vmcnt(0)\ns_memrealtime {S2(sSt)}\ns_waitcnt lgkmcnt(0)\ns_sub_u32 s101, s{sSt}, s{sQ1}")
            self.stamp(p, 12)
        if c['chase']:
            ptr = c['chase']
            p(f"s_lshl_b32 s{sA}, s2, 2\ns_add_u32 s{sA}, s{sA}, s{sWave}\ns_lshl_b32 s{sA}, s{sA}, 11\nv_mov_b32 v14, s{sA}")
            p(f"s_waitcnt vmcnt(0)\ns_memrealtime {S2(sQ1)}\ns_waitcnt lgkmcnt(0)")
            for i in range(16):
                p(f"global_load_dword v12, v14, {S2(ptr)} offset:{128*i}\ns_waitcnt vmcnt(0)")
            p(f"s_memrealtime {S2(sSt)}\ns_waitcnt lgkmcnt(0)\ns_sub_u32 s101, s{sSt}, s{sQ1}")
        p(f"s_cmp_eq_u32 s{sWave}, 2\ns_cselect_b64 {S2(sT)}, {S2(pBre)}, {S2(pBim)}\ns_cmp_lt_u32 s{sWave}, 2\ns_cselect_b64 {S2(sT)}, {S2(pX)}, {S2(sT)}")
        side = []
        for j in range(5):
            side.append(f"buffer_load_dwordx4 {V4(16+4*j)}, v6, {S4(sT)}, 0 offen offset:{256*j}")
        wdd = self.wd_job()[0]
        ct = []
        if c['cfirst'] or c['x_plans']:
            p(f"s_cmp_lt_u32 s{sWave}, 2\ns_cselect_b64 s[0:1], {S2(pCre)}, {S2(pCim)}\ns_mul_i32 s{sA}, s2, 25\ns_and_b32 s{sB}, s{sWave}, 1\ns_mul_i32 s{sB}, s{sB}, 12\ns_add_u32 s{sA}, s{sA}, s{sB}\ns_lshl_b32 s{sA}, s{sA}, 7")
            p(f"v_min_u32 v12, 12, v{L}\nv_lshl_add_u32 v{vWT}, v12, 7, s{sA}")
            ct = [[f"global_load_dword a241, v{vWT}, s[0:1]"]]
            assert not c['wpipe'] and not c['touch']
            if c['cfirst'] == 1: side = side + ct
        if c['x_plans']:
            p(f"v_mov_b32 v242, v6")
            dummy = [[f"buffer_load_dwordx4 a[{200+4*j}:{203+4*j}], v242, {S4(sT)}, 0 offen offset:{256*j}"] for j in range(5)]
            dummy[4] = [dummy[4] + [f"s_cmp_lt_u32 s{sWave}, 2", f"s_cselect_b64 {S2(sT)}, {S2(pCre)}, {S2(pCim)}", f"s_mov_b32 s{sT+2}, 819200"]]
        if c['x_noside'] & 1: side = []
        if not c['wdlate'] and not c['x_noside'] & 2: side += wdd
        if c['wtouch']:
            p(f"s_lshl_b32 s{sA}, s2, 2\ns_add_u32 s{sA}, s{sA}, s{sWave}\ns_mul_i32 s{sA}, s{sA}, 1920\nv_min_u32 v12, 14, v{L}\nv_lshl_add_u32 v{vTmp}, v12, 7, s{sA}")
            wt = [[f"global_load_dword a244, v{vTmp}, {S2(pWg)}"], [f"global_load_dword a245, v{vTmp}, {S2(pWu)}"]]
            if c['wtouch'] == 1: side = wt + side
        side.append(f"buffer_load_dword v15, v11, {S4(sWS)}, 0 offen sc1")
        if c['warm']:
            nl = (CARRY // 128 + 1023) // 1024
            p(f"s_lshl_b32 s{sA}, s2, 2\ns_add_u32 s{sA}, s{sA}, s{sWave}\ns_mul_i32 s{sA}, s{sA}, {128*nl}\nv_min_u32 v13, {nl-1}, v{L}\nv_lshl_add_u32 v13, v13, 7, s{sA}\nv_min_u32 v13, {CARRY-128}, v13")
            side.append(f"buffer_load_dword a221, v13, {S4(sWS)}, 0 offen")
        if c['tlb']:
            p(f"v_min_u32 v13, 15, v{L}\nv_lshlrev_b32 v13, 20, v13\nv_add_u32 v13, {PADOFF}, v13\nv_and_b32 v14, 0x300000, v13")
            side += [f"global_load_dword a246, v13, {S2(pWs)}", f"global_load_dword a247, v14, {S2(pOut)}"]
            side += [f"global_load_dword a{248+i}, v{vL16}, {S2(ptr)}" for i, ptr in enumerate((pCre, pCim, pWd, pDsk))]
        p(f"s_mov_b64 {S2(sU)}, {S2(pWd)}\ns_mov_b64 {S2(sX)}, {S2(pX)}\ns_mov_b64 {S2(sWS)}, {S2(pWs)}")
        p(f"s_mov_b64 {S2(sW0)}, {S2(pBre if ssm else pWg)}\ns_mov_b64 {S2(sW1)}, {S2(pBim if ssm else pWu)}")
        if ssm:
            for i, ptr in enumerate((pLre, pLim, pLdt)):
                p(f"global_load_ushort v{100+2*i}, v10, {S2(ptr)}\nglobal_load_ushort v{101+2*i}, v10, {S2(ptr)} offset:8")
        if c['wpipe']:
            p(f"s_bitcmp1_b32 s{sWave}, 0\ns_cselect_b64 s[0:1], {S2(pWu)}, {S2(pWg)}\ns_lshr_b32 s{sA}, s{sWave}, 1\ns_add_u32 s{sA}, s{sA}, 2\ns_mul_i32 s{sA}, s{sA}, 196608")
            p(f"s_mul_i32 s{sB}, s2, 768\ns_add_u32 s{sA}, s{sA}, s{sB}\nv_min_u32 v12, 5, v{L}\nv_lshl_add_u32 v{vWT}, v12, 7, s{sA}")
            if c['wp0'] == 0: side = side + self.wtouch_op(0)
        st0 = self.dma_stage(0, ssm); st1 = self.dma_stage(1, ssm)
        if c['wpipe'] and c['wp0'] == 1: st0 = st0 + [self.wtouch_op(0)]
        if c['order'] == 1:
            p.add(st0[0][:-2]); st0[0] = st0[0][-2:]
            for g in st0[5:]: p.add(g)
            st0 = st0[:5]
        elif c['order'] == 2:
            for g in st0: p.add(g)
            st0 = []
        p.add(side)
        dq = st0 + (wt if c['wtouch'] == 2 else []) + st1[:c['pre1']]
        if c['cfirst'] == 2: dq = dq + ct
        self.dq_rest = st1[c['pre1']:] + (wt if c['wtouch'] == 3 else []) + (dummy + ct if c['x_plans'] else []) + (wdd if c['wdlate'] else [])
        q = Seq()
        q(f"v_add_u32 v{vL16b}, 0x1000, v{vL16}")
        q(f"v_and_b32 v{t0}, 15, v{L}\nv_lshrrev_b32 v{t1}, 4, v{L}\nv_lshrrev_b32 v{t2}, 1, v{t0}\nv_xor_b32 v{t2}, v{t2}, v{t1}\nv_lshlrev_b32 v{t2}, 4, v{t2}")
        q(f"v_lshl_add_u32 v{vXR0}, v{t0}, 7, v{t2}\nv_xor_b32 v{vXR1}, 64, v{vXR0}")
        if ssm:
            q(f"v_add_u32 v{vWR0}, s{sM0W}, v{vXR0}\nv_add_u32 v{vWR1}, s{sM0W}, v{vXR1}")
        else:
            q(f"v_bfe_u32 v{t0}, v{L}, 2, 3\ns_lshl_b32 s{sA}, s{sWave}, 1\nv_xor_b32 v{t0}, s{sA}, v{t0}\nv_lshlrev_b32 v{t0}, 5, v{t0}")
            q(f"v_and_b32 v{t2}, 3, v{L}\nv_lshl_add_u32 v{t0}, v{t2}, 3, v{t0}")
            q(f"v_bfe_u32 v{t2}, v{L}, 2, 2\nv_lshl_add_u32 v{t2}, v{t1}, 3, v{t2}\nv_lshl_add_u32 v{t0}, v{t2}, 8, v{t0}")
            q(f"v_add_u32 v{vWR0}, {XIMG}, v{t0}\nv_xor_b32 v{vWR1}, 32, v{vWR0}")
            q(f"v_mov_b32 v12, 0x3f803f80\nv_mov_b32 v13, 0x3f803f80\nv_lshlrev_b32 v{t0}, 3, v{L}\nv_add_u32 v{t2}, {STG}, v{t0}\nv_add_u32 v{t3}, {2*STG}, v{t0}")
            for r_ in (t0, t2, t3): q(f"ds_write_b64 v{r_}, v[12:13] offset:{140*128}", tag='ones')
        q(f"s_mul_i32 s{sA}, s{sCt}, {80*1280}")
        q(f"v_lshrrev_b32 v{t0}, 3, v{L}\nv_and_b32 v{t2}, 7, v{L}\nv_lshrrev_b32 v{t3}, 4, v{L}\nv_xor_b32 v{t2}, v{t2}, v{t3}\nv_lshlrev_b32 v{t2}, 4, v{t2}")
        q(f"v_mad_u32_u24 v{t0}, v{t0}, s{sD}, v{t2}\nv_add_u32 v{vCD0}, s{sA}, v{t0}\nv_xor_b32 v{t0}, 64, v{vCD0}\nv_add_u32 v{vCD1}, {8*1280-1024}, v{t0}")
        q(f"s_mul_i32 s{sCslot}, s{sWave}, 10240\nv_add_u32 v{vCpat}, s{sCslot}, v{vXR0}")
        self.flag_offsets(q, vFG, 140, 48, f"s_mul_i32 s{sC}, s{sWave}, 12", 12, FLAGG)
        self.flag_offsets(q, vFS, 144, 20, f"s_and_b32 s{sC}, s{sWave}, 1\ns_mul_i32 s{sC}, s{sC}, 10", 10, FLAGS)
        q(f"s_and_b32 s{sRot2}, s{sWave}, 1\ns_mul_i32 s{sRot2}, s{sRot2}, 640\ns_add_u32 s{sRotC}, s{sRt}, 1\ns_and_b32 s{sRotC}, s{sRotC}, 3")
        q(f"s_mul_i32 s{sB}, s{sRg}, {20 if ssm else 48}\ns_add_u32 s{sB}, s{sB}, s{sCw}\ns_lshl_b32 s{sB}, s{sB}, 6\ns_add_u32 s{sFlag}, s{sB}, {FLAGS if ssm else FLAGG}")
        q(f"s_mul_i32 s{sHo}, s{sCw}, {HS}\ns_add_u32 s{sHo}, s{sHo}, {H + (48*HS if ssm else 0)}")
        self.side_addr(q)
        nfree = len(q.items)
        if ssm: self.ssm_consts(q)
        if not c['x_noside'] & 1: self.side_stats(q)
        elif not c['wdlate']:
            q.items.append([W('wdst')])
            for x in self.wd_job()[1]: q(x)
        q(f"v_readfirstlane_b32 s{sTag}, v15\ns_nop 1\ns_mul_i32 s{sTag}, s{sTag}, 1664525\ns_add_u32 s{sTag}, s{sTag}, 1013904223")
        items = q.items; nh = c['head']
        for g in dq[:nh]: p.add(g)
        if c['pads']:
            nm = 'S' if ssm else 'G'
            p("s_mov_b64 exec, 0")
            for w_ in range(3): p(f"s_cmp_eq_u32 s{sWave}, {w_}\ns_cbranch_scc1 L_pad{nm}{w_}")
            p(f"s_branch L_pad{nm}3\nL_ret{nm}:\ns_mov_b64 exec, -1")
        dq = dq[nh:]
        tot = sum(len(x) for x in items); k = 0; cnt = 0
        for it in items:
            p.add(it); cnt += len(it)
            while k < len(dq) and cnt * len(dq) >= (k + 1) * tot: p.add(dq[k]); k += 1
        while k < len(dq): p.add(dq[k]); k += 1
        self.side_store(p, ssm)
        if not c['x_plans']: p(f"s_cmp_lt_u32 s{sWave}, 2\ns_cselect_b64 {S2(sT)}, {S2(pCre)}, {S2(pCim)}\ns_mov_b32 s{sT+2}, 819200")

    def wtouch_op(self, k):
        return ([f"v_add_u32 v{vWT}, {2*196608}, v{vWT}"] if k else []) + [f"global_load_dword a{244 + (k & 1)}, v{vWT}, s[0:1]"]

    def wd_job(self):
        assert not (self.c['wdlate'] and self.c['wpipe'])
        vJD = 236 if self.c['wdlate'] else 60
        d = [[f"s_lshl_b32 s{sC}, s{sWave}, 11", f"s_add_u32 m0, s{sC}, {L_WDST}", I(f"buffer_load_dwordx4 v{vJ0}, {S4(sU)}, 0 offen lds", 'wdst')],
             [I(f"buffer_load_dwordx4 v{vJ0+1}, {S4(sU)}, 0 offen offset:1024 lds", 'wdst')]]
        r = [f"ds_read_b64_tr_b16 {V2(vJD+4*nbl+2*t)}, v{vJ0+2} offset:{t*1024 + nbl*32}" for nbl in range(2) for t in range(2)]
        st = [[I(f"buffer_store_dwordx4 {V4(vJD+4*nbl)}, v{vL16}, {S4(sWS)}, s{98+nbl} offen sc1", 'side')] for nbl in range(2)]
        st[0] = [f"s_mov_b64 {S2(sU)}, {S2(pOut)}", f"s_mov_b32 s{sU+2}, 5242880"] + st[0]
        return d, r, st

    def side_addr(self, q):
        L = vLane
        q(f"s_cmp_lt_u32 s{sWave}, 2\ns_cselect_b32 s{sB}, 0, 1408\ns_cselect_b32 s{sC}, 0, 2048\ns_cselect_b32 s{sA}, 0, {OOB}\n"
          f"v_mov_b32 v40, s{sA}\nv_add_u32 v44, s{sB}, v7\nv_cmp_gt_u32 {S2(sMask)}, s{sC}, v44")
        q(f"s_mov_b32 s{sA}, 1821\nv_mul_u32_u24 v1, s{sA}, v44\nv_lshrrev_b32 v1, 18, v1")
        q(f"v_mul_u32_u24 v2, 144, v1\nv_sub_u32 v2, v44, v2\nv_mul_u32_u24 v3, 57, v2\nv_lshrrev_b32 v3, 10, v3")
        q(f"v_mul_u32_u24 v4, 18, v3\nv_sub_u32 v4, v2, v4")
        q(f"v_lshrrev_b32 v5, 1, v3\nv_cmp_gt_u32 vcc, 14, v1\nv_mul_u32_u24 v0, 36, v5\nv_sub_u32 v0, v2, v0\nv_and_b32 v0, 60, v0\nv_mul_u32_u24 v0, 3, v0\n"
          f"v_lshlrev_b32 v2, 5, v5\nv_sub_u32 v0, v0, v2\nv_cndmask_b32 v0, 0, v0, vcc\nv_add_u32 v0, v0, v44\nv_lshl_add_u32 v40, v0, 4, v40")
        q(f"v_lshl_add_u32 v1, v1, 2, v5\nv_mul_u32_u24 v1, 72, v1")
        q(f"v_and_b32 v3, 1, v3\nv_lshl_add_u32 v3, v4, 1, v3\nv_add_lshl_u32 v1, v1, v3, 2\nv_add_u32 v1, {STATS}, v1")
        q(f"v_lshrrev_b32 v2, 3, v7\nv_and_b32 v3, 3, v7\nv_lshl_add_u32 v2, v2, 2, v3\nv_and_b32 v3, 4, v7\nv_lshl_add_u32 v2, v2, 4, v3")
        q(f"s_lshl_b32 s{sA}, s{sWave}, 3\ns_add_u32 s{sA}, s{sA}, {CSUM - 16}\nv_add_u32 v2, s{sA}, v2\nv_mov_b32 v3, {OOB}")
        q(f"v_cndmask_b32 v41, v1, v2, {S2(sMask)}\nv_cndmask_b32 v42, v1, v3, {S2(sMask)}")
        q(f"s_lshl_b32 s{sA}, s{sWave}, 11\ns_add_u32 s{sA}, s{sA}, {L_WDST}\n"
          f"v_lshrrev_b32 v0, 2, v{L}\nv_and_b32 v1, 3, v{L}\nv_lshlrev_b32 v1, 3, v1\nv_lshl_add_u32 v0, v0, 6, v1\nv_add_u32 v{vJ0+2}, s{sA}, v0")
        for nbl in range(2):
            q(f"s_lshl_b32 s{sA}, s{sO2}, 3\ns_lshl_b32 s{sB}, s{sWave}, 1\ns_add_u32 s{sA}, s{sA}, s{sB}\ns_add_u32 s{sA}, s{sA}, {nbl}")
            q(f"s_mul_i32 s{sB}, s{sA}, 205\ns_lshr_b32 s{sB}, s{sB}, 10\ns_mul_i32 s{sB}, s{sB}, 255\ns_add_u32 s{sA}, s{sA}, s{sB}")
            q(f"s_mul_i32 s{sB}, s{sK2}, 5\ns_add_u32 s{sA}, s{sA}, s{sB}\ns_lshl_b32 s{sA}, s{sA}, 10\ns_add_u32 s{98+nbl}, s{sA}, {WD}")

    def side_stats(self, q):
        q("v_mov_b32 v45, 0x3f803f80")
        for j in range(20):
            a = 46 + (j & 1); b = 48 + (j & 1)
            q(f"v_dot2_f32_bf16 v{a}, v{16+j}, v45, {'0' if j < 2 else 'v%d' % a}\nv_dot2_f32_bf16 v{b}, v{16+j}, v{16+j}, {'0' if j < 2 else 'v%d' % b}")
        if not self.c['wdlate']:
            q.items.append([W('wdst')])
            for x in self.wd_job()[1]: q(x)
        q("v_add_f32 v55, v46, v47\nv_add_f32 v48, v48, v49")
        for r in (8, 4, 2, 1):
            q(f"v_add_f32_dpp v55, v55, v55 row_ror:{r} row_mask:0xf bank_mask:0xf\nv_add_f32_dpp v48, v48, v48 row_ror:{r} row_mask:0xf bank_mask:0xf")
        q(f"v_mul_f32 v46, {INV640}, v55\nv_mul_f32 v48, {INV640}, v48\nv_fma_f32 v48, -v46, v46, v48\nv_max_f32 v48, 0, v48")
        q.add(self.bfr(48, 48)); q(f"v_add_f32 v48, {EPS}, v48"); q.add(self.bfr(48, 48))
        q("v_sqrt_f32 v48, v48"); q.add(self.bfr(52, 46)); q.add(self.bfr(53, 48)); q("v_rcp_f32 v54, v53")
        q(f"v_mul_f32 v50, v52, v54\nv_cndmask_b32 v51, v54, v55, {S2(sMask)}")

    def side_store(self, p, ssm):
        self.st_groups = []
        if self.c['stlate']:
            for i in range(8): p(f"v_accvgpr_write_b32 a{224+i}, v{60+i}")
            for i, r_ in enumerate((52, 53, 54, 55, 51, 50)): p(f"v_accvgpr_write_b32 a{232+i}, v{r_}")
            p(f"v_mov_b32 v236, v40\nv_mov_b32 v237, v41\nv_mov_b32 v238, v42\ns_mov_b64 {S2(sU)}, {S2(pOut)}\ns_mov_b32 s{sU+2}, 5242880")
            g = [[I(f"buffer_store_dwordx4 {A4(224+4*nbl)}, v{vL16}, {S4(sWS)}, s{98+nbl} offen sc1", 'side')] for nbl in range(2)]
            if ssm:
                p(f"s_lshl_b32 s{sB}, s{sCw}, 4\ns_add_u32 s{sB}, s{sB}, s{sRg}\ns_lshl_b32 s{sB}, s{sB}, 8\ns_add_u32 s{sCo}, s{sB}, {CARRY}")
                p(f"v_mov_b32 v239, -1\nv_lshlrev_b32 v240, 2, v{vLane}")
                g.append([I(f"buffer_store_dword v239, v240, {S4(sWS)}, s{sCo} offen sc1", 'side')])
            g.append([["s_mov_b32 exec_lo, 0x00010001", "s_mov_b32 exec_hi, 0x00010001",
                       I(f"buffer_store_dwordx4 a[232:235], v236, {S4(sWS)}, 0 offen sc1", 'side'),
                       I(f"buffer_store_dword a236, v237, {S4(sWS)}, 0 offen sc1", 'side'),
                       I(f"buffer_store_dword a237, v238, {S4(sWS)}, 0 offen offset:144 sc1", 'side'), "s_mov_b64 exec, -1"]])
            self.st_groups = g
            return
        if not self.c['wdlate']:
            for g in self.wd_job()[2]: p.add(g)
        if ssm:
            p(f"s_lshl_b32 s{sB}, s{sCw}, 4\ns_add_u32 s{sB}, s{sB}, s{sRg}\ns_lshl_b32 s{sB}, s{sB}, 8\ns_add_u32 s{sCo}, s{sB}, {CARRY}")
            p(f"v_mov_b32 v13, -1\nv_lshlrev_b32 v14, 2, v{vLane}")
            p(f"buffer_store_dword v13, v14, {S4(sWS)}, s{sCo} offen sc1", tag='side')
        p(f"s_mov_b32 exec_lo, 0x00010001\ns_mov_b32 exec_hi, 0x00010001")
        p(f"buffer_store_dwordx4 v[52:55], v40, {S4(sWS)}, 0 offen sc1", tag='side')
        p(f"buffer_store_dword v51, v41, {S4(sWS)}, 0 offen sc1", tag='side')
        p(f"buffer_store_dword v50, v42, {S4(sWS)}, 0 offen offset:144 sc1", tag='side')
        p("s_mov_b64 exec, -1")

    def ssm_consts(self, p):
        for i in range(100, 106): p(f"v_lshlrev_b32 v{i}, 16, v{i}")
        for i in (0, 1):
            p(f"v_mul_f32 v{104+i}, {LOG2E}, v{104+i}\nv_exp_f32 v{104+i}, v{104+i}")
        for i in (0, 1): p.add(self.bfr(104+i, 104+i))
        p("v_pk_mul_f32 v[106:107], v[104:105], v[100:101]\nv_pk_mul_f32 v[108:109], v[104:105], v[102:103]")
        for i in (0, 1):
            p(f"v_mul_f32 v{106+i}, {LOG2E}, v{106+i}\nv_exp_f32 v{106+i}, v{106+i}")
            p(f"v_mul_f32 v{108+i}, {INV2PI}, v{108+i}\nv_rndne_f32 v110, v{108+i}\nv_sub_f32 v{108+i}, v{108+i}, v110")
            p(f"v_cos_f32 v{112+i}, v{108+i}\nv_sin_f32 v{114+i}, v{108+i}")
        p(f"v_pk_mul_f32 {V2(LAM)}, v[106:107], v[112:113]\nv_pk_mul_f32 {V2(LAM+2)}, v[106:107], v[114:115]")
        p(f"v_pk_mul_f32 v[106:107], v[100:101], v[100:101]\nv_pk_fma_f32 v[106:107], v[102:103], v[102:103], v[106:107]")
        p("v_rcp_f32 v106, v106\nv_rcp_f32 v107, v107")
        p(f"v_add_f32 v112, -1.0, v{LAM}\nv_add_f32 v113, -1.0, v{LAM+1}\nv_mov_b32 v114, v{LAM+2}\nv_mov_b32 v115, v{LAM+3}")
        p("v_add_f32 v106, v106, v106\nv_add_f32 v107, v107, v107")
        p("v_pk_mul_f32 v[100:101], v[100:101], v[106:107]\nv_pk_mul_f32 v[102:103], v[102:103], v[106:107] neg_lo:[1,0] neg_hi:[1,0]")
        p.add(self.cmul(COEF, 112, 100))
        p.add(self.cmul(100, LAM, LAM))
        p.add(self.cmul(104, 100, 100))
        p.add(self.cmul(108, 104, 104))
        p.add(self.cmul(104, 108, 108))
        p.add(self.cmul(L18, 104, 100))
        p.add(self.cmul(L36, L18, L18))
        p.add(self.cmul(100, L36, L36))
        p.add(self.cmul(104, 100, L36))
        p(f"v_cmp_le_u32 {S2(sQ1)}, 16, v{vLane}\nv_cmp_le_u32 {S2(sQ2)}, 32, v{vLane}\nv_cmp_le_u32 {S2(sQ3)}, 48, v{vLane}")
        p.add(self.cone(108))
        p.add(self.csel(F36, 104, 100, sQ1)); p.add(self.csel(F36, F36, L36, sQ2)); p.add(self.csel(F36, F36, 108, sQ3))

    def dma_stage(self, s, ssm):
        buf = (s % 3) * STG; tag = f'st{s}'
        g = []
        for n in range(4):
            pre = self.chunk_ops(s, ssm) + [f"s_add_u32 m0, s{sM0X}, {buf}"] if n == 0 else []
            g.append(pre + [I(f"buffer_load_dwordx4 v{vXD+n}, {S4(sX)}, s{sOffX} offen offset:{1024*n} lds", tag)])
        x5 = I(f"buffer_load_dwordx4 v{vXD+4}, {S4(sX)}, s{sOffX} offen offset:{(28 if ssm else 27)*128} lds", tag)
        g.append([["s_mov_b32 exec_lo, 0", x5, "s_mov_b32 exec_lo, -1"]] if self.c['xhalf'] else [x5])
        for m in range(2):
            for n in range(4):
                pre = [f"s_add_u32 m0, s{sM0W}, {buf + m * (4096 if ssm else 16384)}"] if n == 0 else []
                g.append(pre + [I(f"buffer_load_dwordx4 v{vWDm+n}, {S4(sW1 if m else sW0)}, s{sOffW} offen offset:{1024*n} lds", tag)])
        return g

    def xread(self, B):
        h = (B // 9) & 1; b = B % 9
        return f"ds_read_b128 {V4(xr(B))}, v{vXR1 if h else vXR0} offset:{b*2048}"
    def wreads(self, K, ssm):
        h = K & 1; out = []
        for t in range(4):
            d = wb(K & 1, t)
            if ssm:
                out.append(f"ds_read_b128 {V4(d)}, v{vWR1 if h else vWR0} offset:{(t & 1)*4096 + (t >> 1)*2048}")
            else:
                for tt in range(2):
                    out.append(f"ds_read_b64_tr_b16 {V2(d+2*tt)}, v{vWR1 if (t >> 1) else vWR0} offset:{(t & 1)*16384 + (32*h + 4*tt)*256}")
        return out

    def border(self, s, ssm): return list(range(9))
    def cx(self, s, n, h): return XR + 8 * ((9 * s + n) % 3) + 4 * h
    def cw(self, s, t, h, n=4, o=0):
        r = (224 if s & 1 else 168) + 8 * t + 4 * h + o
        return f"{'a' if s & 1 else 'v'}[{r}:{r+n-1}]"
    def cxread(self, s, n, h, ssm): return f"ds_read_b128 {V4(self.cx(s, n, h))}, v{vXR1 if h else vXR0} offset:{self.border(s, ssm)[n]*2048}"
    def cwread(self, s, t, h, ssm):
        if ssm: return [f"ds_read_b128 {self.cw(s, t, h)}, v{vWR1 if h else vWR0} offset:{(t & 1)*4096 + (t >> 1)*2048}"]
        return [f"ds_read_b64_tr_b16 {self.cw(s, t, h, 2, 2*tt)}, v{vWR1 if (t >> 1) else vWR0} offset:{(t & 1)*16384 + (32*h + 4*tt)*256}" for tt in range(2)]
    def chead(self, s, ssm):
        w = lambda t, h: self.cwread(s, t, h, ssm)
        return w(0, 0) + [self.cxread(s, 0, 0, ssm)] + w(0, 1) + [self.cxread(s, 0, 1, ssm)] + w(1, 1) + w(1, 0) + w(2, 0) + w(2, 1) + w(3, 1) + w(3, 0) + \
            [self.cxread(s, 1, 0, ssm), self.cxread(s, 1, 1, ssm)]

    def wd_ops(self):
        ops = []
        for i in range(12):
            if i == 0:
                pre = [f"s_mul_i32 s{sD}, s{sCt}, 52", f"s_mul_i32 s{sC}, s{sWave}, 12", f"s_add_u32 s{sD}, s{sD}, s{sC}",
                       f"s_mul_i32 s{sD}, s{sD}, 5120", f"s_add_u32 s{sO2}, s{sD}, {WD}"]
            else:
                pre = [f"s_add_u32 s{sO2}, s{sO2}, 5120"]
            for nb in range(5):
                a = 20 * i + 4 * nb
                ld = (f"buffer_load_dwordx4 {A4(a)}, v{vL16}, {S4(sWS)}, s{sO2} offen offset:{1024*nb} sc1" if nb < 4 else
                      f"buffer_load_dwordx4 {A4(a)}, v{vL16b}, {S4(sWS)}, s{sO2} offen sc1")
                ops.append((pre if nb == 0 else []) + [ld])
        return ops
    def crow(self, i): return (0, 1, 2, 3, 0)[i] * 40960
    def c_ops(self, i, rot=False):
        ops = []
        for j in range(10):
            pre = []
            if j == 0:
                pre = [f"s_xor_b32 s{sKC}, s{sRotC}, {i}" if rot else f"s_mov_b32 s{sKC}, {i}", f"s_lshl_b32 s98, s{sKC}, 7", f"s_add_u32 s98, s98, s{sRot2}",
                       f"s_mul_i32 s99, s{sKC}, {40960 if i < 4 else 0}", f"s_add_u32 s99, s99, s{sCslot}"]
            elif j % 2 == 0:
                pre = [f"s_add_u32 s98, s98, {16*1280}"]
            if j % 2 == 0: pre += [f"s_add_u32 m0, s99, {j * 1024}"]
            ops.append(pre + [I(f"buffer_load_dwordx4 v{vCD1 if j & 1 else vCD0}, {S4(sT)}, s98 offen offset:{1024*(j & 1)} lds", 'c0' if rot else f'c{i}')])
        return ops

    def poll_check(self, load, cmpc, reg):
        ok = self.lab('ok'); lp = self.lab('spin')
        out = [f"v_cmp_ne_u32 vcc, {cmpc}, v{reg}", f"s_cbranch_vccz {ok}"]
        slow = [f"s_mov_b32 s{sSpin}, 0x10000", f"{lp}:", "s_sleep 2", load, "s_waitcnt vmcnt(0)",
                f"v_cmp_ne_u32 vcc, {cmpc}, v{reg}", f"s_sub_u32 s{sSpin}, s{sSpin}, 1", f"s_cmp_eq_u32 s{sSpin}, 0",
                f"s_cbranch_scc1 {ok}", f"s_cbranch_vccnz {lp}"]
        out += [self.optI(x) for x in slow] + [f"{ok}:"]
        return out
    def optI(self, x):
        i = I(x, opt=True)
        if i.kind == 'vmem': i.kind = 'ctl'; i.wr = set(); i.rd = set()
        return i

    def mainloop(self, p, ssm):
        c = self.c; L = vLane
        mf = []
        for K in range(20):
            for b in range(9):
                B = K * 9 + b
                for t in (range(4) if not (c['snake'] and b & 1) else range(3, -1, -1)):
                    a = acc(b, t); w = wb(K & 1, t); x = xr(B)
                    cc = '0' if K == 0 else V4(a)
                    if ssm: mf.append(f"v_mfma_f32_16x16x32_bf16 {V4(a)}, {V4(x)}, {V4(w)}, {cc}")
                    else: mf.append(f"v_mfma_f32_16x16x32_bf16 {V4(a)}, {V4(w)}, {V4(x)}, {cc}")
        ch = c['chain']
        if ch:
            assert not c['stlate']
            mf = []
            for s in range(10):
                for n, b in enumerate(self.border(s, ssm)):
                    for i, t in enumerate(range(4) if n % 2 == 0 else range(3, -1, -1)):
                        for k, h in enumerate((0, 1) if i % 2 == 0 else (1, 0)):
                            a = V4(acc(b, t)); x = V4(self.cx(s, n, h)); w = self.cw(s, t, h)
                            mf.append(f"v_mfma_f32_16x16x32_bf16 {a}, {x if ssm else w}, {w if ssm else x}, {'0' if s == 0 and k == 0 else a}")
        F = {}
        def put(B, g, items): F.setdefault(B * 4 + g, []).extend(items if isinstance(items, list) else [items])
        def place(groups, b0, b1):
            n = len(groups); nb = b1 - b0
            blocks = [b0 + (i * nb) // n for i in range(n)]
            for i, g in enumerate(groups):
                two = i + 1 < n and blocks[i + 1] == blocks[i]
                assert not (two and i > 0 and blocks[i - 1] == blocks[i])
                put(blocks[i], 0 if two else (3 if blocks[i] % 9 == 0 and not ch else 2), list(g))
        p(f"s_branch L_main{'S' if ssm else 'G'}\nL_split:")
        p.wait('st0', 'ones'); p("s_barrier")
        self.stamp(p, 1)
        if ch: p.add(self.chead(0, ssm))
        else:
            wr = self.wreads(0, ssm); k = len(wr) // 4
            p.add(wr[:k]); p(self.xread(0)); p.add(wr[k:])
            for B in range(1, 5): p(self.xread(B))
        BB = 5
        pf = self.wd_ops()
        ps = c['poll_stage']; sa = 2 if c['wdlate'] else c['stlate']
        assert ps > sa
        ld = f"buffer_load_dword v{vPoll}, v{vL16}, {S4(sWS)}, s{sA} offen sc1"
        for s in range(10):
            B0 = s * 18
            if ch:
                for n in range(2, 9):
                    for h in range(2): put(B0 + 2 * (n - 2) + (1 if n == 2 and s and not ssm else 0), h, self.cxread(s, n, h, ssm))
            for B in range(B0 + 5, B0 + 18 if not ch else 0): put(B - 5, 0, self.xread(B))
            w1 = self.wreads(2 * s + 1, ssm)
            for i, r in enumerate(w1 if not ch else []): put(B0 + 1 + (i * 6) // len(w1), 1 if i % 2 == 0 or ssm else 3, r)
            Bb = B0 + 9 + BB
            tags = [f'st{s+1}', 'ALLLG'] + (['side'] if s == sa else []) + (['sstat'] if s >= ps + 2 else [])
            bar = [W(*tags), "s_barrier"]
            if c['x_nobar'] and s not in (0, ps, 9): bar = [W(*tags)]
            if s == ps: put(Bb - 1, 1, self.poll_check(ld, f"s{sTag}", vPoll))
            if s < 9:
                d = STG if (s + 1) % 3 else -2 * STG
                op = "v_add_u32" if d > 0 else "v_subrev_u32"
                upd = [f"{op} v{r}, {abs(d)}, v{r}" for r in (vWR0, vXR0, vWR1, vXR1)]
                put(Bb - 2, 3 if ch else 1, upd[:2]); put(Bb - 1, 0, upd[2:])
            if c['stamps'] == 2:
                q = Prog(); self.stamp(q, 20 + s); bar += q.L
            put(Bb - 1, 3, bar)
            if s < 9 and ch:
                seq = self.chead(s + 1, ssm)
                spots = [-1, 0, 1, 3, 4, 5, 7, 8, 9, 11, 12, 13] if ssm else list(range(-1, 19))
                for g, r in zip(spots, seq): put(Bb, g, r)
            elif s < 9:
                w0 = self.wreads(2 * s + 2, ssm); k = len(w0) // 4
                seq = w0[:k] + [self.xread(B0 + 18)] + w0[k:2*k] + [self.xread(B0 + 19)] + w0[2*k:]
                seq += [self.xread(B0 + 20), self.xread(B0 + 21), self.xread(B0 + 22)]
                if ssm: spots = [(0, 0), (0, 1), (0, 3), (1, 0), (1, 1), (1, 3), (2, 0), (2, 1), (3, 0)]
                else: spots = [(0, 0), (0, 1), (0, 2), (0, 3), (1, 0), (1, 1), (1, 3), (2, 0), (2, 1), (2, 3), (3, 0), (3, 1), (3, 3)]
                for (db, g), r in zip(spots, seq): put(Bb + db, g, r)
            if s == sa or s == ps:
                arr = self.lab('arr')
                cond = [f"s_cmp_lg_u32 s{sWave}, 0"] if s == sa else [f"s_or_b32 s{sB}, s{sWave}, s2"]
                adr = [f"s_lshl_b32 s{sB}, s2, 4", f"s_add_u32 s{sB}, s{sB}, {ARR}"] if s == sa else [f"s_mov_b32 s{sB}, {EPOCH}"]
                put(Bb, 0, cond + [f"s_cbranch_scc1 {arr}"] +
                    [I(x, opt=True) for x in adr + [f"v_mov_b32 v{vPoll}, s{sTag}", "s_mov_b64 exec, 1",
                                              f"buffer_store_dword v{vPoll}, v{vL16}, {S4(sWS)}, s{sB} offen sc1", "s_mov_b64 exec, -1"]] + [f"{arr}:"])
            early = []; late = []
            if s == ps: early.append([f"s_lshl_b32 s{sA}, s{sWave}, 10", f"s_add_u32 s{sA}, s{sA}, {ARR}", ld])
            if s == 0: early += self.dq_rest
            if s + 2 < 10 and not (c['x_nodma'] and s > 0): early += self.dma_stage(s + 2, ssm)
            if s == 1 and c['wdlate']:
                _, rr, ss = self.wd_job()
                put(B0 + 7, 1, [W('wdst'), rr[0]]); put(B0 + 8, 1, [rr[1]]); put(B0 + 10, 1, [rr[2]]); put(B0 + 11, 1, [rr[3]])
                late += ss
            if c['wpipe']:
                for k_ in (1, 2, 3):
                    if s == c[f'wp{k_}']:
                        op = self.wtouch_op(k_); put(B0 + 12, 3, op[:1]); late.append(op[1:])
            if s == c['cstage'] and c['touch']:
                late.append([f"s_mul_i32 s{sA}, s2, 25", f"s_and_b32 s{sB}, s{sWave}, 1", f"s_mul_i32 s{sB}, s{sB}, 13", f"s_add_u32 s{sA}, s{sA}, s{sB}", f"s_lshl_b32 s{sA}, s{sA}, 7",
                             f"v_min_u32 v{vTmp}, 12, v{L}", f"v_lshlrev_b32 v{vTmp}, 7, v{vTmp}", f"buffer_load_dword a222, v{vTmp}, {S4(sT)}, s{sA} offen"])
            if s == 2 and c['touch'] > 1:
                late.append([f"s_mov_b32 s{sA}, {2*HS}", f"s_mov_b32 s{sC}, {H + 139*1024}", f"v_min_u32 v{vTmp}, 43, v{L}", f"v_mul_u32_u24 v{vTmp}, s{sA}, v{vTmp}",
                             f"buffer_load_dword a242, v{vTmp}, {S4(sWS)}, s{sC} offen"])
                late.append([f"s_mul_i32 s{sA}, s{sRt}, {64*2560}", f"v_mov_b32 v{vTmp}, 0", f"buffer_load_dword a243, v{vTmp}, {S4(sU)}, s{sA} offen"])
            if c['stlate'] and s == c['stlate'] - 1: late += self.st_groups
            if c['l2n'] and s == c['l2s'] and not (ssm and c['l2g']):
                put(B0 + 3, 1, [f"v_min_u32 v{vTmp}, {20*c['l2n']-1}, v{L}", f"v_mul_u32_u24 v{vPoll}, 205, v{vTmp}"])
                put(B0 + 5, 1, [f"v_lshrrev_b32 v{vPoll}, 12, v{vPoll}", f"v_mul_u32_u24 v{vTmp}, 1280, v{vTmp}"])
                put(B0 + 7, 1, [f"s_mov_b32 s{sA}, {128 - 20*1280}", f"v_mad_i32_i24 v{vTmp}, v{vPoll}, s{sA}, v{vTmp}"])
                late.append([f"s_lshr_b32 s{sA}, s2, 3", f"s_mul_i32 s{sA}, s{sA}, {20*1280}", f"s_add_u32 s{sA}, s{sA}, s{sRot2}", f"s_add_u32 s{sA}, s{sA}, {128*c['l2c']}",
                             f"buffer_load_dword a223, v{vTmp}, {S4(sT)}, s{sA} offen"])
                assert s != ps and s != c['cstage']
            if s == ps: late += self.stat_loads(ssm)
            if s >= ps:
                n = c['wd_late'] if s >= 8 else (c['wd_mid'] - len(late))
                if c['l2n'] and s == c['l2s'] and not (ssm and c['l2g']): n = c['l2w']
                n = max(0, min(n, len(pf)))
                ops, pf = pf[:n], pf[n:]
                if s >= 8: early += ops
                else: late += ops
            if s == 0 or s >= 8:
                if early + late: place(early + late, B0, B0 + 18)
            else:
                if early: place(early, B0, B0 + max(13, len(early)))
                if late: place(late, B0 + 14, B0 + 18)
            if s == 9 and not ssm:
                put(B0, 1, [f"v_and_b32 v{vTmp}, 0xff, v{vL16}"]); put(B0, 3, [f"v_add_u32 v{vTmp}, {L_STAT}, v{vTmp}"])
                for b in range(9):
                    put(B0 + 1 + b, 3, [f"ds_read_b64 {V2(GST+2*b)}, v{vTmp} offset:{256*b}"])
                    if b < 9: put(B0 + 6 + b, 1, [f"v_rcp_f32 v{GK1+b}, v{GST+2*b+1}"]); put(B0 + 7 + b, 3, [f"v_mul_f32 v{GK1+b}, {NLOG2E}, v{GK1+b}"])
            if s == 9 and ssm:
                put(B0 + 10, 1, [f"v_lshrrev_b32 v{vTmp}, 4, v{L}", f"v_mul_u32_u24 v{vTmp}, 288, v{vTmp}"]); put(B0 + 11, 1, [f"v_add_u32 v{vTmp}, {L_STAT}, v{vTmp}"])
                for i, x in enumerate(self.rsrd(0) + self.rsrd(1)): put(B0 + 14 + i // 2, i % 2, [x])
            if s == 8 and not ssm:
                T = 245
                seq = [f"s_mul_i32 s{sA}, s{sRg}, 140", f"v_and_b32 v{T}, 15, v{L}", f"v_add_u32 v{T}, s{sA}, v{T}", f"v_lshrrev_b32 v{T+1}, 4, v{T}",
                       f"v_and_b32 v{T}, 15, v{T}", f"v_lshlrev_b32 v{T}, 4, v{T}", f"v_lshl_add_u32 v{T}, v{T+1}, 10, v{T}",
                       f"v_lshrrev_b32 v{T+1}, 4, v{L}", f"v_lshl_add_u32 v{GHA}, v{T+1}, 8, v{T}"]
                for i, x in enumerate(seq): put(B0 + 2 + i, 3, [x])
        p.add(interleave(mf, F))
        if ch: assert sum(1 for x in pf if not isinstance(x[-1], I)) >= 4 or (False)
        self.pf_rest = pf

    def rsreg(self, b): return (176, 236)[b] if b < 2 else 144 + 8 * (b & 1)
    def rsrd(self, b): return [f"ds_read_b128 {V4(self.rsreg(b))}, v{vTmp} offset:{16*b}", f"ds_read_b128 {V4(self.rsreg(b)+4)}, v{vTmp} offset:{144+16*b}"]

    def stat_loads(self, ssm):
        n = 288 if ssm else 576
        pre = [f"s_mul_i32 s{sA}, s{sRg}, {1152 if ssm else 2240}", f"s_mul_i32 s{sC}, s{sWave}, {n}", f"s_add_u32 s{sA}, s{sA}, s{sC}",
               f"s_add_u32 s{sA}, s{sA}, {STATS if ssm else STATG}", f"s_add_u32 m0, s{sC}, {L_STAT}"]
        g = [pre + [I(f"buffer_load_dwordx4 v{vL16}, {S4(sWS)}, s{sA} offen sc1 lds", 'sstat')]]
        if ssm:
            g.append([f"s_lshl_b32 s{sA}, s{sCw}, 8", f"s_add_u32 s{sA}, s{sA}, {CSUM}", f"v_and_b32 v{vTmp}, 0xff, v{vL16}",
                      f"buffer_load_dwordx4 {V4(CS)}, v{vTmp}, {S4(sWS)}, s{sA} offen sc1"])
        return g

    def glu_tail(self, p):
        L = vLane; c = self.c
        pf = self.pf_rest + [x for i in range(4) for x in self.c_ops(i, c['rotc'])]
        CSR = 144
        T = 172
        self.stamp(p, 2)
        for i in range(16): p(f"v_mov_b32_dpp v{CSR+i}, v{acc(8,0)+i} row_newbcast:12 row_mask:0xf bank_mask:0xf")
        for b in range(9):
            ms = V2(GST + 2 * b); k1 = V2(GK1 + (b & ~1)); ks = b & 1
            pairs = [(acc(b, 2*pr) + 2*hh, acc(b, 2*pr+1) + 2*hh, CSR + 8*pr + 2*hh, CSR + 8*pr + 4 + 2*hh) for pr in range(2) for hh in range(2)]
            body = []
            for (g, u, cg, cu) in pairs:
                body.append(f"v_pk_fma_f32 {V2(g)}, {V2(cg)}, {ms}, {V2(g)} op_sel_hi:[1,0,1] neg_lo:[0,1,0] neg_hi:[0,1,0]")
            for (g, u, cg, cu) in pairs:
                body.append(f"v_pk_mul_f32 {V2(g)}, {V2(g)}, {k1} op_sel:[0,{ks}] op_sel_hi:[1,{ks}]")
            for (g, u, cg, cu) in pairs:
                body += [f"v_exp_f32 v{g}, v{g}", f"v_exp_f32 v{g+1}, v{g+1}",
                         f"v_pk_fma_f32 {V2(u)}, {V2(cu)}, {ms}, {V2(u)} op_sel_hi:[1,0,1] neg_lo:[0,1,0] neg_hi:[0,1,0]"]
            for (g, u, cg, cu) in pairs:
                body.append(f"v_pk_fma_f32 {V2(g)}, {V2(g)}, {ms}, {ms} op_sel:[0,1,1] op_sel_hi:[1,1,1]")
            for (g, u, cg, cu) in pairs:
                body += [f"v_rcp_f32 v{g}, v{g}", f"v_rcp_f32 v{g+1}, v{g+1}"]
            for (g, u, cg, cu) in pairs:
                body.append(f"v_pk_mul_f32 {V2(u)}, {V2(u)}, {V2(g)}")
            D = T + 4 * (b & 1)
            for i, (g, u, cg, cu) in enumerate(pairs):
                body.append(f"v_cvt_pk_bf16_f32 v{D+i}, v{u}, v{u+1}")
            F = {}
            n = c['g_epi']
            for i in range(n):
                if pf: F[(i + 1) * 40 // (n + 1)] = pf.pop(0)
            p.add(interleave(body, F))
            if b in (4, 8): p(f"s_add_u32 s{sHo}, s{sHo}, 4096")
            if b == 8: p("s_mov_b32 exec_lo, 0x0fff0fff\ns_mov_b32 exec_hi, 0x0fff0fff")
            p(f"buffer_store_dwordx4 {V4(D)}, v{GHA}, {S4(sWS)}, s{sHo} offen offset:{1024*(b & 3)} sc1", tag='hst')
            if b == 8: p("s_mov_b64 exec, -1")
        self.stamp(p, 3)
        self.publish(p, pf)

    def flag_store(self):
        if self.c['fullf']:
            return [[f"v_mov_b32 v{vTmp}, s{sTag}", f"v_lshlrev_b32 v{vT2+3}, 2, v{vLane}"], W('hst'), "s_mov_b64 exec, 0xffff",
                    f"buffer_store_dword v{vTmp}, v{vT2+3}, {S4(sWS)}, s{sFlag} offen sc1", "s_mov_b64 exec, -1"]
        return [f"v_mov_b32 v{vTmp}, s{sTag}", W('hst'), "s_mov_b64 exec, 1",
                f"buffer_store_dword v{vTmp}, v{vL16}, {S4(sWS)}, s{sFlag} offen sc1", "s_mov_b64 exec, -1"]
    def ldg(self): return f"buffer_load_dword v{vPoll}, v{vFG}, {S4(sWS)}, 0 offen sc1"

    def publish(self, p, pf):
        c = self.c
        def ops(n):
            for i in range(n):
                if pf: p.add(pf.pop(0))
        ops(c['pub'])
        p.add(self.flag_store())
        self.stamp(p, 4)
        ops(c['g_post'])
        self.stamp(p, 7)
        p(self.ldg())
        ops(c['g_rtt'])
        self.pf_rest = pf; self.late_flag = False; self.na_done = 0

    def ssm_tail(self, p):
        L = vLane
        c = self.c
        pf = self.pf_rest + self.c_ops(0) + self.c_ops(1) + self.c_ops(2)
        self.stamp(p, 2)
        csr = lambda t: (V2(CS + 2 * (t & 1)), t >> 1)
        E = 160
        vS = 176
        rd = self.rsrd
        def step(T, n_re, n_im, e_re, e_im, p_re, p_im):
            sel = f"op_sel:[{T},0,0] op_sel_hi:[{T},1,1]"
            return [f"v_pk_fma_f32 {V2(n_re)}, {V2(LAM)}, {V2(e_re)}, {V2(p_re)} {sel}",
                    f"v_pk_fma_f32 {V2(n_im)}, {V2(LAM)}, {V2(e_im)}, {V2(p_im)} {sel}",
                    f"v_pk_fma_f32 {V2(n_re)}, {V2(LAM+2)}, {V2(e_im)}, {V2(n_re)} {sel} neg_lo:[1,0,0] neg_hi:[1,0,0]",
                    f"v_pk_fma_f32 {V2(n_im)}, {V2(LAM+2)}, {V2(e_re)}, {V2(n_im)} {sel}"]
        st = {}
        for b in range(9):
            body = []
            for hh in range(2):
                rs = self.rsreg(b) + 2 * hh; u = rs + 4
                for t in range(4):
                    a = acc(b, t) + 2 * hh
                    body.append(f"v_pk_mul_f32 {V2(a)}, {V2(a)}, {V2(rs)}")
                for t in range(4):
                    a = acc(b, t) + 2 * hh; cr, w = csr(t)
                    body.append(f"v_pk_fma_f32 {V2(a)}, {V2(u)}, {cr}, {V2(a)} op_sel:[0,{w},0] op_sel_hi:[1,{w},1] neg_lo:[0,1,0] neg_hi:[0,1,0]")
            if b + 2 < 9: body += rd(b + 2)
            for hh in range(2):
                j = 2 * b + hh
                for T in range(2):
                    pr, pi = acc(b, 2*T) + 2*hh, acc(b, 2*T+1) + 2*hh
                    if j == 0: st[T] = (pr, pi); continue
                    n = E + 8 * (j & 1) + 4 * T
                    body += step(T, n, n + 2, st[T][0], st[T][1], pr, pi); st[T] = (n, n + 2)
            F = {}
            for pos in (4, 20, 12)[:c['s_p1']]:
                if pf: F[pos] = pf.pop(0)
            p.add(interleave(body, F))
        e = E + 8
        p(f"v_swap_b32 v{e+1}, v{e+4}\nv_swap_b32 v{e+3}, v{e+6}")
        E0 = e; EL = e + 4; Wv = E
        p.add(self.cfma(EL, L18, E0, EL))
        p.add(self.cmul(Wv, F36, EL))
        p(f"v_permlane32_swap_b32 v{Wv}, v{Wv+2}\nv_permlane32_swap_b32 v{Wv+1}, v{Wv+3}")
        p(f"v_and_b32 v{vS}, 15, v{L}\nv_lshrrev_b32 v{vS+1}, 4, v{L}")
        p(f"v_pk_add_f32 {V2(Wv)}, {V2(Wv)}, {V2(Wv+2)}")
        p(f"v_lshlrev_b32 v{vS}, 4, v{vS}\nv_lshl_add_u32 v{vS+2}, v{vS+1}, 2, v{vS}")
        p(f"v_permlane16_swap_b32 v{Wv}, v{Wv+1}\nv_add_f32 v{Wv}, v{Wv}, v{Wv+1}")
        p(f"buffer_store_dword v{Wv}, v{vS+2}, {S4(sWS)}, s{sCo} offen sc1")
        self.stamp(p, 3)
        p("s_barrier")
        pf += self.c_ops(3)
        CO = 194
        body = [f"v_mov_b32 v{CO+4}, {OOB}", f"v_lshl_add_u32 v{CO+5}, v{vS+1}, 8, v{vS}", f"s_sub_u32 s{sCo}, s{sCo}, 4096", f"s_movk_i32 s{sK1}, 1024"]
        for n in range(4):
            body += [[f"s_sub_u32 s{sB}, {16 - 4*n}, s{sRg}", f"v_cmp_gt_i32 vcc, s{sB}, v{vS+1}", f"v_cndmask_b32 v{CO+n}, v{CO+5}, v{CO+4}, vcc"]]
        coefp = []
        for b in range(9):
            for hh in range(2):
                for T in range(2):
                    pr, pi = acc(b, 2*T) + 2*hh, acc(b, 2*T+1) + 2*hh
                    s2 = f"op_sel:[{T},0] op_sel_hi:[{T},1]"; s3 = f"op_sel:[{T},0,0] op_sel_hi:[{T},1,1]"
                    t1 = 160 + 4 * T
                    coefp += [f"v_pk_mul_f32 {V2(t1)}, {V2(COEF)}, {V2(pr)} {s2}", f"v_pk_mul_f32 {V2(t1+2)}, {V2(COEF+2)}, {V2(pr)} {s2}",
                             f"v_pk_fma_f32 {V2(pr)}, {V2(COEF+2)}, {V2(pi)}, {V2(t1)} {s3} neg_lo:[1,0,0] neg_hi:[1,0,0]",
                             f"v_pk_fma_f32 {V2(pi)}, {V2(COEF)}, {V2(pi)}, {V2(t1+2)} {s3}"]
        G0, G1, G2, G3 = 144, 148, 152, 156
        for i in range(4):
            body += [f"v_mov_b32 v{G0+i}, v{EL+i}", f"v_mov_b32 v{G1+i}, v{EL+i}"]
        for i in range(4): body.append(f"v_permlane16_swap_b32 v{G0+i}, v{G1+i}")
        for i in range(4):
            body += [f"v_mov_b32 v{G2+i}, v{G0+i}", f"v_mov_b32 v{G3+i}, v{G1+i}"]
        for i in range(4):
            body += [f"v_permlane32_swap_b32 v{G0+i}, v{G2+i}", f"v_permlane32_swap_b32 v{G1+i}, v{G3+i}"]
        body += self.cfma(G1, L36, G0, G1) + self.cfma(G2, L36, G1, G2)
        PRE = 180
        body += [f"v_mov_b32 v{G3+i}, 0" for i in range(4)]
        body += self.csel(G3, G3, G0, sQ1) + self.csel(G3, G3, G1, sQ2) + self.csel(G3, G3, G2, sQ3)
        body += self.cmul(PRE, COEF, G3)
        E0C = 184
        body += self.cmul(E0C, COEF, E0)
        P72, P108, P144, P288, P432 = 144, 148, 152, 156, 160
        G36, F144, L576 = 236, 240, 188
        body += self.cmul(P72, L36, L36) + self.cmul(P108, P72, L36) + self.cmul(P144, P72, P72) + self.cmul(P288, P144, P144)
        body += self.cmul(P432, P288, P144) + self.cmul(L576, P288, P288)
        body += self.cone(164)
        body += self.csel(F144, P432, P288, sQ1) + self.csel(F144, F144, P144, sQ2) + self.csel(F144, F144, 164, sQ3)
        body += self.csel(164, 164, L36, sQ1) + self.csel(164, 164, P72, sQ2) + self.csel(164, 164, P108, sQ3)
        body += self.cmul(G36, COEF, 164)
        AD = 200; ID = 192
        body += [f"v_bfe_u32 v164, v{L}, 2, 2", f"v_and_b32 v166, 3, v{L}", f"v_mov_b32 v169, {OOB}",
                 [f"s_mul_i32 s{sA}, s{sRg}, 9216", f"s_cmp_eq_u32 s{sRg}, 14", f"s_cselect_b32 s{sB}, 0, 4", f"v_cmp_lt_u32 vcc, s{sB}, v164",
                  f"v_add_u32 v165, s{sA}, v{vL16}", f"v_cndmask_b32 v{AD}, v165, v169, vcc"]]
        for j in range(1, 9):
            body += [[f"s_cmp_eq_u32 s{sRg}, 14", f"s_cselect_b32 s{sA}, {64 if j & 3 else 1024 - 192}, s{sK1}", f"v_add_u32 v{AD+j}, s{sA}, v{AD+j-1}"]]
        body += [f"v_and_b32 v168, 1, v{L}", f"v_lshlrev_b32 v168, 4, v168", f"v_mov_b32 v169, 0x3f80", f"v_lshlrev_b32 v168, v168, v169",
                 f"v_cmp_eq_u32 vcc, v164, v{vS+1}", f"v_cndmask_b32 v168, 0, v168, vcc", f"v_cmp_gt_u32 vcc, 2, v166",
                 f"v_cndmask_b32 v{ID}, 0, v168, vcc", f"v_sub_u32 v{ID+1}, v168, v{ID}"]
        body += coefp
        CL = 144
        lb = [f"buffer_load_dwordx4 {V4(CL+4*n)}, v{CO+n}, {S4(sWS)}, s{sCo} offen offset:{1024*n} sc1" for n in range(4)]
        F = {}
        pos = 4; cut = len(body) - c['s_lb']
        while pf and pos < cut - c['s_gap']: F[pos] = pf.pop(0); pos += c['s_sh']
        F[cut - 1] = lb
        for i in range(c['s_al']):
            if pf: F[cut + 6 + i * (c['s_lb'] - 10) // c['s_al']] = pf.pop(0)
        p.add(interleave(body, F))
        lp = self.lab('lb'); ok = self.lab('lbok')
        chk = [f"v_max3_u32 v164, v{CL}, v{CL+1}, v{CL+2}"] + [f"v_max3_u32 v164, v164, v{CL+i}, v{CL+i+1}" for i in range(3, 15, 2)]
        chk += [f"v_max_u32 v164, v164, v{CL+15}", "v_cmp_eq_u32 vcc, -1, v164"]
        p.add(chk)
        if c['stamps']: self.stamp(p, 13)
        p(f"s_branch {ok}" if c['x_nolb'] else f"s_cbranch_vccz {ok}")
        slow = [f"s_mov_b32 s{sSpin}, 0x10000", f"{lp}:"] + lb + ["s_waitcnt vmcnt(0)"] + chk + \
               [f"s_sub_u32 s{sSpin}, s{sSpin}, 1", f"s_cmp_eq_u32 s{sSpin}, 0", f"s_cbranch_scc1 {ok}", f"s_cbranch_vccnz {lp}"]
        p.add([self.optI(x) for x in slow])
        p(f"{ok}:")
        self.stamp(p, 5)
        for n in range(1, 4): p.add(self.cfma(CL + 4*n, L576, CL + 4*(n-1), CL + 4*n))
        p.add(self.cmul(CL, F144, CL + 12))
        for sw in ("v_permlane32_swap_b32", "v_permlane16_swap_b32"):
            p(f"v_mov_b64 {V2(CL+4)}, {V2(CL)}\nv_mov_b64 {V2(CL+6)}, {V2(CL+2)}")
            for i in range(4): p(f"{sw} v{CL+i}, v{CL+4+i}")
            p(f"v_pk_add_f32 {V2(CL)}, {V2(CL)}, {V2(CL+4)}\nv_pk_add_f32 {V2(CL+2)}, {V2(CL+2)}, {V2(CL+6)}")
        p.add(self.cfma(PRE, G36, CL, PRE))
        p.add(self.cfma(E0C, L18, PRE, E0C))
        p(f"v_swap_b32 v{PRE+1}, v{PRE+4}\nv_swap_b32 v{PRE+3}, v{PRE+6}")
        st = {0: (PRE, PRE + 2), 1: (PRE + 4, PRE + 6)}
        PK = 144; MO = 152; SD = 168
        def dsrc(n, t): return (acc(n, t), acc(n, t) + 2) if n < 9 else (acc(n - 9, t) + 1, acc(n - 9, t) + 3)
        def stageA(j, ks=(0, 1)):
            o = []; pk = PRE if j == 4 else PK
            for t in range(4):
                ng = '-' if t & 1 else ''
                for k in ks:
                    a, b_ = dsrc(2*j + k, t)
                    o.append(f"v_cvt_pk_bf16_f32 v{pk+2*t+k}, {ng}v{a}, {ng}v{b_}")
            if 0 in ks:
                for t in range(4):
                    o.append(f"v_mfma_f32_16x16x16_bf16 {V4(MO+4*t)}, {V2(pk+2*t)}, {V2(ID)}, 0")
            return o
        def stageB(j):
            o = []
            for m in range(2):
                for T in range(2):
                    s_ = MO + 4 * (2*T + m)
                    o += [f"v_cvt_pk_bf16_f32 v{SD+4*m+2*T}, v{s_}, v{s_+1}", f"v_cvt_pk_bf16_f32 v{SD+4*m+2*T+1}, v{s_+2}, v{s_+3}"]
                o.append(I(f"buffer_store_dwordx4 {V4(SD+4*m)}, v{AD+j}, {S4(sWS)}, s{sHo if m == 0 else sC} offen sc1", 'hst'))
            return o
        p(f"s_add_u32 s{sC}, s{sHo}, {20*HS}")
        done = {1: [0], 3: [1], 5: [2], 7: [3], 2: [5], 4: [6], 6: [7], 8: [4, 8]}
        pend = None; self.na_done = 0
        for b in range(9):
            for hh in range(2):
                for T in range(2):
                    pr, pi = acc(b, 2*T) + 2*hh, acc(b, 2*T+1) + 2*hh
                    p.add(step(T, pr, pi, st[T][0], st[T][1], pr, pi)); st[T] = (pr, pi)
            for _ in range(c['s_p2']):
                if pf: p.add(pf.pop(0))
            if b == 0: p.add(stageA(4, (1,)))
            if b == (c['e_poll'] if c['early'] else c['s_pb']): p(self.ldg())
            if c['early'] and b == c['e_chk']:
                assert all(isinstance(x[-1], I) for x in pf)
                p.add(self.poll_check(self.ldg(), f"s{sTag}", vPoll)); p.add(self.p2_consts())
            def aloads(n):
                for _ in range(n):
                    if c['early'] and b >= max(5, c['e_chk']) and self.na_done < c['look']:
                        p.add(self.aload(self.na_done)); self.na_done += 1
            aloads(c['e_n'])
            for j in done.get(b, []):
                if pend is not None: p.add(stageB(pend))
                aloads(c['e_n'])
                p.add(stageA(j, (0,) if j == 4 else (0, 1))); pend = j
        p.add(stageB(pend))
        self.stamp(p, 6)
        self.pf_rest = pf; self.late_flag = True

    def flag_offsets(self, p, reg, div, nper, first_sgpr_expr, nl, base):
        m = {140: 1873, 144: 1821}[div]
        p(f"s_lshl_b32 s{sA}, s{sRt}, 6\ns_add_u32 s{sB}, s{sA}, 63\ns_mul_i32 s{sA}, s{sA}, {m}\ns_lshr_b32 s{sA}, s{sA}, 18\ns_mul_i32 s{sB}, s{sB}, {m}\ns_lshr_b32 s{sB}, s{sB}, 18")
        p(f"s_mul_i32 s{sA}, s{sA}, {nper}\ns_mul_i32 s{sB}, s{sB}, {nper}\ns_sub_u32 s{sB}, s{sB}, {nl}")
        p(first_sgpr_expr)
        p(f"v_min_u32 v0, {2*nl-1}, v{vLane}\nv_mov_b32 v1, s{sA}\nv_mov_b32 v2, s{sB}\nv_cmp_gt_u32 vcc, {nl}, v0\nv_cndmask_b32 v1, v2, v1, vcc")
        p(f"v_add3_u32 v0, v0, v1, s{sC}\nv_lshlrev_b32 v0, 6, v0\nv_add_u32 v{reg}, {base}, v0")

    def p2_addr(self):
        L = vLane; a, b_, d = vT2, vT2 + 1, vT2 + 2
        def swz(): return [f"v_lshl_add_u32 v{d}, v{b_}, 2, v{a}", f"v_and_b32 v{d}, 15, v{d}", f"v_lshlrev_b32 v{d}, 4, v{d}", f"v_lshl_add_u32 v{d}, v{b_}, 8, v{d}"]
        o = [f"v_and_b32 v{a}, 15, v{L}", f"v_lshrrev_b32 v{b_}, 4, v{L}"] + swz() + [f"v_add_u32 v{vWA}, s{sCslot}, v{d}"]
        o += [f"v_lshrrev_b32 v{a}, 2, v{L}", f"v_and_b32 v{b_}, 3, v{L}"] + swz() + [f"v_add_u32 v{vRA[3]}, s{sCslot}, v{d}"]
        for t in range(3):
            o += [f"s_sub_u32 s{sA}, s{sWave}, {1 + t}", f"s_and_b32 s{sA}, s{sA}, 3", f"s_mul_i32 s{sA}, s{sA}, 10240", f"v_add_u32 v{vRA[t]}, s{sA}, v{d}"]
        o += [f"s_lshl_b32 s{sA}, s{sRt}, 2", f"s_add_u32 s{sA}, s{sA}, s{sWave}"] + ([f"s_xor_b32 s{sA}, s{sA}, s{sPar}"] if self.c['rot3'] else [])
        o += [f"s_mul_i32 s{sB}, s{sA}, 57", f"s_lshr_b32 s{sB}, s{sB}, 9",
              f"s_mul_i32 s{sB}, s{sB}, 9", f"s_sub_u32 s{sB}, s{sA}, s{sB}", f"s_mul_i32 s{sB}, s{sB}, 12",
              [f"s_cmp_lt_u32 s{sA}, 126", f"s_cselect_b32 s{sB}, s{sB}, 0", f"s_cselect_b32 s71, 32, 0"],
              f"v_lshl_add_u32 v{d}, s{sA}, 4, v{a}", f"v_lshlrev_b32 v{vSR}, 4, v{d}",
              f"v_lshrrev_b32 v{vOO}, 4, v{L}", f"v_mad_u32_u24 v{d}, v{vOO}, s71, v{d}", f"v_subrev_u32 v{d}, s{sB}, v{d}", f"v_mul_u32_u24 v{d}, 1280, v{d}",
              f"s_mul_i32 s{sB}, s{sCt}, 160", f"v_lshlrev_b32 v{vBI}, 3, v{b_}", f"v_add3_u32 v{vOO}, v{d}, v{vBI}, s{sB}",
              f"v_min_u32 v{d}, 39, v{L}", f"v_lshl_add_u32 v{vDr}, v{d}, 2, s{sB}"]
        return o

    steps = [(ph, t, 12 if ph == 0 else 10) for ph in range(2) for t in range(4)]
    frag = [(ph, t, k) for (ph, t, n) in steps for k in range(n)]
    def p2_consts(self): return [f"s_mov_b32 s{sK2}, {HS}", f"s_mov_b32 s{sK1}, {NLOG2E}", f"s_and_b32 s{sPar}, s{sCt}, {self.c['rot3']}"]
    def aload(self, a):
        c = self.c
        ph, t, k = self.frag[a]; pre = []
        if k == 0:
            if t == 0:
                pre += [f"s_mul_i32 s{sD}, s{sWave}, {(10 if ph else 12)*HS}", f"s_lshl_b32 s{sO2}, s{sRt}, 12", f"s_add_u32 s{sD}, s{sD}, s{sO2}",
                        f"s_add_u32 s{sD}, s{sD}, {H + (48*HS if ph else 0)}"]
            pre += [f"s_add_u32 s{sO2}, s{sWave}, {1 + t}", f"s_and_b32 s{sO2}, s{sO2}, 3"] + ([f"s_xor_b32 s{sO2}, s{sO2}, s{sPar}"] if c['rot3'] else []) + [f"s_lshl_b32 s{sO2}, s{sO2}, 10", f"s_add_u32 s{sO2}, s{sO2}, s{sD}"]
        else:
            pre = [f"s_add_u32 s{sO2}, s{sO2}, s{sK2}"]
        return pre + [f"buffer_load_dwordx4 {V4(AR + 4*(a % NR))}, v{vL16}, {S4(sWS)}, s{sO2} offen sc1"]

    def phase2(self, p):
        L = vLane; c = self.c
        LOOK = c['look']; aload = self.aload; frag = self.frag; steps = self.steps
        P = (64, 84); SUM = (104, 124); G = P[0]; XF = P[1]
        CR = (144, 164, 184, 216)
        YA = (120, 140)
        def cbase(i): return [f"v_add_u32 v{vCR0}, {self.crow(i)}, v{vCpat}", f"v_xor_b32 v{vCR1}, 64, v{vCR0}"]
        def cread(y, nb):
            d = V4(CR[y] + 4 * nb) if y < 4 else A4(20 * (y - 4) + 4 * nb)
            return I(f"ds_read_b128 {d}, v{vCR1 if y & 1 else vCR0} offset:{2048*nb}", f'c{y >> 1}r')
        lds_ = f"buffer_load_dword v{vPoll}, v{vFS}, {S4(sWS)}, 0 offen sc1"
        pf = self.pf_rest
        if c['verbose']: print("ssm" if self.late_flag else "glu", "prefetch ops left at phase-2 entry:", len(pf))
        while pf and (not isinstance(pf[0][-1], I) or pf[0][-1].tag in ('c0', 'c1') or len(pf) > c['maxbg']): p.add(pf.pop(0))
        if not self.na_done: p.add(self.poll_check(self.ldg(), f"s{sTag}", vPoll))
        self.stamp(p, 8)
        early = self.late_flag and c['early']
        if not early: p.add(self.p2_consts())
        for a in range(self.na_done, LOOK): p.add(aload(a))
        for _ in range(c['lead_bg'] if not early else 0):
            if pf: p.add(pf.pop(0))
        lead = [cbase(0) + [W('c0')]] + [cread(y, nb) for y in range(2) for nb in range(5)]
        if not early:
            p.add(self.p2_addr())
            if self.late_flag: p.add(self.flag_store())
            p.add(lead); lead = []
        mf = []; CH = 2 if c['chain'] else 1
        for a0 in range(0, 88, CH):
            for nb in range(5):
                for a in (range(a0, a0 + CH) if nb % 2 == 0 else range(a0 + CH - 1, a0 - 1, -1)):
                    ph, t, k = frag[a]; first = k < CH and a == (a0 if nb % 2 == 0 else a0 + CH - 1)
                    if ph == 0: d = V4(P[t & 1] + 4*nb); w = A4(20*k + 4*nb)
                    else: d = A4(YA[t & 1] + 4*nb); w = V4(CR[k] + 4*nb) if k < 4 else A4(20*(k - 4) + 4*nb)
                    mf.append(f"v_mfma_f32_16x16x32_bf16 {d}, {w}, {V4(AR + 4*(a % NR))}, {'0' if first else d}")
        assert LOOK <= NR - CH
        FL = Filler(len(mf), reserved=range(4, len(mf), 5))
        g0 = {}
        for a, (ph, t, k) in enumerate(frag):
            if k == 0: g0[(ph, t)] = 5 * a
            if c['stamps'] == 3 and k == 0:
                q = Prog(); self.stamp(q, 20 + 4 * ph + t); FL.at(5 * a, q.L)
            if c['stamps'] == 4 and 0 <= a - c['sfrom'] < 12:
                q = Prog(); self.stamp(q, 20 + a - c['sfrom']); FL.at(5 * a, q.L)
            j = a + LOOK
            if j == 48: FL.at(5 * a, self.poll_check(lds_, f"s{sTag}", vPoll))
            if j == 48 - c['spoll']: FL.at(5 * a + 3, [lds_])
            if j < 88 and not c['x_noa']: FL.at(5 * a + 1, aload(j))
        def wr(ph, t, nb):
            src = A4(YA[t & 1] + 4*nb) if ph else V4(P[t & 1] + 4*nb)
            return I(f"ds_write_b128 v{vWA}, {src} offset:{40960 + (t & 1)*5120 + nb*1024}", 'xw')
        def rd(t, n, dst): return f"ds_read_b128 {V4(dst + 4*n)}, v{vRA[t]} offset:{40960 + (t & 1)*5120 + n*1024}"
        addq = {}
        for (ph, t, n) in steps[1:]:
            pp, pt = (ph, t - 1) if t else (0, 3)
            S, IN = SUM[pp], SUM[1 - pp]; z = g0[(ph, t)]
            if c['w64'] and ph == 0:
                for k_, g in enumerate((2, 3, 5, 7, 8, 10, 12, 13, 15, 17)):
                    FL.at(z + g, I(f"ds_write_b64 v{vWA}, {V2(P[pt & 1] + 2*k_)} offset:{40960 + (pt & 1)*5120 + (k_ >> 1)*1024 + (k_ & 1)*8}", 'xw'))
            else:
                for nb, g in enumerate((3, 7, 10, 13, 17)): FL.at(z + g, wr(pp, pt, nb))
            rg = (23, 24, 25, 27, 28) if pt < 3 else (8, 12, 14, 18, 19)
            FL.at(z + (22 if pt < 3 else 45), [W('xw', 'xr'), "s_barrier"])
            for n_, g in enumerate(rg): FL.at(z + g, I(rd(pt, n_, S if pt == 0 else IN), 'xr'))
            addq[(ph, t)] = (z + rg[0] + 9, [f"v_add_f32 v{S+i}, v{S+i}, v{IN+i}" for i in range(20)] if pt else [])
        c4 = self.c_ops(4); c4[0] = [W('c0r')] + c4[0]
        bg = pf + c4
        if c['x_nobg']: bg = []
        g = 0; lo = 5 if lead else 1; n0 = len(bg) - 10
        for i, x in enumerate(bg):
            grp = (1 + i * 33 // len(bg)) if (i < n0 or 1 + n0 * 33 // len(bg) >= lo) else lo + (i - n0) * (34 - lo) // 10
            g = FL.fit(x, max(g + 1, 5 * grp + 3))
        assert g < g0[(0, 3)]
        g = FL.stream(lead, 0, 20, step=1)
        g = FL.stream([cbase(1) + [W('c1')]] + [cread(y, nb) for y in (2, 3) for nb in range(5)], g + 1, 56, step=1)
        assert g < g0[(0, 1)] + 2
        if early:
            g = 1
            for x in self.p2_addr():
                x = FL.norm(x)
                if x[0].kind == 'salu':
                    g += 1
                    while g % 5 in (0, 4): g += 1
                    FL.at(g, x)
                else: g = FL.fit(x, g)
            assert g < g0[(0, 1)] + 22, g
            FL.at(5 * c['e_flag'] - 2, self.flag_store()[:1]); FL.at(5 * c['e_flag'], self.flag_store()[1:])
        for key in ((0, 2), (0, 3)):
            g = FL.stream(addq[key][1], addq[key][0]); assert g < g0[key] + 58
        g = g0[(0, 3)] + 5
        for y in range(4, 10):
            if y % 2 == 0: g = FL.fit(cbase(y >> 1) + [W(f'c{y >> 1}')], g) + 1
            g = FL.stream([cread(y, nb) for nb in range(5)], max(g, g0[(0, 3)] + 5 * (((y - 4) | (CH - 1)) + 1)), g0[(1, 0)] + 5 * (y & ~(CH - 1)) - 8, step=1) + 1
        S = SUM[0]
        if not c['x_nofin'] & 1: FL.stream([f"global_load_dword v{vDr}, v{vDr}, {S2(pDsk)}", f"buffer_load_dwordx4 {V4(vSR)}, v{vSR}, {S4(sWS)}, 0 offen sc1"], g0[(1, 1)] + 30, None, step=5)
        g = FL.stream(addq[(1, 0)][1], addq[(1, 0)][0]); assert g < g0[(1, 1)] + 22
        ch = [[f"v_mul_f32 v{XF+e}, s{sK1}, v{S+e}", f"v_exp_f32 v{XF+e}, v{XF+e}", f"v_add_f32 v{XF+e}, 1.0, v{XF+e}",
               f"v_rcp_f32 v{XF+e}, v{XF+e}", f"v_mul_f32 v{G+e}, v{S+e}, v{XF+e}"] for e in range(20)]
        end = FL.dag(ch, g + 1, g0[(1, 2)] + 21)
        gfin = 0
        for n_ in range(5 if not c['x_nofin'] & 2 else 0):
            gfin = FL.fit(f"buffer_load_dwordx2 {V2(XF+4*n_+2)}, v{vOO}, {S4(sX)}, 0 offen offset:{32*n_}", max(gfin + 4, max(end[4*n_:4*n_+4])) + 1, max(gfin + 5, max(end[4*n_:4*n_+4]) + 5))
        g = FL.stream(addq[(1, 2)][1], addq[(1, 2)][0]); assert g < g0[(1, 3)] + 22
        S = SUM[1]; T = vT2
        a0 = 88 - NR
        tq = [f"v_mul_f32 v{vSR+1}, v{vSR}, v{vSR+2}"]
        def unp(R): return [f"v_lshlrev_b32 v{R}, 16, v{R+2}", f"v_and_b32 v{R+1}, 0xffff0000, v{R+2}", f"v_lshlrev_b32 v{R+2}, 16, v{R+3}", f"v_and_b32 v{R+3}, 0xffff0000, v{R+3}"]
        gb = 0
        for n_ in range(5):
            Dn = AR + 4 * ((a0 + n_) % NR)
            gb = FL.stream([f"ds_bpermute_b32 v{Dn + 2 + k}, v{vBI}, v{vDr} offset:{32*n_ + 4*k}" for k in range(2)], max(gb + 1, 5 * (((a0 + n_) | (CH - 1)) + 1)), None, step=1)
            tq += unp(Dn)
        for n_ in range(5):
            Dn = AR + 4 * ((a0 + n_) % NR)
            tq += unp(XF + 4*n_)
            tq += [f"v_fma_f32 v{T+k}, v{XF+4*n_+k}, v{vSR+2}, -v{vSR+1}" for k in range(4)]
            tq += [f"v_fmac_f32 v{S+4*n_+k}, v{T+k}, v{Dn+k}" for k in range(4)]
        tq.append(f"v_lshlrev_b32 v{vOO}, 1, v{vOO}")
        g = max(gb + 1, gfin + 1)
        while tq and g < len(mf) - 1:
            if FL.time(g, FL.norm(tq[0])) <= 16: FL.at(g, tq.pop(0))
            else: g += 1
        if c['verbose']: print("skip-term instructions left for the tail:", len(tq), "overflow", sum(max(0, FL.time(g_) - 16) for g_ in range(len(mf))))
        p.add(interleave(mf, FL.F))
        self.stamp(p, 9)
        IN = SUM[0]; I3 = CR[0]
        for n_ in range(5):
            r = 4 * n_
            tq += [f"v_pk_add_f32 {V2(S+r+k)}, {V2(S+r+k)}, {V2(IN+r+k)}" for k in (0, 2)]
        for n_ in range(5):
            r = 4 * n_
            tq += [f"v_pk_fma_f32 {V2(XF+r+k)}, {V2(S+r+k)}, {V2(G+r+k)}, {V2(XF+r+k)}" for k in (0, 2)]
        k = (len(tq) + 6) // 7
        for nb in range(5):
            p.add(tq[:k]); tq = tq[k:]
            p.add([wr(1, 3, nb), rd(3, nb, I3)])
        p.add(tq)
        for n_ in range(5):
            r = 4 * n_
            for k in (0, 2): p(f"v_pk_fma_f32 {V2(XF+r+k)}, {V2(I3+r+k)}, {V2(G+r+k)}, {V2(XF+r+k)}")
            if c['x_lin']: p(f"s_lshl_b32 s{sA}, s2, 2\ns_add_u32 s{sA}, s{sA}, s{sWave}\ns_mul_i32 s{sA}, s{sA}, 5120\ns_add_u32 s{sA}, s{sA}, {1024*n_}\nv_add_u32 v{vT2}, s{sA}, v{vL16}")
            p(f"buffer_store_dwordx4 {V4(XF+r)}, {('v%d' % vOO) if not c['x_lin'] else ('v%d' % vT2)}, {S4(sU)}, 0 offen offset:{64*n_ if not c['x_lin'] else 0} {('', 'nt', 'sc1', 'sc0 sc1', 'sc1 nt', 'sc0 sc1 nt', 'sc0', 'sc0 nt')[c['outmode']]}")
        self.stamp(p, 11)
        if c['stamps']: p("s_waitcnt vmcnt(0)"); self.stamp(p, 12)
        self.stamp_flush(p)
        if self.c['endspin']:
            l = self.lab('es')
            if self.c['probe'] < 0 and not self.c['chase'] and not self.c['bw']: p("s_mov_b32 s101, 0")
            p(f"s_add_u32 s101, s101, {self.c['endspin']*100}\n{l}:\ns_memrealtime {S2(sSt)}\ns_waitcnt lgkmcnt(0)\ns_sub_u32 s{sSt}, s{sSt}, s100\ns_cmp_lt_u32 s{sSt}, s101\ns_cbranch_scc1 {l}")
        p("s_endpgm")

    def build(self, code_bytes):
        paths = []
        for ssm in (0, 1):
            p = Prog()
            self.entry(p, code_bytes)
            p("L_mark:")
            self.prologue(p, ssm)
            self.mainloop(p, ssm)
            (self.ssm_tail if ssm else self.glu_tail)(p)
            self.phase2(p)
            Lf = finalize(p)
            k = [i for i, x in enumerate(Lf) if x.text == 'L_mark:'][0]
            k2 = [i for i, x in enumerate(Lf) if x.text == 'L_split:'][0]
            paths.append((Lf[:k], Lf[k+1:k2], self.with_pads(Lf[k2+1:], 'S' if ssm else 'G')))
        assert text_of(paths[0][0]) == text_of(paths[1][0])
        body = text_of(paths[0][0]) + text_of(paths[self.c['sfirst']][1]) + "L_second:\n" + text_of(paths[1 - self.c['sfirst']][1]) + "L_end:\n    s_endpgm\n"
        for nm, pth in zip("GS", paths):
            body += f".p2align 12\nL_main{nm}:\n" + text_of(pth[2])
        return body

    def with_pads(self, L, nm):
        if not self.c['pads']: return L
        sz = inst_sizes(L); out = []; off = 0; k = 0
        for i, n in zip(L, sz):
            if off >= 4096 * k and i.kind != 'label':
                out += [I(f"L_pad{nm}{k}:"), k]; off += 4; k += 1
            out.append(i); off += n
        assert k >= 4
        return [I(f"s_cbranch_execz " + (f"L_pad{nm}{x+4}" if x + 4 < k else f"L_ret{nm}")) if isinstance(x, int) else x for x in out]

def inst_sizes(L):
    import subprocess, tempfile
    with tempfile.TemporaryDirectory() as d:
        open(d + "/k.s", "w").write('.amdgcn_target "amdgcn-amd-amdhsa--gfx950"\n.text\n' + text_of(L))
        r = subprocess.run(["clang", "-x", "assembler", "-target", "amdgcn-amd-amdhsa", "-mcpu=gfx950", "-c", d + "/k.s", "-o", d + "/k.o"], capture_output=True, text=True)
        assert r.returncode == 0, r.stderr[:3000]
        r = subprocess.run(["llvm-objdump", "-d", "-z", "--mcpu=gfx950", d + "/k.o"], capture_output=True, text=True)
    enc = [4 * len(re.findall(r'\b[0-9A-F]{8}\b', ln.split('//')[1].split(':', 1)[1].split('<')[0])) for ln in r.stdout.split('\n') if '//' in ln]
    n = sum(1 for i in L if i.kind != 'label'); assert len(enc) == n, (len(enc), n)
    it = iter(enc)
    return [0 if i.kind == 'label' else next(it) for i in L]

HEADER = open(os.path.join(os.path.dirname(os.path.abspath(__file__)), "..", "cdna_kernels", NAME + ".s.ref")).read().split("; Override launch")[0] \
    if os.path.exists(os.path.join(os.path.dirname(os.path.abspath(__file__)), "..", "cdna_kernels", NAME + ".s.ref")) else ""

def make(cfg, code_bytes=61440):
    body = Gen(cfg).build(code_bytes)
    return HEADER + f"""; One persistent launch: 256 workgroups x 4 waves, one per CU (generated by gen/k5.py).
; @launch grid=(256,1,1) block=(256,1,1) lds=163840
.amdgcn_target "amdgcn-amd-amdhsa--gfx950"
.text
.globl {KERN}
.p2align 8
.type {KERN},@function
{KERN}:
{body}L_code_end:
.section .rodata,"a"
.p2align 6
.amdhsa_kernel {KERN}
  .amdhsa_next_free_vgpr 512
  .amdhsa_next_free_sgpr 102
  .amdhsa_accum_offset 256
  .amdhsa_group_segment_fixed_size 0
  .amdhsa_kernarg_size 128
  .amdhsa_user_sgpr_count 2
  .amdhsa_user_sgpr_kernarg_segment_ptr 1
  .amdhsa_system_sgpr_workgroup_id_x 1
  .amdhsa_float_denorm_mode_32 3
.end_amdhsa_kernel
"""

def code_size(txt):
    import subprocess, tempfile
    with tempfile.TemporaryDirectory() as d:
        open(d + "/k.s", "w").write(txt)
        r = subprocess.run(["clang", "-x", "assembler", "-target", "amdgcn-amd-amdhsa", "-mcpu=gfx950", "-c", d + "/k.s", "-o", d + "/k.o"], capture_output=True, text=True)
        assert r.returncode == 0, r.stderr[:3000]
        r = subprocess.run(["llvm-readelf", "-S", d + "/k.o"], capture_output=True, text=True)
        for ln in r.stdout.split('\n'):
            if ' .text' in ln:
                f = ln.split(']')[1].split()
                return int(f[4], 16)

if __name__ == "__main__":
    cfg = dict(CFG)
    out = None
    for a in sys.argv[1:]:
        if '=' in a:
            k, v = a.split('='); cfg[k] = int(v, 0)
        else: out = a
    n = code_size(make(cfg))
    txt = make(cfg, n)
    n2 = code_size(txt)
    assert abs(n2 - n) <= 64, (n, n2)
    open(out or "k.s", "w").write(txt)
    print("code bytes", n2, "source bytes", len(txt))
```
